```python
import torch

def _softmax(x, axis=-1):
    return torch.softmax(x, dim=axis)

def _gelu(x):
    return torch.nn.functional.gelu(x, approximate='tanh')

def _silu(x):
    return torch.nn.functional.silu(x)

def _sigmoid(x):
    return torch.sigmoid(x)

def _layernorm(x, axis=-1, eps=1e-05):
    m = x.mean(dim=axis, keepdim=True)
    v = x.var(dim=axis, keepdim=True, unbiased=False)
    return (x - m) / torch.sqrt(v + eps)

def _scatter_add(tgt, idx, src, axis=0):
    return tgt.clone().index_add_(axis, idx, src)

def _segment_sum(src, seg, n):
    out = torch.zeros((n,) + src.shape[1:], dtype=src.dtype)
    return out.index_add_(0, seg, src)

def _pad(x, pw):
    flat = tuple((v for pair in reversed(pw) for v in pair))
    return torch.nn.functional.pad(x, flat)
kernel_name = 'adaLN_cond__memory_aug_recurrent_mem_tr__geglu_ffn__prompt'

def setup_inputs():

    _w = lambda a: (lambda t: t.to(torch.bfloat16) if t.is_floating_point() else t)(torch.as_tensor(a))

    def _A_setup():
        B, S, Dm = (1, 2048, 512)
        H, Dh = (32, 128)
        M, seg = (8, 32)
        seg = min(seg, S)
        S = S // seg * seg
        return {'x': _w((lambda *s: torch.randn(*s, dtype=torch.bfloat16) * 0.05)(B, S, Dm)), 'mem0': _w((lambda *s: torch.randn(*s, dtype=torch.bfloat16) * 0.4)(B, M, Dm)), 'Wq': _w((lambda *s: torch.randn(*s, dtype=torch.bfloat16) * 3.2)(Dm, H, Dh) * Dm ** (-0.5)), 'Wk': _w((lambda *s: torch.randn(*s, dtype=torch.bfloat16) * 3.2)(Dm, H, Dh) * Dm ** (-0.5)), 'Wv': _w((lambda *s: torch.randn(*s, dtype=torch.bfloat16) * 0.4)(Dm, H, Dh) * Dm ** (-0.5)), 'Wo': _w((lambda *s: torch.randn(*s, dtype=torch.bfloat16) * 0.4)(H, Dh, Dm) * (H * Dh) ** (-0.5)), 'seg_len': seg}
    _A_in = _A_setup()

    def _B_setup():
        B, S, D, F = (1, 2048, 512, 1376)
        return {'x': _w((lambda *s: torch.randn(*s, dtype=torch.bfloat16) * 0.05)(B, S, D)), 'w_gate': _w((lambda *s: torch.randn(*s, dtype=torch.bfloat16) * 0.05)(D, F)), 'w_up': _w((lambda *s: torch.randn(*s, dtype=torch.bfloat16) * 0.05)(D, F)), 'w_down': _w((lambda *s: torch.randn(*s, dtype=torch.bfloat16) * 0.05)(F, D))}
    _B_in = _B_setup()
    return {'A_x': _A_in['x'], 'A_mem0': _A_in['mem0'], 'A_Wq': _A_in['Wq'], 'A_Wk': _A_in['Wk'], 'A_Wv': _A_in['Wv'], 'A_Wo': _A_in['Wo'], 'A_seg_len': _A_in['seg_len'], 'B_x': _B_in['x'], 'B_w_gate': _B_in['w_gate'], 'B_w_up': _B_in['w_up'], 'B_w_down': _B_in['w_down'], 'c': _w((lambda *s: torch.randn(*s, dtype=torch.bfloat16) * 0.1)(1, 512) * 8.0), 'w_mod': _w((lambda *s: torch.randn(*s, dtype=torch.bfloat16) * 0.1)(512, 6 * 512) * 512 ** (-0.5) * 8.0)}

def reference(A_x, A_mem0, A_Wq, A_Wk, A_Wv, A_Wo, A_seg_len, B_x, B_w_gate, B_w_up, B_w_down, c, w_mod):

    def _A_ref(x, mem0, Wq, Wk, Wv, Wo, seg_len):
        B, S, Dm = x.shape
        H, Dh = (Wq.shape[1], Wq.shape[2])
        M = mem0.shape[1]
        scale = Dh ** (-0.5)
        n_seg = S // seg_len
        L = M + seg_len
        idx = torch.arange(L)
        mask = (idx[:, None] < M) | (idx[:, None] >= idx[None, :])
        mem = mem0
        outs = []
        for s in range(n_seg):
            xs = x[:, s * seg_len:(s + 1) * seg_len, :].clone()
            h = torch.concatenate([mem, xs], axis=1)
            q = torch.einsum('btd,dhe->bhte', h, Wq)
            k = torch.einsum('btd,dhe->bhte', h, Wk)
            v = torch.einsum('btd,dhe->bhte', h, Wv)
            scores = torch.einsum('bhqe,bhke->bhqk', q, k) * scale
            scores = torch.where(mask[None, None], scores, -1000000000.0)
            p = _softmax(scores, axis=-1)
            o = torch.einsum('bhqk,bhke->bhqe', p, v)
            o = torch.einsum('bhte,hed->btd', o, Wo)
            mem = o[:, :M, :].clone()
            outs.append(o[:, M:, :])
        return torch.concatenate(outs, axis=1)

    def _B_ref(x, w_gate, w_up, w_down):
        return _gelu(x @ w_gate) * (x @ w_up) @ w_down
    x = A_x
    mod = (_silu(c) @ w_mod).reshape(c.shape[0], 6, 1, -1)
    sa, ca, ga, sb, cb, gb = (mod[:, 0].clone(), mod[:, 1].clone(), mod[:, 2].clone(), mod[:, 3].clone(), mod[:, 4].clone(), mod[:, 5].clone())
    h = _layernorm(x, axis=-1) * (1 + ca) + sa
    x = x + ga * _A_ref(h, A_mem0, A_Wq, A_Wk, A_Wv, A_Wo, A_seg_len)
    h = _layernorm(x, axis=-1) * (1 + cb) + sb
    x = x + gb * _B_ref(h, B_w_gate, B_w_up, B_w_down)
    return x
```

```python
import re

REG_RE = re.compile(r'\b([vas])(\d+)\b|\b([vas])\[(\d+):(\d+)\]|\b(vcc|exec|m0|scc)\b')
TRANS = ('v_exp_f32','v_log_f32','v_rcp_f32','v_rsq_f32','v_sqrt_f32','v_sin_f32','v_cos_f32','v_rcp_iflag_f32')

def regs_of(tok):
    out=set()
    for m in REG_RE.finditer(tok):
        if m.group(1): out.add((m.group(1),int(m.group(2))))
        elif m.group(3):
            for i in range(int(m.group(4)),int(m.group(5))+1): out.add((m.group(3),i))
        else: out.add((m.group(6),0))
    return out

class Ins:
    __slots__=('text','op','ops','kind','wr','rd','passes','A','B','C','D','states','dpp','mods','store_data','wide_store','lds_dma','target')
    def __init__(self,text):
        self.text=text
        t=text.split(';')[0].strip()
        parts=t.split(None,1)
        self.op=parts[0]
        rest=parts[1] if len(parts)>1 else ''
        ops=[];cur='';depth=0
        for ch in rest:
            if ch=='[':depth+=1
            if ch==']':depth-=1
            if ch==',' and depth==0: ops.append(cur.strip());cur=''
            else: cur+=ch
        if cur.strip(): ops.append(cur.strip())
        self.mods=''
        if ops:
            last=ops[-1].split(None,1)
            if len(last)>1: ops[-1]=last[0]; self.mods=last[1]
        self.ops=ops
        op=self.op
        self.wr=set();self.rd=set();self.passes=0;self.A=self.B=self.C=self.D=set()
        self.states=1;self.dpp=('row_' in self.mods or 'quad_perm' in self.mods or op.endswith('_dpp'))
        self.store_data=set();self.wide_store=False;self.lds_dma=False;self.target=None
        R=[regs_of(o) for o in ops]
        if op.startswith('v_mfma') or op.startswith('v_smfmac'):
            self.kind='mfma'
            self.passes=8 if '32x32' in op else 4
            self.D=R[0];self.A=R[1];self.B=R[2]
            if op.startswith('v_smfmac'):
                self.C=R[0]; self.B=R[2]|R[3]
            else: self.C=R[3]
            self.wr=set(self.D);self.rd=self.A|self.B|self.C
        elif op.startswith('v_'):
            self.kind='valu'
            if op.startswith('v_cmp'):
                self.wr=R[0]; self.rd=set().union(*R[1:])
                if op.startswith('v_cmpx'): self.wr=self.wr|{('exec',0)}
            elif 'permlane' in op and 'swap' in op:
                self.wr=R[0]|R[1]; self.rd=R[0]|R[1]
            elif op.startswith(('v_add_co','v_sub_co','v_subrev_co','v_addc_co','v_subb_co','v_div_scale','v_mad_u64')):
                self.wr=R[0]|R[1]; self.rd=set().union(*R[2:])
            elif op=='v_nop': pass
            else:
                self.wr=R[0]; self.rd=set().union(*R[1:]) if len(R)>1 else set()
                if op.startswith(('v_fmac','v_dot2c','v_pk_fmac','v_writelane')) or self.dpp: self.rd|=R[0]
                if op.startswith('v_div_fmas'): self.rd|={('vcc',0)}
        elif op.startswith(('buffer_','global_','flat_')):
            self.kind='vmem'
            allr=set().union(*R) if R else set()
            if 'lds' in self.mods.split() or '_lds_' in op:
                self.lds_dma=True; self.rd=allr|{('m0',0)}
            elif '_load' in op:
                self.wr=R[0]; self.rd=set().union(*R[1:])
            elif '_store' in op:
                self.rd=allr
                self.store_data=R[0] if op.startswith('buffer') else R[1]
                self.wide_store=('x3' in op or 'x4' in op)
            elif '_atomic' in op:
                self.rd=allr
                if 'sc0' in self.mods.split(): self.wr=R[0]
            else: pass
        elif op.startswith('ds_'):
            self.kind='ds'
            if op.startswith(('ds_read','ds_bpermute','ds_permute','ds_swizzle')) or '_rtn' in op:
                self.wr=R[0]; self.rd=set().union(*R[1:])
            else: self.rd=set().union(*R)
        elif op.startswith('s_'):
            self.kind='salu'
            if op=='s_nop': self.states=int(ops[0],0)+1
            elif op.startswith(('s_load','s_memtime','s_memrealtime','s_buffer_load','s_atomic')):
                self.kind='smem'; self.wr=R[0]; self.rd=set().union(*R[1:]) if len(R)>1 else set()
            elif op.startswith(('s_cbranch','s_branch')):
                self.kind='branch'; self.target=ops[0]
            elif op.startswith('s_cmp') or op.startswith(('s_waitcnt','s_barrier','s_endpgm','s_sleep','s_setprio','s_bitcmp')):
                self.rd=set().union(*R) if R else set()
            else:
                self.wr=R[0] if R else set(); self.rd=set().union(*R[1:]) if len(R)>1 else set()
                if 'saveexec' in op: self.wr=self.wr|{('exec',0)}
        else:
            raise ValueError('unknown op '+text)

def isv(rs): return {r for r in rs if r[0] in 'va'}
def iss(rs): return {r for r in rs if r[0] in ('s','vcc')}

def need(p,c):
    n=0
    if p.kind=='valu':
        w=isv(p.wr)
        if c.kind=='mfma' and w&c.rd: n=max(n,2)
        if c.kind=='valu':
            if p.op.startswith(TRANS) and not c.op.startswith(TRANS) and w&c.rd: n=max(n,1)
            if 'permlane' in c.op and w&c.rd: n=max(n,2)
            if c.dpp and w&c.rd: n=max(n,2)
            if c.op.startswith(('v_readlane','v_readfirstlane')) and w&c.rd: n=max(n,1)
            if iss(p.wr)&c.rd:
                n=max(n,4 if c.op.startswith(('v_readlane','v_writelane')) else 2)
            if ('exec',0) in p.wr: n=max(n,5)
        if c.kind=='mfma' and ('exec',0) in p.wr: n=max(n,4)
        if c.kind=='vmem' and iss(p.wr)&c.rd: n=max(n,5)
        if c.kind in('salu','smem') and iss(p.wr)&c.rd: n=max(n,1)
    elif p.kind=='mfma':
        four=(p.passes==4)
        D=p.D
        if c.kind=='mfma':
            if D&(c.A|c.B): n=max(n,8 if four else 12)
            if D&c.C:
                if c.C==D and c.passes==p.passes: pass
                else: n=max(n,6 if four else 10)
            elif D&c.D: n=max(n,6 if four else 10)
        elif c.kind in('valu','vmem','ds'):
            if D&(c.rd|c.wr): n=max(n,8 if four else 12)
            if c.kind=='valu' and p.C&c.wr: n=max(n,3 if four else 7)
    elif p.kind=='vmem':
        if p.wide_store and p.store_data&c.wr: n=max(n,2 if c.kind=='valu' else 1)
    elif p.kind=='salu':
        if ('m0',0) in p.wr and c.lds_dma: n=max(n,1)
    return n

class Asm:
    def __init__(self):
        self.items=[]
        self.uid=0
    def __call__(self,text):
        for line in text.strip().split('\n'):
            s=line.strip()
            if not s or s.startswith(';'):
                if s: self.items.append(s)
                continue
            if s.endswith(':') or s.startswith('.'): self.items.append(s)
            else: self.items.append(Ins(s))
    def raw(self,s): self.items.append(s)
    def label(self,prefix='L'):
        self.uid+=1; return f'{prefix}_{self.uid}'
    def _window_need(self,prev,c):
        d=0;worst=0
        for p in reversed(prev):
            n=need(p,c)
            if n-d>worst: worst=n-d
            d+=p.states
            if d>=20: break
        return worst
    def fix(self):
        out=[];prev=[]
        for it in self.items:
            if isinstance(it,Ins):
                w=self._window_need(prev,it)
                if w>0:
                    nop=Ins(f's_nop {w-1}'); out.append(nop); prev.append(nop)
                out.append(it); prev.append(it)
                if it.op in('s_branch','s_endpgm','s_setpc_b64'): prev=[]
                if len(prev)>40: prev=prev[-24:]
            else: out.append(it)
        self.items=out
        changed=True
        while changed:
            changed=False
            labels={it[:-1]:i for i,it in enumerate(self.items) if isinstance(it,str) and it.endswith(':')}
            for i,it in enumerate(self.items):
                if isinstance(it,Ins) and it.kind=='branch' and it.target in labels:
                    prev=[]
                    j=i
                    while j>=0 and len(prev)<24:
                        x=self.items[j]
                        if isinstance(x,Ins):
                            if j!=i and x.op in('s_branch','s_endpgm'): break
                            prev.insert(0,x)
                        j-=1
                    j=labels[it.target]+1;d=0
                    while j<len(self.items) and d<20:
                        x=self.items[j]
                        if isinstance(x,Ins):
                            w=self._window_need(prev,x)
                            if w>0:
                                self.items.insert(j,Ins(f's_nop {w-1}')); changed=True; break
                            prev.append(x); d+=x.states
                            if x.op in('s_branch','s_endpgm'): break
                        j+=1
                    if changed: break
    def text(self):
        return '\n'.join((('    '+it.text) if isinstance(it,Ins) else it) for it in self.items)+'\n'
    def count(self): return sum(isinstance(i,Ins) for i in self.items)

def check_waits(instrs,name=''):
    vm=[];lg=[];errs=0
    for k,it in enumerate(instrs):
        if not isinstance(it,Ins): continue
        if it.op=='s_waitcnt':
            t=it.text
            m=re.search(r'vmcnt\((\d+)\)',t)
            if m:
                n=int(m.group(1))
                while len(vm)>n: vm.pop(0)
            m=re.search(r'lgkmcnt\((\d+)\)',t)
            if m:
                n=int(m.group(1))
                if any(x[1]=='smem' for x in lg):
                    if n==0: lg=[]
                else:
                    while len(lg)>n: lg.pop(0)
            continue
        touch=it.rd|it.wr
        for lst,nm in((vm,'vm'),(lg,'lgkm')):
            for d,kind,txt in lst:
                if d&touch:
                    if it.kind=='vmem' and not (d&it.rd): continue
                    if ';poll' in txt and not (d&it.wr): continue
                    if errs<6: print(f'[{name}] WAIT VIOLATION at #{k}: "{it.text}" touches pending {nm} "{txt}"'); errs+=1
        if it.kind=='vmem': vm.append((it.wr,'vm',it.text))
        elif it.kind=='ds': lg.append((it.wr,'ds',it.text))
        elif it.kind=='smem' and not it.op.startswith('s_mem'): lg.append((it.wr,'smem',it.text))
        if len(vm)>63: print(f'[{name}] vmcnt overflow at #{k}'); errs+=1
    return errs
```

```python
WS_FLAGS=0x0
WS_MOD  =0x10000
WS_STAMP=0x18000
WS_HOPB =0x100000
import os
NREP=int(os.environ.get('NREP','1'))
HB_REP=8192+256
HB_STEP=65536
WS_HOPA =0x200000
import os
NRING=int(os.environ.get('NRING','2'))
SWZ=int(os.environ.get('SWZ','1'))
WS_H    =0x400000
WS_X1   =0x600000
WS_H2   =0x800000
WS_G    =0xA00000
WS_Q    =0x2000000
WS_KV   =0x3000000
KV_H=16384
KV_SEG=32*KV_H
KV_W=4096
WS_MPUB =0x20000
WS_P1   =0x6000000
WS_SIZE =0x10000000
SCALE_LOG2E = (128 ** -0.5) * 1.4426950408889634
import struct
def f2u(f): return struct.unpack('<I', struct.pack('<f', f))[0]

F_KV=0
C_P1=8192
C_H2=16384
C_G =24576
D_SLOT=0
D_TEAM=128
D_INIT=160
D_LN=192
G_SEG=2*43*1024
WS_LOG=0xF000000
WS_TL=0xF100000
```

```python
from asmdsl import *
from layout import *
from team import srd, vr, S_WS, S_DBG, SPIN, LDS_TOTAL
import team3, roles
from roles import sH, sWv, sRep, sE
NAB=3; NR1=48

def tl(a,k,diag):
    if diag:
        a(f'''s_memrealtime s[82:83]
        s_lshl_b32 s81, s4, 5
        s_add_u32 s81, s81, s19x
        '''.replace('s19x','s99'))
        a(f'''s_lshl_b32 s81, s81, 6
        s_add_u32 s81, s81, {WS_TL}
        s_waitcnt lgkmcnt(0)
        v_mov_b32 v59, s82
        buffer_store_dword v59, off, {S_WS}, s81 offset:{4*k}
        s_waitcnt vmcnt(0)''')

def mega(name,P,diag=False,upto=99,standalone_team=False):
    a=Asm(); tail=[]
    EXIT=name+'_exit'
    C1=a.label('CL'); C2=a.label('CD'); C3=a.label('CW')
    a(f'''
    s_cmp_ge_u32 s2, 256
    s_cbranch_scc1 {EXIT}
    s_load_dwordx4 s[96:99], s[0:1], 112
    s_getreg_b32 s3, hwreg(HW_REG_XCC_ID)
    s_and_b32 s3, s3, 7
    v_and_b32 v60, 63, v0
    v_lshrrev_b32 v61, 6, v0
    v_readfirstlane_b32 {sWv}, v61
    s_waitcnt lgkmcnt(0)
    ''')
    srd(a,S_WS,'s98','s99',WS_SIZE); srd(a,S_DBG,'s96','s97',256)
    a(f'''
    s_cmp_lg_u32 {sWv}, 0
    s_cbranch_scc1 {C3}
    s_mov_b32 s4, s3
    s_mov_b32 s5, 0
    s_mov_b64 exec, 1
    {C1}:
    v_mov_b32 v61, 1
    s_lshl_b32 s6, s4, 4
    buffer_atomic_add v61, off, {S_DBG}, s6 offset:{D_SLOT} sc0
    s_waitcnt vmcnt(0)
    v_readfirstlane_b32 s6, v61
    s_cmp_lt_u32 s6, 32
    s_cbranch_scc1 {C2}
    s_add_u32 s4, s4, 1
    s_and_b32 s4, s4, 7
    s_add_u32 s5, s5, 1
    s_cmp_lt_u32 s5, 8
    s_cbranch_scc1 {C1}
    s_mov_b32 s4, 8
    {C2}:
    s_lshl_b32 s4, s4, 5
    s_add_u32 s4, s4, s6
    v_mov_b32 v61, s4
    v_mov_b32 v62, 0
    ds_write_b32 v62, v61
    s_mov_b64 exec, -1
    s_waitcnt lgkmcnt(0)
    {C3}:
    s_barrier
    v_mov_b32 v62, 0
    ds_read_b32 v61, v62
    s_waitcnt lgkmcnt(0)
    v_readfirstlane_b32 s5, v61
    s_barrier
    s_cmp_ge_u32 s5, 256
    s_cbranch_scc1 {EXIT}
    s_lshr_b32 s4, s5, 5
    s_and_b32 s99, s5, 31
    s_cmp_lt_u32 s5, 32
    s_cbranch_scc1 {name}_team
    ''')
    if standalone_team:
        a(f's_branch {EXIT}')
    else:
        tl(a,0,diag)
        a(f'''s_sub_u32 s5, s5, 32
        s_mul_i32 {sH}, s5, 9363
        s_lshr_b32 {sH}, {sH}, 16
        s_mul_i32 s40, {sH}, 7
        s_sub_u32 {sRep}, s5, s40
        s_cmp_eq_u32 {sRep}, 0
        s_cbranch_scc1 {name}_qkv
        s_cmp_ge_u32 {sRep}, 3
        s_cbranch_scc1 {name}_ln''')
        roles.role_init_mod(a,EXIT)
        a(f's_branch {name}_qkv\n{name}_ln:')
        roles.role_ln1(a,EXIT)
        a(f'{name}_qkv:')
        tl(a,1,diag)
        if upto>=2:
            roles.role_qkv(a,EXIT)
        tl(a,2,diag)
        if upto>=4:
            a(f'''s_cmp_lt_u32 {sRep}, {NAB}
            s_cbranch_scc1 {name}_ab
            s_lshl_b32 {sE}, {sH}, 2
            s_add_u32 {sE}, {sE}, {sRep}
            s_sub_u32 {sE}, {sE}, 3
            s_cmp_lt_u32 {sE}, {NR1}
            s_cbranch_scc1 {name}_r1
            s_sub_u32 {sE}, {sE}, {NR1}
            s_cmp_lt_u32 {sE}, 43
            s_cbranch_scc1 {name}_c
            s_sub_u32 {sE}, {sE}, 43
            s_cmp_lt_u32 {sE}, 32
            s_cbranch_scc0 {EXIT}''')
            if upto>=7: roles.role_d(a,EXIT,sE)
            a(f's_branch {name}_fin\n{name}_c:')
            if upto>=6: roles.role_c(a,EXIT,sE)
            a(f's_branch {name}_fin\n{name}_r1:')
            if upto>=5: roles.role_r1(a,EXIT,sE,NR1)
            a(f's_branch {name}_fin\n{name}_ab:')
            roles.role_ab(a,EXIT,NAB)
            a(f'{name}_fin:')
            tl(a,3,diag)
        a(f's_branch {EXIT}')
    a(f'{name}_team:')
    a(f's_mov_b32 {sH}, s5')
    tl(a,0,diag and not standalone_team)
    if upto>=3:
        team3.team_main(a,name+'_t',P,EXIT,tail,diag=P.get('tdiag',False))
    tl(a,3,diag and not standalone_team)
    a(f's_waitcnt vmcnt(0)\n{EXIT}:\ns_endpgm')
    for x in tail: a(x)
    check_waits([x for x in a.items][:a.items.index(f'{name}_team:')],'workers')
    a.fix()
    return a
```

```python
from asmdsl import *
from layout import *
from team import srd, vr, Wpair, S_WS, S_DBG, L_WO, DPP, SPIN
import team as T1m
sH='s20'; sWv='s21'; sRep='s6'; sE='s5'; sCnt='s23'
LOG2E=1.4426950408889634
def dpp(c): return f'{c} row_mask:0xf bank_mask:0xf'
def cvt2(d,s): return [f'v_cvt_pk_bf16_f32 v{d}, v{s}, v{s+1}', f'v_cvt_pk_bf16_f32 v{d+1}, v{s+2}, v{s+3}']
def perm_u(u): return 2*(2*(u&3)+(u>>3))+((u>>2)&1)
def Wd4(X,u,t):
    uu=perm_u(u); b=((uu>>1)*2+t)*8+(uu&1)*4
    return [f'a[{b}:{b+3}]',f'a[{128+b}:{128+b+3}]',f'v[{128+b}:{128+b+3}]'][X]

def poll_ge(a,srdn,off_expr,imm,target,exit_label,vt=61,st='s40'):
    L=a.label('PL'); D=a.label('PD')
    a(f'''s_mov_b32 {sCnt}, 0
    {L}:
    buffer_load_dword v{vt}, off, {srdn}, {off_expr} offset:{imm} sc1
    s_waitcnt vmcnt(0)
    v_readfirstlane_b32 {st}, v{vt}
    s_cmp_ge_u32 {st}, {target}
    s_cbranch_scc1 {D}
    s_sleep 2
    s_add_u32 {sCnt}, {sCnt}, 1
    s_cmp_lt_u32 {sCnt}, {SPIN}
    s_cbranch_scc1 {L}
    s_branch {exit_label}
    {D}:''')

def signal_add(a,srdn,off_expr,imm,vt=61):
    L=a.label('SG')
    a(f'''s_waitcnt vmcnt(0)
    s_barrier
    s_cmp_lg_u32 {sWv}, 0
    s_cbranch_scc1 {L}
    v_mov_b32 v{vt}, 1
    s_mov_b64 exec, 1
    buffer_atomic_add v{vt}, off, {srdn}, {off_expr} offset:{imm}
    s_mov_b64 exec, -1
    {L}:''')

def wave_sum(a,regs,t):
    for sh in (1,2,4,8):
        for r in regs: a(dpp(f'v_add_f32_dpp v{r}, v{r}, v{r} row_ror:{sh}'))
    for sw in ('v_permlane16_swap_b32','v_permlane32_swap_b32'):
        for i,r in enumerate(regs): a(f'v_mov_b32 v{t+i}, v{r}')
        for i,r in enumerate(regs): a(f'{sw} v{r}, v{t+i}')
        for i,r in enumerate(regs): a(f'v_add_f32 v{r}, v{r}, v{t+i}')

def unpack(a,d,s,n):
    for i in range(n):
        a(f'v_and_b32 v{d+2*i+1}, 0xffff0000, v{s+i}\nv_lshlrev_b32 v{d+2*i}, 16, v{s+i}')

def role_init_mod(a,EXIT):
    a(f'''s_sub_u32 s36, {sRep}, 1
    s_lshl_b32 s36, s36, 5
    s_add_u32 s36, s36, {sH}
    s_load_dwordx4 s[84:87], s[0:1], 88      ; c, w_mod
    v_lshlrev_b32 v1, 4, v0                  ; tid*16
    v_mov_b64 v[4:5], -1
    v_mov_b64 v[6:7], -1
    v_mov_b32 v8, 0
    s_lshl_b32 s37, s36, 13
    s_add_u32 s37, s37, {WS_MPUB}
    buffer_store_dwordx4 v[4:7], v1, {S_WS}, s37 offen sc1
    s_add_u32 s37, s37, 4096
    buffer_store_dwordx4 v[4:7], v1, {S_WS}, s37 offen sc1
    v_and_b32 v2, 127, v0
    v_lshlrev_b32 v2, 2, v2
    s_lshl_b32 s37, s36, 9
    buffer_store_dword v8, v2, {S_WS}, s37 offen sc1
    s_waitcnt lgkmcnt(0)''')
    L=a.label('NM')
    srd(a,'s[44:47]','s84','s85',1024); srd(a,'s[48:51]','s86','s87',512*6144)
    a(f'''s_cmp_ge_u32 s36, 48
    s_cbranch_scc1 {L}
    v_lshrrev_b32 v2, 3, v0                  ; k slice
    v_lshlrev_b32 v3, 5, v2
    buffer_load_dwordx4 v[8:11], v3, s[44:47], 0 offen
    buffer_load_dwordx4 v[12:15], v3, s[44:47], 0 offen offset:16
    s_mov_b32 s37, {16*6144}
    v_mul_lo_u32 v3, s37, v2
    v_and_b32 v4, 7, v0
    v_lshlrev_b32 v4, 4, v4
    v_add_u32 v3, v3, v4
    s_lshl_b32 s37, s36, 7''')
    for k in range(16):
        a(f'buffer_load_dwordx4 {vr(64+4*k,4)}, v3, s[48:51], s37 offen\ns_add_u32 s37, s37, 6144')
    a('s_waitcnt vmcnt(16)')
    unpack(a,16,8,8)
    a(f's_mov_b32 s38, {f2u(-LOG2E):#x}')
    for k in range(16): a(f'v_mul_f32 v{32+k}, s38, v{16+k}')
    for k in range(16): a(f'v_exp_f32 v{32+k}, v{32+k}')
    for k in range(16): a(f'v_add_f32 v{32+k}, 1.0, v{32+k}')
    for k in range(16): a(f'v_rcp_f32 v{32+k}, v{32+k}')
    for k in range(16): a(f'v_mul_f32 v{16+k}, v{16+k}, v{32+k}')
    for k in range(8): a(f'v_cvt_pk_bf16_f32 v{8+k}, v{16+2*k}, v{17+2*k}')
    unpack(a,16,8,8)
    for i in range(8): a(f'v_mov_b32 v{32+i}, 0')
    for k in range(16):
        a(f's_waitcnt vmcnt({15-k})')
        unpack(a,40,64+4*k,4)
        for i in range(8): a(f'v_fmac_f32 v{32+i}, v{16+k}, v{40+i}')
    a(f'''v_lshlrev_b32 v2, 5, v0
    ds_write_b128 v2, v[32:35]
    ds_write_b128 v2, v[36:39] offset:16
    s_waitcnt lgkmcnt(0)
    s_barrier
    s_cmp_lg_u32 {sWv}, 0
    s_cbranch_scc1 {L}
    v_lshlrev_b32 v2, 2, v0''')
    for k in range(32): a(f'ds_read_b32 v{64+k}, v2 offset:{k*256}')
    a('s_waitcnt lgkmcnt(0)')
    for st in (16,8,4,2,1):
        for k in range(st): a(f'v_add_f32 v{64+k}, v{64+k}, v{64+k+st}')
    a(f'''v_cvt_pk_bf16_f32 v64, v64, v64
    v_lshlrev_b32 v64, 16, v64
    s_lshr_b32 s37, s36, 3
    s_cmp_eq_u32 s37, 1
    s_cselect_b32 s38, 1.0, 0
    s_cmp_eq_u32 s37, 4
    s_cselect_b32 s38, 1.0, s38
    v_add_f32 v64, s38, v64
    v_cvt_pk_bf16_f32 v64, v64, v64
    v_lshlrev_b32 v64, 16, v64
    s_lshl_b32 s37, s36, 8
    s_add_u32 s37, s37, {WS_MOD}
    buffer_store_dword v64, v2, {S_WS}, s37 offen sc1
    {L}:''')
    signal_add(a,S_DBG,'0',D_INIT)

def role_ln1(a,EXIT):
    a(f'''s_load_dwordx2 s[84:85], s[0:1], 0
    s_lshl_b32 s36, {sH}, 2
    s_add_u32 s36, s36, {sRep}
    s_sub_u32 s36, s36, 3
    v_lshlrev_b32 v1, 4, v60
    s_lshl_b32 s37, s36, 14
    s_lshl_b32 s38, {sWv}, 12
    s_add_u32 s37, s37, s38
    s_waitcnt lgkmcnt(0)''')
    srd(a,'s[44:47]','s84','s85',2048*1024)
    for r in range(4): a(f'buffer_load_dwordx4 {vr(8+4*r,4)}, v1, s[44:47], s37 offen offset:{r*1024}')
    a('s_waitcnt vmcnt(0)')
    X=64
    for r in range(4): unpack(a,X+8*r,8+4*r,4)
    S=[24,25,26,27]
    for r in range(4):
        b=X+8*r
        a(f'v_add_f32 v{S[r]}, v{b}, v{b+1}')
        for i in range(2,8): a(f'v_add_f32 v{S[r]}, v{S[r]}, v{b+i}')
    wave_sum(a,S,28)
    a(f's_mov_b32 s38, {f2u(1/512):#x}')
    for r in range(4): a(f'v_mul_f32 v{S[r]}, s38, v{S[r]}')
    for r in range(4):
        for i in range(8): a(f'v_sub_f32 v{X+8*r+i}, v{X+8*r+i}, v{S[r]}')
    for r in range(4):
        b=X+8*r
        a(f'v_mul_f32 v{S[r]}, v{b}, v{b}')
        for i in range(1,8): a(f'v_fmac_f32 v{S[r]}, v{b+i}, v{b+i}')
    wave_sum(a,S,28)
    a(f'v_mov_b32 v28, {f2u(1e-5):#x}')
    for r in range(4): a(f'v_fma_f32 v{S[r]}, v{S[r]}, s38, v28')
    for r in range(4): a(f'v_rsq_f32 v{S[r]}, v{S[r]}')
    for r in range(4):
        for i in range(8): a(f'v_mul_f32 v{X+8*r+i}, v{X+8*r+i}, v{S[r]}')
    poll_ge(a,S_DBG,'0',D_INIT,64,EXIT)
    a(f'''v_lshlrev_b32 v2, 5, v60
    s_mov_b32 s38, {WS_MOD}
    buffer_load_dwordx4 v[32:35], v2, {S_WS}, s38 offen sc1
    buffer_load_dwordx4 v[36:39], v2, {S_WS}, s38 offen offset:16 sc1
    buffer_load_dwordx4 v[40:43], v2, {S_WS}, s38 offen offset:2048 sc1
    buffer_load_dwordx4 v[44:47], v2, {S_WS}, s38 offen offset:2064 sc1
    v_lshrrev_b32 v3, 2, v60
    v_lshlrev_b32 v3, 10, v3
    v_and_b32 v4, 3, v60
    v_lshlrev_b32 v4, 8, v4
    v_add_u32 v3, v3, v4
    s_lshl_b32 s37, s36, 14
    s_lshl_b32 s38, {sWv}, 6
    s_add_u32 s37, s37, s38
    s_add_u32 s37, s37, {WS_H}
    s_waitcnt vmcnt(0)''')
    for r in range(4):
        for i in range(8): a(f'v_fma_f32 v{X+8*r+i}, v{X+8*r+i}, v{40+i}, v{32+i}')
        for i in range(4): a(f'v_cvt_pk_bf16_f32 v{8+4*r+i}, v{X+8*r+2*i}, v{X+8*r+2*i+1}')
        a(f'buffer_store_dwordx4 {vr(8+4*r,4)}, v3, {S_WS}, s37 offen offset:{r*16} sc1')
    signal_add(a,S_DBG,'0',D_LN)

def role_qkv(a,EXIT):
    a('s_load_dwordx4 s[84:87], s[0:1], 16\ns_load_dwordx2 s[88:89], s[0:1], 32\ns_waitcnt lgkmcnt(0)')
    T1m.load_weights(a,[84,86,88],3,False,None,perm=True)
    poll_ge(a,S_DBG,'0',D_LN,128,EXIT)
    sSeg='s36'; sBuf='s37'; sPrev='s38'
    LOOP=a.label('QL'); END=a.label('QE')
    a(f'''v_lshlrev_b32 v1, 4, v60
    s_lshl_b32 s39, {sWv}, 13
    v_add_u32 v2, s39, v1
    s_lshl_b32 s40, {sH}, 14
    s_lshl_b32 s41, {sWv}, 12
    s_add_u32 s40, s40, s41
    v_add_u32 v3, s40, v1
    s_lshr_b32 s40, s40, 1
    v_add_u32 v4, s40, v1                    ; Q voffset
    v_mov_b32 v5, 1
    s_mov_b32 {sSeg}, {sRep}
    s_mov_b32 {sBuf}, 0
    s_mov_b32 {sPrev}, -1
    s_barrier''')
    def dma(seg,buf):
        a(f's_lshl_b32 s40, {seg}, 15\ns_add_u32 s40, s40, {WS_H}\ns_add_u32 s41, {buf}, s39')
        for i in range(8):
            if i%4==0: a(f's_add_u32 m0, s41, {(i//4)*4096}')
            if i==4: a('s_add_u32 s40, s40, 4096')
            a(f'buffer_load_dwordx4 v2, {S_WS}, s40 offen offset:{(i%4)*1024} sc1 lds')
    dma(sSeg,sBuf)
    a('s_waitcnt vmcnt(0)')
    a(f'{LOOP}:')
    a('s_waitcnt vmcnt(6)\ns_barrier')
    a(f'''s_add_u32 s42, {sSeg}, 7
    s_min_u32 s42, s42, 63
    s_xor_b32 s43, {sBuf}, 32768
    v_add_u32 v6, {sBuf}, v1''')
    dma('s42','s43')
    HB=[8,16]
    AQ=64; AK=80; AV=96
    def rd(ks):
        b=HB[ks&1]
        a(f'ds_read_b128 {vr(b,4)}, v6 offset:{ks*1024}\nds_read_b128 {vr(b+4,4)}, v6 offset:{16384+ks*1024}')
    rd(0)
    for ks in range(16):
        b=HB[ks&1]
        if ks<15: rd(ks+1); a('s_waitcnt lgkmcnt(2)')
        else: a('s_waitcnt lgkmcnt(0)')
        for X,A in ((1,AK),(2,AV),(0,AQ)):
            for t in range(2):
                for x in range(2):
                    d=vr(A+8*x+4*t,4) if X!=2 else vr(A+8*t+4*x,4)
                    c='0' if ks==0 else d
                    if X!=2: a(f'v_mfma_f32_16x16x32_bf16 {d}, {Wd4(X,ks,t)}, {vr(b+4*x,4)}, {c}')
                    else: a(f'v_mfma_f32_16x16x32_bf16 {d}, {vr(b+4*x,4)}, {Wd4(X,ks,t)}, {c}')
        if ks==7:
            L=a.label('QF')
            a(f'''s_waitcnt vmcnt(8)
            s_barrier
            s_cmp_lg_u32 {sWv}, 0
            s_cbranch_scc1 {L}
            s_cmp_eq_u32 {sPrev}, -1
            s_cbranch_scc1 {L}
            s_mov_b64 exec, 1
            buffer_store_dword v5, off, {S_WS}, {sPrev} sc1
            s_mov_b64 exec, -1
            {L}:''')
    a(f's_lshl_b32 s40, {sSeg}, 19\ns_add_u32 s40, s40, {WS_KV}\ns_lshl_b32 s41, {sSeg}, 18\ns_add_u32 s41, s41, {WS_Q}')
    O=24
    for i,(A,vo,so,off) in enumerate([(AK,3,'s40',0),(AK+8,3,'s40',1024),(AV,3,'s40',2048),(AV+8,3,'s40',3072),(AQ,4,'s41',0),(AQ+8,4,'s41',1024)]):
        o=O+4*i
        for x in cvt2(o,A)+cvt2(o+2,A+4): a(x)
        a(f'buffer_store_dwordx4 {vr(o,4)}, v{vo}, {S_WS}, {so} offen offset:{off} sc1')
    a(f'''s_lshl_b32 {sPrev}, {sH}, 8
    s_lshl_b32 s40, {sSeg}, 2
    s_add_u32 {sPrev}, {sPrev}, s40
    s_add_u32 {sSeg}, {sSeg}, 7
    s_xor_b32 {sBuf}, {sBuf}, 32768
    s_cmp_lt_u32 {sSeg}, 64
    s_cbranch_scc1 {LOOP}
    s_waitcnt vmcnt(0)
    s_barrier
    s_cmp_lg_u32 {sWv}, 0
    s_cbranch_scc1 {END}
    s_mov_b64 exec, 1
    buffer_store_dword v5, off, {S_WS}, {sPrev} sc1
    s_mov_b64 exec, -1
    {END}:''')

def lane_consts(a):
    a(f"""v_and_b32 v61, 15, v60
    v_lshrrev_b32 v62, 4, v60
    v_bfe_u32 v63, v60, 2, 2
    v_and_b32 v64, 3, v60
    s_lshl_b32 s42, {sWv}, 15
    s_add_u32 s42, s42, {L_WO}""")

def role_ab(a,EXIT,NREPL):
    from team import Wreg
    a('s_load_dwordx2 s[84:85], s[0:1], 40\ns_waitcnt lgkmcnt(0)\ns_barrier')
    srd(a,'s[44:47]','s84','s85',4194304)
    lane_consts(a)
    a(f"""v_lshlrev_b32 v65, 10, v62
    v_lshlrev_b32 v66, 4, v61
    v_lshlrev_b32 v67, 5, v62
    v_xor_b32 v66, v66, v67
    s_lshl_b32 s40, {sH}, 17
    s_lshl_b32 s41, {sWv}, 8
    s_add_u32 s40, s40, s41
    v_add3_u32 v65, v65, v66, s40
    v_xor_b32 v66, 128, v65""")
    for d in range(32):
        a(f's_add_u32 m0, s42, {d*1024}\ns_mov_b32 s43, {d*4096}\nbuffer_load_dwordx4 v{65+(d&1)}, s[44:47], s43 offen lds')
    a(f"""v_lshlrev_b32 v67, 2, v62
    v_add_u32 v67, v67, v63              ; row = 4g+r
    v_and_b32 v68, 7, v67
    v_lshlrev_b32 v68, 5, v68
    v_lshlrev_b32 v67, 8, v67
    v_lshlrev_b32 v69, 3, v64
    v_add3_u32 v67, v67, v68, v69
    v_add_u32 v67, s42, v67""")
    for ks in range(4):
        a(f's_waitcnt vmcnt({24-8*ks})')
        for t in range(8):
            a(f'v_xor_b32 v68, {t*32}, v67')
            for jh in range(2):
                b=(ks*8+t)*4+2*jh
                a(f'ds_read_b64_tr_b16 a[{b}:{b+1}], v68 offset:{ks*8192+jh*4096}')
    IDX=0; L16=1; SELT=2; VQ=4; VK=5; VP=6; VF=7
    Qf=8; K0=24; K1=40; ONES=56; MEM=64; Vf=64; KMf=80; KA=96; VA=104; VMf=96; SM=112; S0=116; S1=120; TT=124; PX=104; PM=108
    LK=0; LV=4096; LO=8192
    sSeg='s36'; sQt='s37'; sEh='s38'; sC='s39'
    a(f"""v_mov_b32 v{IDX}, 0x4444
    v_mov_b32 v65, 0xeeee
    v_cmp_lt_u32 vcc, 7, v61
    v_cndmask_b32 v{IDX}, v{IDX}, v65, vcc
    v_lshlrev_b32 v{L16}, 4, v60
    s_and_b32 {sQt}, {sWv}, 1
    s_lshr_b32 {sEh}, {sWv}, 1
    s_lshl_b32 s40, {sH}, 13
    s_lshl_b32 s41, {sQt}, 10
    s_add_u32 s40, s40, s41
    v_add_u32 v{VQ}, s40, v{L16}
    s_lshl_b32 s40, {sH}, 14
    v_add_u32 v{VK}, s40, v{L16}
    v_lshlrev_b32 v65, 10, v61
    v_lshlrev_b32 v66, 4, v62
    s_lshl_b32 s40, {sH}, 15
    s_lshl_b32 s41, {sWv}, 8
    s_add_u32 s40, s40, s41
    v_add3_u32 v{VP}, v65, v66, s40
    v_and_b32 v65, 7, v60
    v_lshlrev_b32 v{VF}, 10, v65
    v_and_b32 v66, 7, v61
    v_and_b32 v67, 1, v62
    v_lshlrev_b32 v67, 2, v67
    v_sub_u32 v66, v66, v67
    v_mov_b32 v67, 0x3f80
    v_mov_b32 v68, 0x3f800000
    s_mov_b32 {sC}, {f2u(SCALE_LOG2E):#x}
    s_mov_b32 {sSeg}, {sRep}""")
    for rg in range(2):
        a(f"""v_cmp_eq_u32 vcc, {2*rg}, v66
        v_cndmask_b32 v{SELT+rg}, 0, v67, vcc
        v_cmp_eq_u32 vcc, {2*rg+1}, v66
        v_cndmask_b32 v{SELT+rg}, v{SELT+rg}, v68, vcc""")
    for rg in range(4): a(f'v_mov_b32 v{ONES+rg}, 0x3f803f80')
    a('v_lshlrev_b32 v65, 2, v62')
    for r in range(4):
        a(f'v_add_u32 v66, {r}, v65\nv_cmp_le_u32 s[{48+2*r}:{49+2*r}], v66, v61')
    a('s_waitcnt lgkmcnt(0)')
    LOOP=a.label('AL')
    a(f'{LOOP}:')
    a(f's_lshl_b32 s40, {sH}, 8\ns_lshl_b32 s41, {sSeg}, 2\ns_add_u32 s41, s41, s40')
    poll_ge(a,S_WS,'s41',0,1,EXIT,vt=TT)
    a(f's_lshl_b32 s56, {sSeg}, 18\ns_add_u32 s56, s56, {WS_Q}\ns_lshl_b32 s57, {sSeg}, 19\ns_add_u32 s57, s57, {WS_KV}')
    for w2 in range(4):
        if w2==2: a('s_add_u32 s56, s56, 4096')
        a(f'buffer_load_dwordx4 {vr(Qf+4*w2,4)}, v{VQ}, {S_WS}, s56 offen offset:{(w2&1)*2048} sc1')
    for w2 in range(4):
        a(f's_add_u32 s58, s57, {w2*4096}')
        a(f'buffer_load_dwordx4 {vr(K0+4*w2,4)}, v{VK}, {S_WS}, s58 offen sc1\nbuffer_load_dwordx4 {vr(K1+4*w2,4)}, v{VK}, {S_WS}, s58 offen offset:1024 sc1')
    for i in range(0,16,2): a(f'v_mov_b64 {vr(KA+i,2)}, 0')
    L=a.label('MP'); L2=a.label('MF'); D=a.label('MD')
    a(f"""s_lshl_b32 s58, {sSeg}, 13
    s_add_u32 s58, s58, {WS_MPUB}
    s_add_u32 s59, s58, 4096
    s_mov_b32 {sCnt}, 0
    {L}:
    s_add_u32 {sCnt}, {sCnt}, 1
    s_cmp_ge_u32 {sCnt}, {SPIN}
    s_cbranch_scc1 {EXIT}
    buffer_load_dword v{TT}, v{VF}, {S_WS}, s58 offen sc1
    s_waitcnt vmcnt(0)
    v_cmp_eq_u32 vcc, -1, v{TT}
    s_cbranch_vccz {L2}
    s_sleep 4
    s_branch {L}
    {L2}:""")
    for k in range(8): a(f'buffer_load_dwordx4 {vr(MEM+4*k,4)}, v{L16}, {S_WS}, {"s58" if k<4 else "s59"} offen offset:{(k&3)*1024} sc1')
    a('s_waitcnt vmcnt(0)')
    a(f'v_max3_u32 v{TT}, v{MEM}, v{MEM+1}, v{MEM+2}')
    for k in range(3,31,2): a(f'v_max3_u32 v{TT}, v{TT}, v{MEM+k}, v{MEM+k+1}')
    a(f'v_max_u32 v{TT}, v{TT}, v{MEM+31}\nv_cmp_eq_u32 vcc, -1, v{TT}\ns_cbranch_vccnz {L}')
    for X,A in ((1,KA),(2,VA)):
        for ks in range(8):
            for t in range(2): a(f'v_smfmac_f32_16x16x64_bf16 {vr(A+4*t,4)}, {vr(MEM+4*ks,4)}, {Wreg(X,ks,t)}, v{IDX}')
    a(f's_lshl_b32 s58, {sEh}, 13\ns_add_u32 s58, s58, s57\ns_add_u32 s59, s58, 4096')
    for i in range(4): a(f'buffer_load_dwordx4 {vr(Vf+4*i,4)}, v{VK}, {S_WS}, {"s58" if i<2 else "s59"} offen offset:{2048+(i&1)*1024} sc1')
    for x in cvt2(TT,KA)+cvt2(TT+2,KA+4): a(x)
    for t in range(2): a(f'v_mfma_f32_16x16x16_bf16 {vr(SM+4*t,4)}, {vr(TT+2*t,2)}, {vr(SELT,2)}, 0')
    for x in cvt2(KA,VA)+cvt2(KA+2,VA+4): a(x)
    a(f's_lshl_b32 s40, {sWv}, 10\nv_add_u32 v{KA+4}, s40, v{L16}')
    a(f'ds_write_b128 v{KA+4}, {vr(KA,4)} offset:{LV}')
    for x in cvt2(TT,SM)+cvt2(TT+2,SM+4): a(x)
    a(f'ds_write_b128 v{KA+4}, {vr(TT,4)} offset:{LK}')
    a('s_waitcnt lgkmcnt(0)\ns_barrier')
    for w2 in range(4): a(f'ds_read_b128 {vr(KMf+4*w2,4)}, v{L16} offset:{LK+w2*1024}')
    a(f's_lshl_b32 s40, {sEh}, 11\nv_add_u32 v{TT}, s40, v{L16}')
    for i in range(2): a(f'ds_read_b128 {vr(VMf+4*i,4)}, v{TT} offset:{LV+i*1024}')
    for w2 in range(4):
        for S,K in ((S0,K0),(S1,K1)):
            a(f'v_mfma_f32_16x16x32_bf16 {vr(S,4)}, {vr(K+4*w2,4)}, {vr(Qf+4*w2,4)}, {"0" if w2==0 else vr(S,4)}')
    a('s_waitcnt lgkmcnt(2)')
    for w2 in range(4): a(f'v_mfma_f32_16x16x32_bf16 {vr(SM,4)}, {vr(KMf+4*w2,4)}, {vr(Qf+4*w2,4)}, {"0" if w2==0 else vr(SM,4)}')
    Lq=a.label('Q1'); Lm=a.label('QM')
    a(f'v_mov_b32 v{TT}, 0xff800000\ns_cmp_lg_u32 {sQt}, 0\ns_cbranch_scc1 {Lq}')
    for r in range(4): a(f'v_cndmask_b32 v{S0+r}, v{TT}, v{S0+r}, s[{48+2*r}:{49+2*r}]\nv_mov_b32 v{S1+r}, v{TT}')
    a(f's_branch {Lm}\n{Lq}:')
    for r in range(4): a(f'v_cndmask_b32 v{S1+r}, v{TT}, v{S1+r}, s[{48+2*r}:{49+2*r}]')
    a(f'{Lm}:')
    MX=TT+1
    a(f'v_max3_f32 v{MX}, v{S0}, v{S0+1}, v{S0+2}')
    for k in range(S0+3,S1+3,2): a(f'v_max3_f32 v{MX}, v{MX}, v{k}, v{k+1}')
    a(f'v_max3_f32 v{MX}, v{MX}, v{S1+3}, v{SM}\nv_max3_f32 v{MX}, v{MX}, v{SM+1}, v{SM+2}\nv_max_f32 v{MX}, v{MX}, v{SM+3}')
    for sw in ('v_permlane16_swap_b32','v_permlane32_swap_b32'):
        a(f'v_mov_b32 v{TT+2}, v{MX}\n{sw} v{MX}, v{TT+2}\nv_max_f32 v{MX}, v{MX}, v{TT+2}')
    a(f'v_mul_f32 v{MX}, {sC}, v{MX}')
    for k in range(SM,SM+12): a(f'v_fma_f32 v{k}, v{k}, {sC}, -v{MX}')
    for k in range(SM,SM+12): a(f'v_exp_f32 v{k}, v{k}')
    for x in cvt2(PX,S0)+cvt2(PX+2,S1)+cvt2(PM,SM): a(x)
    a('s_waitcnt vmcnt(0) lgkmcnt(0)')
    LX=SM; LM=S0; OA=Qf
    a(f'v_mfma_f32_16x16x32_bf16 {vr(LX,4)}, {vr(ONES,4)}, {vr(PX,4)}, 0')
    a(f'v_mfma_f32_16x16x16_bf16 {vr(LM,4)}, {vr(ONES,2)}, {vr(PM,2)}, 0')
    for i in range(4): a(f'v_mfma_f32_16x16x32_bf16 {vr(OA+4*i,4)}, {vr(Vf+4*i,4)}, {vr(PX,4)}, 0')
    for i in range(4): a(f'v_mfma_f32_16x16x16_bf16 {vr(OA+4*i,4)}, {vr(VMf+2*i,2)}, {vr(PM,2)}, {vr(OA+4*i,4)}')
    a(f'v_fma_f32 v{TT}, v{LM}, 0.5, v{LX}\nv_rcp_f32 v{TT}, v{TT}')
    a(f's_lshl_b32 s40, {sQt}, 12\ns_lshl_b32 s41, {sEh}, 11\ns_add_u32 s40, s40, s41\nv_add_u32 v{TT+2}, s40, v{L16}')
    for i in range(8): a(f'v_pk_mul_f32 {vr(OA+2*i,2)}, {vr(OA+2*i,2)}, {vr(TT,2)} op_sel_hi:[1,0]')
    for i in range(2):
        for x in cvt2(24+4*i,OA+8*i)+cvt2(26+4*i,OA+8*i+4): a(x)
        a(f'ds_write_b128 v{TT+2}, {vr(24+4*i,4)} offset:{LO+i*1024}')
    a('s_waitcnt lgkmcnt(0)\ns_barrier')
    OF=24
    for ks in range(4):
        for q in range(2): a(f'ds_read_b128 {vr(OF+8*ks+4*q,4)}, v{L16} offset:{LO+q*4096+ks*1024}')
    for ks in range(4):
        a(f's_waitcnt lgkmcnt({6-2*ks})')
        for t in range(8):
            for q in range(2):
                d=vr(64+32*q+4*t,4); b=(ks*8+t)*4
                a(f'v_mfma_f32_16x16x32_bf16 {d}, a[{b}:{b+3}], {vr(OF+8*ks+4*q,4)}, {"0" if ks==0 else d}')
    a(f's_lshl_b32 s56, {sSeg}, 20\ns_add_u32 s56, s56, {WS_P1}\ns_add_u32 s57, s56, 16384')
    for q in range(2):
        for p in range(4):
            o=8+4*((q*4+p)%4)
            b=64+32*q+8*p
            for x in cvt2(o,b)+cvt2(o+2,b+4): a(x)
            a(f'buffer_store_dwordx4 {vr(o,4)}, v{VP}, {S_WS}, {"s56" if q==0 else "s57"} offen offset:{p*64} sc1')
    a(f's_lshl_b32 s40, {sSeg}, 7')
    signal_add(a,S_WS,'s40',C_P1-4096 if False else 0,vt=TT) if False else None
    a(f's_add_u32 s40, s40, {C_P1}')
    signal_add(a,S_WS,'s40',0,vt=TT)
    a(f's_add_u32 {sSeg}, {sSeg}, {NREPL}\ns_cmp_lt_u32 {sSeg}, 64\ns_cbranch_scc1 {LOOP}')

def role_r1(a,EXIT,sIdx,NCU):
    a('s_load_dwordx2 s[84:85], s[0:1], 0\ns_waitcnt lgkmcnt(0)')
    srd(a,'s[44:47]','s84','s85',2048*1024)
    lane_consts(a)
    SA=8; SB=12; VL=1; VX=2; VH=3; GA=16; CB=24; SBv=32
    sT='s36'
    a(f"""v_mov_b32 v65, 0x3f80
    v_mov_b32 v66, 0x3f800000
    v_subrev_u32 v67, 8, v61""")
    for base,src in ((SA,61),(SB,67)):
        for rg in range(4):
            a(f"""v_cmp_eq_u32 vcc, {2*rg}, v{src}
            v_cndmask_b32 v{base+rg}, 0, v65, vcc
            v_cmp_eq_u32 vcc, {2*rg+1}, v{src}
            v_cndmask_b32 v{base+rg}, v{base+rg}, v66, vcc""")
    a(f"""v_lshlrev_b32 v65, 15, v62
    v_lshlrev_b32 v66, 4, v61
    s_lshl_b32 s40, {sWv}, 10
    v_add3_u32 v{VL}, v65, v66, s40
    v_lshrrev_b32 v65, 1, v62
    v_lshlrev_b32 v65, 7, v65
    v_lshrrev_b32 v66, 2, v61
    v_lshlrev_b32 v66, 5, v66
    v_and_b32 v67, 1, v62
    v_lshlrev_b32 v67, 4, v67
    v_add3_u32 v65, v65, v66, v67
    v_lshlrev_b32 v66, 2, v64
    v_add_u32 v65, v65, v66              ; col
    v_lshlrev_b32 v66, 1, v65
    v_add_u32 v{VX}, s40, v66
    v_lshrrev_b32 v66, 5, v65
    v_lshlrev_b32 v66, 10, v66
    v_bfe_u32 v67, v65, 3, 2
    v_lshlrev_b32 v67, 8, v67
    v_and_b32 v68, 4, v65
    v_lshlrev_b32 v68, 1, v68
    v_add3_u32 v66, v66, v67, v68
    s_lshl_b32 s40, {sWv}, 4
    v_add_u32 v{VH}, s40, v66
    v_lshlrev_b32 v65, 2, v65
    s_mov_b32 s40, {WS_MOD+2*2048}
    s_mov_b32 s41, {WS_MOD+4*2048}
    s_mov_b32 s43, {WS_MOD+3*2048}""")
    for i,(reg,so) in enumerate(((GA,'s40'),(CB,'s41'),(SBv,'s43'))):
        for ac in range(2): a(f'buffer_load_dwordx4 {vr(reg+4*ac,4)}, v65, {S_WS}, {so} offen offset:{ac*1024} sc1')
    a(f's_mov_b32 {sT}, {sIdx}')
    LOOP=a.label('RL')
    a(f'{LOOP}:')
    a(f"""s_lshl_b32 s48, {sT}, 12
    buffer_load_dwordx2 v[40:41], v{VX}, s[44:47], s48 offen
    buffer_load_dwordx2 v[42:43], v{VX}, s[44:47], s48 offen offset:512
    s_lshr_b32 s49, {sT}, 3
    s_lshl_b32 s50, s49, 7
    s_add_u32 s50, s50, {C_P1}""")
    poll_ge(a,S_WS,'s50',0,32,EXIT,vt=44)
    a(f"""s_lshl_b32 s51, s49, 20
    s_and_b32 s52, {sT}, 7
    s_lshl_b32 s52, s52, 12
    s_add_u32 s51, s51, s52
    s_add_u32 s51, s51, {WS_P1}""")
    D=64
    AC=[48,52]
    seq=[(l,b) for l in range(8) for b in range(4)]
    def ld(i):
        l,b=seq[i]
        if b==0 and l: a(f's_add_u32 s51, s51, {4*32768}')
        a(f'buffer_load_dwordx4 {vr(D+4*(i%16),4)}, v{VL}, {S_WS}, s51 offen offset:{b*256} sc1')
    for i in range(16): ld(i)
    for i in range(32):
        l,b=seq[i]
        a(f's_waitcnt vmcnt({min(15,31-i)})')
        ac=vr(AC[b>>1],4)
        a(f'v_mfma_f32_16x16x32_bf16 {ac}, {vr(SB if b&1 else SA,4)}, {vr(D+4*(i%16),4)}, {"0" if (l==0 and not b&1) else ac}')
        if i+16<32: ld(i+16)
    unpack(a,56,40,4)
    for i in range(8): a(f'v_fma_f32 v{56+i}, v{48+i}, v{GA+i}, v{56+i}')
    for i in range(4): a(f'v_cvt_pk_bf16_f32 v{40+i}, v{56+2*i}, v{57+2*i}')
    a(f's_add_u32 s48, s48, {WS_X1}')
    a(f'buffer_store_dwordx2 v[40:41], v{VX}, {S_WS}, s48 offen sc1\nbuffer_store_dwordx2 v[42:43], v{VX}, {S_WS}, s48 offen offset:512 sc1')
    unpack(a,56,40,4)
    a('v_add_f32 v44, v56, v57')
    for i in range(2,8): a(f'v_add_f32 v44, v44, v{56+i}')
    wave_sum(a,[44],45)
    a(f's_mov_b32 s52, {f2u(1/512):#x}\nv_mul_f32 v44, s52, v44')
    for i in range(8): a(f'v_sub_f32 v{56+i}, v{56+i}, v44')
    a('v_mul_f32 v44, v56, v56')
    for i in range(1,8): a(f'v_fmac_f32 v44, v{56+i}, v{56+i}')
    wave_sum(a,[44],45)
    a(f'v_mov_b32 v45, {f2u(1e-5):#x}\nv_fma_f32 v44, v44, s52, v45\nv_rsq_f32 v44, v44')
    for i in range(8): a(f'v_mul_f32 v{56+i}, v{56+i}, v44')
    for i in range(8): a(f'v_fma_f32 v{56+i}, v{56+i}, v{CB+i}, v{SBv+i}')
    for i in range(4): a(f'v_cvt_pk_bf16_f32 v{44+i}, v{56+2*i}, v{57+2*i}')
    a(f"""s_lshr_b32 s52, {sT}, 2
    s_lshl_b32 s52, s52, 14
    s_and_b32 s53, {sT}, 3
    s_lshl_b32 s53, s53, 6
    s_add_u32 s52, s52, s53
    s_add_u32 s52, s52, {WS_H2}
    s_add_u32 s53, s52, 8192
    buffer_store_dwordx2 v[44:45], v{VH}, {S_WS}, s52 offen sc1
    buffer_store_dwordx2 v[46:47], v{VH}, {S_WS}, s53 offen sc1
    s_add_u32 s50, s50, {C_H2-C_P1}""")
    signal_add(a,S_WS,'s50',0,vt=48)
    a(f's_add_u32 {sT}, {sT}, {NCU}\ns_cmp_lt_u32 {sT}, 512\ns_cbranch_scc1 {LOOP}')

def role_c(a,EXIT,sIdx):
    a('s_load_dwordx4 s[84:87], s[0:1], 64\ns_waitcnt lgkmcnt(0)\ns_barrier')
    srd(a,'s[44:47]','s84','s85',512*2752); srd(a,'s[48:51]','s86','s87',512*2752)
    lane_consts(a)
    a(f"""v_lshrrev_b32 v65, 1, v60
    v_mul_u32_u24 v65, 2752, v65
    v_and_b32 v66, 1, v60
    v_lshlrev_b32 v66, 4, v66
    s_lshl_b32 s40, {sIdx}, 6
    s_lshr_b32 s41, {sWv}, 1
    s_lshl_b32 s41, s41, 5
    s_add_u32 s40, s40, s41
    v_add3_u32 v65, v65, v66, s40""")
    for d in range(32):
        a(f's_add_u32 m0, s42, {d*1024}\ns_mov_b32 s43, {(d%16)*32*2752}\nbuffer_load_dwordx4 v65, {"s[44:47]" if d<16 else "s[48:51]"}, s43 offen lds')
    a(f"""v_lshlrev_b32 v66, 3, v62
    v_add_u32 v66, v66, v63
    v_lshlrev_b32 v66, 5, v66
    v_lshlrev_b32 v67, 3, v64
    v_add3_u32 v66, v66, v67, s42""")
    for d in range(32):
        if d%4==0: a(f's_waitcnt vmcnt({28-d})')
        for jh in range(2): a(f'ds_read_b64_tr_b16 a[{4*d+2*jh}:{4*d+2*jh+1}], v66 offset:{d*1024+jh*128}')
    sSeg='s36'
    a(f"""v_lshlrev_b32 v1, 4, v60
    s_lshl_b32 s39, {sWv}, 13
    v_add_u32 v2, s39, v1
    s_and_b32 s40, {sWv}, 1
    s_lshl_b32 s41, s40, 14
    v_add_u32 v3, s41, v1
    s_mul_i32 s40, s40, {43*1024}
    s_lshl_b32 s41, {sIdx}, 10
    s_add_u32 s40, s40, s41
    s_lshr_b32 s41, {sWv}, 1
    s_lshl_b32 s41, s41, 3
    s_add_u32 s40, s40, s41
    v_add_u32 v4, s40, v1
    s_mov_b32 s52, {f2u(-2*0.7978845608028654*LOG2E):#x}
    v_mov_b32 v5, {f2u(-2*0.7978845608028654*0.044715*LOG2E):#x}
    s_mov_b32 {sSeg}, 0
    s_waitcnt lgkmcnt(0)""")
    LOOP=a.label('CL')
    a(f'{LOOP}:')
    a(f's_lshl_b32 s50, {sSeg}, 7\ns_add_u32 s50, s50, {C_H2}')
    poll_ge(a,S_WS,'s50',0,8,EXIT,vt=6)
    a(f's_lshl_b32 s40, {sSeg}, 15\ns_add_u32 s40, s40, {WS_H2}')
    for i in range(8):
        if i%4==0: a(f's_add_u32 m0, s39, {(i//4)*4096}')
        if i==4: a('s_add_u32 s40, s40, 4096')
        a(f'buffer_load_dwordx4 v2, {S_WS}, s40 offen offset:{(i%4)*1024} sc1 lds')
    a('s_waitcnt vmcnt(0)\ns_barrier')
    for ks in range(16): a(f'ds_read_b128 {vr(64+4*ks,4)}, v3 offset:{ks*1024}') if ks<15 else None
    for ks in range(16):
        if ks==1: a(f'ds_read_b128 {vr(64+60,4)}, v3 offset:{15*1024}')
        a(f's_waitcnt lgkmcnt({14 if ks==0 else 15-ks})')
        for m,d in ((0,8),(1,12)):
            a(f'v_mfma_f32_16x16x32_bf16 {vr(d,4)}, a[{64*m+4*ks}:{64*m+4*ks+3}], {vr(64+4*ks,4)}, {"0" if ks==0 else vr(d,4)}')
    for r in range(4): a(f'v_mul_f32 v{16+r}, v{8+r}, v{8+r}')
    for r in range(4): a(f'v_fma_f32 v{16+r}, v{16+r}, v5, s52')
    for r in range(4): a(f'v_mul_f32 v{16+r}, v{16+r}, v{8+r}')
    for r in range(4): a(f'v_exp_f32 v{16+r}, v{16+r}')
    for r in range(4): a(f'v_mul_f32 v{8+r}, v{8+r}, v{12+r}')
    for r in range(4): a(f'v_add_f32 v{16+r}, 1.0, v{16+r}')
    for r in range(4): a(f'v_rcp_f32 v{16+r}, v{16+r}')
    a('s_nop 0')
    for r in range(4): a(f'v_mul_f32 v{8+r}, v{8+r}, v{16+r}')
    for x in cvt2(12,8): a(x)
    a(f's_mul_i32 s40, {sSeg}, {G_SEG}\ns_add_u32 s40, s40, {WS_G}\nbuffer_store_dwordx2 v[12:13], v4, {S_WS}, s40 offen sc1')
    a(f's_add_u32 s50, s50, {C_G-C_H2}')
    signal_add(a,S_WS,'s50',0,vt=6)
    a(f's_add_u32 {sSeg}, {sSeg}, 1\ns_cmp_lt_u32 {sSeg}, 64\ns_cbranch_scc1 {LOOP}')

def role_d(a,EXIT,sIdx):
    a('s_load_dwordx2 s[84:85], s[0:1], 80\ns_load_dwordx2 s[86:87], s[0:1], 104\ns_waitcnt lgkmcnt(0)\ns_barrier')
    srd(a,'s[44:47]','s84','s85',1376*1024); srd(a,'s[48:51]','s86','s87',2048*1024)
    lane_consts(a)
    sDu='s37'; sSeg='s36'
    a(f"""s_and_b32 {sDu}, {sIdx}, 15
    s_lshr_b32 {sSeg}, {sIdx}, 4
    v_lshrrev_b32 v65, 2, v60
    v_lshlrev_b32 v65, 10, v65
    v_lshlrev_b32 v66, 4, v64
    s_mul_i32 s40, {sWv}, {11*32*1024}
    s_lshl_b32 s41, {sDu}, 6
    s_add_u32 s40, s40, s41
    v_add3_u32 v65, v65, v66, s40""")
    for d in range(22):
        a(f's_add_u32 m0, s42, {d*1024}\ns_mov_b32 s43, {d*16384}\nbuffer_load_dwordx4 v65, s[44:47], s43 offen lds')
    a(f"""v_lshlrev_b32 v66, 2, v62
    v_add_u32 v66, v66, v63
    v_lshlrev_b32 v66, 6, v66
    v_lshlrev_b32 v67, 3, v64
    v_add3_u32 v66, v66, v67, s42""")
    for u in range(11):
        a(f's_waitcnt vmcnt({20-2*u})')
        for t in range(2):
            for jh in range(2):
                b=(u*2+t)*4+2*jh
                a(f'ds_read_b64_tr_b16 a[{b}:{b+1}], v66 offset:{u*2048+jh*1024+t*32}')
    a(f"""v_lshlrev_b32 v1, 4, v60
    s_mul_i32 s40, {sWv}, {11*1024}
    v_add_u32 v2, s40, v1
    s_lshl_b32 s40, {sWv}, 12
    v_add_u32 v3, s40, v1
    s_lshl_b32 s40, {sWv}, 10
    v_add_u32 v4, s40, v1
    s_lshr_b32 s40, {sWv}, 1
    s_lshl_b32 s40, s40, 4
    s_lshl_b32 s41, {sDu}, 5
    s_add_u32 s40, s40, s41
    v_lshlrev_b32 v65, 2, v62
    v_add_u32 v65, s40, v65              ; column
    v_lshlrev_b32 v66, 2, v65
    s_mov_b32 s43, {WS_MOD+5*2048}
    buffer_load_dwordx4 v[8:11], v66, {S_WS}, s43 offen sc1
    v_lshlrev_b32 v65, 1, v65
    v_lshlrev_b32 v66, 10, v61
    s_and_b32 s40, {sWv}, 1
    s_lshl_b32 s40, s40, 14
    v_add3_u32 v5, v65, v66, s40
    s_waitcnt lgkmcnt(0)""")
    LOOP=a.label('DL'); SK=a.label('DS'); SK2=a.label('DT')
    a(f'{LOOP}:')
    a(f's_lshl_b32 s52, {sSeg}, 7\ns_add_u32 s52, s52, {C_G}')
    poll_ge(a,S_WS,'s52',0,43,EXIT,vt=6)
    a(f"""s_mul_i32 s40, {sSeg}, {G_SEG}
    s_add_u32 s40, s40, {WS_G}
    s_lshl_b32 s53, {sSeg}, 15
    s_add_u32 s54, s53, {WS_X1}
    buffer_load_dwordx2 v[6:7], v5, {S_WS}, s54 offen sc1""")
    GB=32
    def gl(u,x): return f'buffer_load_dwordx4 {vr(GB+8*u+4*x,4)}, v2, {S_WS}, s{56+x} offen offset:{(u%4)*1024} sc1'
    a(f's_mov_b32 s56, s40\ns_add_u32 s57, s40, {43*1024}')
    for u in range(10):
        if u%4==0 and u: a('s_add_u32 s56, s56, 4096\ns_add_u32 s57, s57, 4096')
        a(gl(u,0)); a(gl(u,1))
    a(f's_cmp_eq_u32 {sWv}, 3\ns_cbranch_scc1 {SK}')
    a(gl(10,0)); a(gl(10,1))
    a(f'{SK}:')
    AC=12
    def mm(u):
        for t in range(2):
            for x in range(2):
                d=vr(AC+8*t+4*x,4); b=(u*2+t)*4
                a(f'v_mfma_f32_16x16x32_bf16 {d}, a[{b}:{b+3}], {vr(GB+8*u+4*x,4)}, {"0" if u==0 else d}')
    for u in range(10):
        a(f's_waitcnt vmcnt({18-2*u})')
        mm(u)
    a(f's_waitcnt vmcnt(0)\ns_cmp_eq_u32 {sWv}, 3\ns_cbranch_scc1 {SK2}')
    mm(10)
    a(f'{SK2}:')
    for i in range(4): a(f'ds_write_b128 v3, {vr(AC+4*i,4)} offset:{i*1024}')
    a('s_waitcnt lgkmcnt(0)\ns_barrier')
    for i in range(4): a(f'ds_read_b128 {vr(32+4*i,4)}, v4 offset:{i*4096}')
    unpack(a,28,6,2)
    a('s_waitcnt lgkmcnt(0)')
    for r in range(4): a(f'v_add_f32 v{32+r}, v{32+r}, v{36+r}\nv_add_f32 v{40+r}, v{40+r}, v{44+r}')
    for r in range(4): a(f'v_add_f32 v{32+r}, v{32+r}, v{40+r}')
    for r in range(4): a(f'v_fma_f32 v{32+r}, v{32+r}, v{8+r}, v{28+r}')
    for x in cvt2(6,32): a(x)
    a(f'buffer_store_dwordx2 v[6:7], v5, s[48:51], s53 offen')
    a(f's_barrier\ns_add_u32 {sSeg}, {sSeg}, 2\ns_cmp_lt_u32 {sSeg}, 64\ns_cbranch_scc1 {LOOP}')
```

```python
from asmdsl import *
from layout import *

L_MEM=0
L_S=8192
L_O=20480
L_DUMP=22528
L_ZERO=23552
L_WO=32768
LDS_TOTAL=163840

S_WS='s[8:11]'
S_W='s[12:15]'
S_DBG='s[16:19]'
sH='s20'; sWv='s21'
sStep='s22'; sCnt='s23'; sCnst='s24'
sHB='s25'; sHBn='s26'; sHA0='s27'; sHA1='s28'; sHA2='s29'; sHA3='s30'; sKV='s31'; sPub='s32'; sWarm='s33'; sT0='s34'; sT1='s35'
sRst='s36'
SPIN=400000

def vr(a,n): return f'v[{a}:{a+n-1}]'
def Wreg(X,ks,t):
    b=(ks*2+t)*8
    if X==0: return f'a[{b}:{b+7}]'
    if X==1: return f'a[{128+b}:{128+b+7}]'
    return f'v[{128+b}:{128+b+7}]'
def Wpair(X,u,t,jh):
    b=((u>>1)*2+t)*8+(u&1)*4+jh*2
    if X==0: return f'a[{b}:{b+1}]'
    if X==1: return f'a[{128+b}:{128+b+1}]'
    return f'v[{128+b}:{128+b+1}]'

IDX=0; LANE16=1; VWO=2; VAST=3; SELT=4; VALD=6; VBST=7; SELR=8; VBLD=12; VKV=13; VPUB=14; VSW=15; VSXR=16; VSMR=17; VOW=18; VWARM=19
T20=20; T21=21; MX=22; LX=23
KX0=24; KX1=28; VX0=32; VX1=36; KM=40; VM=44; M=48; QA=80; KA=88; VA=96; T0=104; T1=112; T2=120

def srd(a,dst,lo,hi,nbytes):
    b=int(dst[2:dst.index(':')])
    a(f's_mov_b32 s{b}, {lo}\ns_and_b32 s{b+1}, {hi}, 0xffff\ns_mov_b32 s{b+2}, {nbytes:#x}\ns_mov_b32 s{b+3}, 0x20000')

def weave(a,main,fill,start=0,per=2):
    fill=list(fill)
    for i,m in enumerate(main):
        a(m)
        if i>=start:
            for _ in range(per):
                if fill: a(fill.pop(0))
    for f in fill: a(f)

def load_weights(a,ptrs,nmat,with_wo,extra=None,perm=False):
    a(f'''
    v_lshrrev_b32 v61, 2, v60            ; row = L>>2
    v_lshlrev_b32 v62, 13, v61           ; row*8192
    v_lshrrev_b32 v63, 5, v60
    v_lshlrev_b32 v63, 1, v63
    v_and_b32 v64, 3, v60
    v_xor_b32 v64, v64, v63              ; q
    v_lshlrev_b32 v64, 4, v64
    v_add_u32 v62, v62, v64
    s_lshl_b32 s40, {sH}, 8
    s_lshl_b32 s41, {sWv}, 6
    s_add_u32 s40, s40, s41
    v_add_u32 v62, s40, v62
    s_lshl_b32 s42, {sWv}, 15
    s_add_u32 s42, s42, {L_WO}
    v_lshrrev_b32 v63, 4, v60            ; g
    v_bfe_u32 v64, v60, 2, 2             ; r
    v_and_b32 v65, 3, v60                ; cc
    v_lshlrev_b32 v66, 3, v63
    v_add_u32 v66, v66, v64              ; row=8g+r
    v_lshlrev_b32 v66, 6, v66
    v_and_b32 v67, 1, v63
    v_lshlrev_b32 v67, 5, v67            ; (g&1)*32
    v_lshlrev_b32 v68, 3, v65            ; cc*8
    v_add3_u32 v66, v66, v67, v68
    v_add_u32 v66, s42, v66              ; v66 = base t=0
    v_xor_b32 v67, 32, v66               ; v67 = base t=1
    ''')
    if with_wo:
        a(f'''
    v_lshrrev_b32 v68, 4, v60
    v_lshlrev_b32 v69, 10, v68           ; row*1024
    v_and_b32 v68, 1, v68                ; f bit0
    v_lshlrev_b32 v68, 5, v68
    v_and_b32 v70, 15, v60
    v_lshlrev_b32 v70, 4, v70
    v_xor_b32 v70, v70, v68
    v_add_u32 v69, v69, v70
    s_lshl_b32 s40, {sH}, 17
    s_lshl_b32 s41, {sWv}, 8
    s_add_u32 s40, s40, s41
    v_add_u32 v69, s40, v69              ; variant 0
    v_xor_b32 v70, 64, v69
    v_xor_b32 v71, 128, v69
    v_xor_b32 v72, 192, v69
    ''')
    srds=['s[44:47]','s[48:51]','s[52:55]','s[56:59]']
    for i,p in enumerate(ptrs): srd(a,srds[i],f's{p}',f's{p+1}',4194304)
    nslot=nmat*32+(32 if with_wo else 0)
    def issue(sl):
        pos=sl%32
        if sl<nmat*32:
            mat=sl//32; so=(sl%32)*131072; v='v62'
        else:
            mat=nmat; sg=sl-nmat*32; so=sg*4096; v=['v69','v70','v71','v72'][(sg>>2)&3]
        a(f's_add_u32 m0, s42, {pos*1024}\ns_mov_b32 s43, {so}\nbuffer_load_dwordx4 {v}, {srds[mat]}, s43 offen lds')
    AH=30
    issued=0;ops=[]
    for sl in range(min(AH,nslot)): issue(sl); ops.append(sl); issued+=1
    if extra:
        n=extra(); ops+=['x']*n
    for u in range(nmat*16):
        last=2*u+1
        n=len(ops)-1-ops.index(last)
        a(f's_waitcnt vmcnt({n})')
        X=u//16; uu=u%16; off=(u%16)*2048
        if perm: uu=2*(2*(uu&3)+(uu>>3))+((uu>>2)&1)
        for t in range(2):
            for jh in range(2):
                a(f'ds_read_b64_tr_b16 {Wpair(X,uu,t,jh)}, v{66+t} offset:{off+jh*256}')
        if u>=1:
            a('s_waitcnt lgkmcnt(4)')
            for _ in range(2):
                if issued<nslot and issued-32<2*u:
                    issue(issued); ops.append(issued); issued+=1
    a('s_waitcnt lgkmcnt(0)')
    while issued<nslot: issue(issued); ops.append(issued); issued+=1
    if with_wo:
        a(f'''
    v_lshrrev_b32 v63, 4, v60            ; g
    v_bfe_u32 v64, v60, 2, 2             ; r
    v_and_b32 v65, 3, v60                ; cc
    v_and_b32 v73, 1, v63                ; g&1
    v_lshlrev_b32 v74, 4, v73            ; 16(g&1)
    v_lshrrev_b32 v75, 1, v63
    v_lshlrev_b32 v75, 2, v75            ; 4(g>>1)
    v_add_u32 v74, v74, v75
    v_and_b32 v75, 1, v64                ; r&1
    v_add_u32 v74, v74, v75
    v_lshrrev_b32 v76, 1, v64            ; r>>1
    v_lshlrev_b32 v77, 5, v76
    v_add_u32 v74, v74, v77              ; row
    v_lshlrev_b32 v74, 8, v74            ; row*256
    v_lshlrev_b32 v73, 1, v73
    v_lshlrev_b32 v76, 2, v76
    v_or3_b32 v75, v75, v73, v76         ; f
    v_lshlrev_b32 v75, 5, v75
    v_lshlrev_b32 v65, 3, v65
    v_add3_u32 v74, v74, v75, v65
    v_add_u32 v74, s42, v74
    ''')
        for ks in range(2):
            lastslot=nmat*32+16*ks+15
            n=len(ops)-1-ops.index(lastslot)
            a(f's_waitcnt vmcnt({n})')
            dst=[80,88,96,104,112,120,24,32]
            for t in range(8):
                a(f'v_xor_b32 v75, {t*32}, v74')
                for P,ro in enumerate((0,2,8,10)):
                    a(f'ds_read_b64_tr_b16 {vr(dst[t]+2*P,2)}, v75 offset:{(64*ks+ro)*256}')
            a('s_waitcnt lgkmcnt(0)')
            for t in range(8):
                for hf in range(2):
                    a(f'ds_write_b128 v{VWO}, {vr(dst[t]+4*hf,4)} offset:{((ks*8+t)*2+hf)*1024}')
            a('s_waitcnt lgkmcnt(0)')

def check8(a,b,tmp):
    a(f'''v_max3_u32 v{tmp}, v{b}, v{b+1}, v{b+2}
    v_max3_u32 v{tmp+1}, v{b+3}, v{b+4}, v{b+5}
    v_max3_u32 v{tmp}, v{b+6}, v{b+7}, v{tmp}
    v_max_u32 v{tmp}, v{tmp}, v{tmp+1}
    v_cmp_eq_u32 vcc, -1, v{tmp}''')

def crossmax(op,v,t,which):
    sw='v_permlane16_swap_b32' if which==16 else 'v_permlane32_swap_b32'
    return [f'v_mov_b32 v{t}, v{v}', f'{sw} v{v}, v{t}', f'{op} v{v}, v{v}, v{t}']

DPP='row_ror:8 row_mask:0xf bank_mask:0xf'

NST=12
def stamp(a,k,diag):
    if diag: a(f's_memtime s[{38+2*k}:{39+2*k}]')
def stamp_acc(a,diag):
    if diag:
        a('s_waitcnt lgkmcnt(0)')
        for k in range(NST):
            prev='s63' if k==0 else f's{38+2*(k-1)}'
            a(f's_sub_u32 s62, s{38+2*k}, {prev}\ns_add_u32 s{64+k}, s{64+k}, s62')
        a(f's_mov_b32 s63, s{38+2*(NST-1)}')

def step(a,full,cross,exit_label,diag=False):
    sc=' sc1' if cross else ''
    def issueB(b): a(f'buffer_load_dwordx4 {vr(b,4)}, v{VBLD}, {S_WS}, {sHB} offen sc1\nbuffer_load_dwordx4 {vr(b+4,4)}, v{VBLD}, {S_WS}, {sHB} offen offset:1024 sc1')
    Lp=a.label('PB'); Ld=a.label('PBd')
    for i in range(0,24,2): a(f'v_mov_b64 {vr(QA+i,2)}, 0')
    issueB(M)
    a(f's_mov_b32 {sCnt}, 0')
    a('s_nop 7\ns_nop 7')
    issueB(M+8)
    a(f'{Lp}:')
    for b in (M,M+8):
        a('s_waitcnt vmcnt(2)')
        a(f'ds_write_b128 v{VBLD}, {vr(b,4)} offset:{L_MEM}\nds_write_b128 v{VBLD}, {vr(b+4,4)} offset:{L_MEM+1024}')
        check8(a,b,T20)
        a(f's_cbranch_vccz {Ld}')
        issueB(b)
    a(f's_add_u32 {sCnt}, {sCnt}, 1\ns_cmp_lt_u32 {sCnt}, {SPIN}\ns_cbranch_scc1 {Lp}\ns_branch {exit_label}')
    a(f'{Ld}:')
    stamp(a,0,diag)
    a('s_waitcnt lgkmcnt(0)\ns_barrier')
    a('s_waitcnt vmcnt(0)')
    stamp(a,1,diag)
    for ks in range(8): a(f'ds_read_b128 {vr(M+4*ks,4)}, v{LANE16} offset:{L_MEM+ks*1024}')
    def sm(acc,ks,X,t): return f'v_smfmac_f32_16x16x64_bf16 {vr(acc+4*t,4)}, {vr(M+4*ks,4)}, {Wreg(X,ks,t)}, v{IDX}'
    QC=T2; QB=T2+4
    if full:
        fill=[f's_mov_b32 m0, {L_DUMP}', f's_nop 0', f'buffer_load_dword v{VWARM}, {S_WS}, {sWarm} offen sc1 lds',
              f's_add_u32 {sHB}, {sHB}, 8192',
              f's_add_u32 {sWarm}, {sWarm}, 524288', f's_min_u32 {sWarm}, {sWarm}, {WS_KV+63*524288}',
              ]
        for ks in range(8):
            a(f's_waitcnt lgkmcnt({7-ks})')
            a(sm(QA,ks,0,0));
            if fill: a(fill.pop(0))
            a(sm(QA,ks,0,1))
            if fill: a(fill.pop(0))
        stamp(a,2,diag)
        K=[sm(KA,ks,1,t) for ks in range(8) for t in range(2)]
        for i in range(4): a(K[i])
        for t in range(2):
            a(f'v_cvt_pk_bf16_f32 v{QC+2*t}, v{QA+4*t}, v{QA+4*t+1}\nv_cvt_pk_bf16_f32 v{QC+2*t+1}, v{QA+4*t+2}, v{QA+4*t+3}')
            a(K[4+t])
        for t in range(2): a(f'v_mfma_f32_16x16x16_bf16 {vr(T0+4*t,4)}, {vr(QC+2*t,2)}, {vr(SELT,2)}, 0')
        for i in range(6,10): a(K[i])
        for t in range(2):
            a(f'v_cvt_pk_bf16_f32 v{QB+2*t}, v{T0+4*t}, v{T0+4*t+1}\nv_cvt_pk_bf16_f32 v{QB+2*t+1}, v{T0+4*t+2}, v{T0+4*t+3}')
            a(K[10+t])
        a(f'v_mfma_f32_16x16x32_bf16 {vr(T0,4)}, {vr(KX0,4)}, {vr(QB,4)}, 0')
        a(f'v_mfma_f32_16x16x32_bf16 {vr(T0+4,4)}, {vr(KX1,4)}, {vr(QB,4)}, 0')
        for i in range(12,16): a(K[i])
    else:
        for ks in range(8):
            a(f's_waitcnt lgkmcnt({7-ks})')
            a(sm(KA,ks,1,0)); a(sm(KA,ks,1,1))
    stamp(a,3,diag)
    V=[sm(VA,ks,2,t) for ks in range(8) for t in range(2)]
    if full:
        a(V[0])
        a(f'ds_write_b128 v{VSW}, {vr(T0,4)}\nds_write_b128 v{VSW}, {vr(T0+4,4)} offset:1024')
        a(V[1]); a(V[2]); a(V[3])
    else:
        for i in range(4): a(V[i])
    for t in range(2):
        a(f'v_cvt_pk_bf16_f32 v{QC+2*t}, v{KA+4*t}, v{KA+4*t+1}\nv_cvt_pk_bf16_f32 v{QC+2*t+1}, v{KA+4*t+2}, v{KA+4*t+3}')
    for t in range(2): a(f'v_mfma_f32_16x16x16_bf16 {vr(T1+4*t,4)}, {vr(QC+2*t,2)}, {vr(SELT,2)}, 0')
    if full:
        a('s_waitcnt lgkmcnt(0)\ns_barrier')
        stamp(a,4,diag)
        SR=[QA,QA+4,KX0,KX1]
        for wv in range(4): a(f'ds_read_b128 {vr(SR[wv],4)}, v{VSXR} offset:{wv*3072}')
    a(V[4]); a(V[5])
    for t in range(2):
        a(f'v_cvt_pk_bf16_f32 v{KM+2*t}, v{T1+4*t}, v{T1+4*t+1}\nv_cvt_pk_bf16_f32 v{KM+2*t+1}, v{T1+4*t+2}, v{T1+4*t+3}')
    if not full:
        for i in range(6,16): a(V[i])
        a(f'buffer_store_dwordx4 {vr(KM,4)}, v{VPUB}, {S_WS}, {sPub} offen sc1')
        for t in range(2):
            a(f'v_cvt_pk_bf16_f32 v{VM+2*t}, v{VA+4*t}, v{VA+4*t+1}\nv_cvt_pk_bf16_f32 v{VM+2*t+1}, v{VA+4*t+2}, v{VA+4*t+3}')
        a(f'buffer_store_dwordx4 {vr(VM,4)}, v{VPUB}, {S_WS}, {sPub} offen offset:1024 sc1')
        return
    SM=T2
    a(V[6])
    a(f'v_mfma_f32_16x16x32_bf16 {vr(SM,4)}, {vr(KM,4)}, {vr(QB,4)}, 0')
    a(f'buffer_store_dwordx4 {vr(KM,4)}, v{VPUB}, {S_WS}, {sPub} offen sc1')
    a(V[7])
    a('s_waitcnt lgkmcnt(2)')
    a(f'v_pk_add_f32 {vr(QA,2)}, {vr(QA,2)}, {vr(QA+4,2)}\nv_pk_add_f32 {vr(QA+2,2)}, {vr(QA+2,2)}, {vr(QA+6,2)}')
    a(V[8])
    a('s_waitcnt lgkmcnt(0)')
    a(f'v_pk_add_f32 {vr(KX0,2)}, {vr(KX0,2)}, {vr(KX1,2)}\nv_pk_add_f32 {vr(KX0+2,2)}, {vr(KX0+2,2)}, {vr(KX1+2,2)}')
    a(f'ds_write_b128 v{VSW}, {vr(SM,4)} offset:2048')
    a(V[9])
    a(f'v_pk_add_f32 {vr(QA,2)}, {vr(QA,2)}, {vr(KX0,2)}\nv_pk_add_f32 {vr(QA+2,2)}, {vr(QA+2,2)}, {vr(KX0+2,2)}')
    a(V[10])
    a(f'v_max3_f32 v{MX}, v{QA}, v{QA+1}, v{QA+2}\nv_max_f32 v{MX}, v{MX}, v{QA+3}')
    a(V[11])
    a(f'v_max_f32_dpp v{MX}, v{MX}, v{MX} {DPP}')
    a('s_waitcnt lgkmcnt(0)\ns_barrier')
    stamp(a,5,diag)
    for wv in range(4): a(f'ds_read_b64 {vr(T1+2*wv,2)}, v{VSMR} offset:{wv*3072}')
    order=[(ks,2*u+t) for u in range(4) for ks in range(2) for t in range(2)]
    G=[KA,KX0,VA,QA,VX0,T1,T2]
    def wo_read(i,g):
        ks,t=order[i]
        return [f'ds_read_b128 {vr(g+4*hf,4)}, v{VWO} offset:{((ks*8+t)*2+hf)*1024}' for hf in range(2)]
    for x in wo_read(0,KA)+wo_read(1,KX0): a(x)
    c16=crossmax('v_max_f32',MX,T20,16); c32=crossmax('v_max_f32',MX,T20,32)
    a(c16[0]); a(V[12]); a(c16[1]); a(c16[2]); a(c32[0]); a(V[13]); a(c32[1]); a(c32[2])
    a(f'v_mul_f32 v{T21}, {sCnst}, v{MX}')
    a(V[14])
    for r in range(4): a(f'v_fma_f32 v{QA+4+r}, v{QA+r}, {sCnst}, -v{T21}')
    a(V[15])
    for r in range(4): a(f'v_exp_f32 v{QA+4+r}, v{QA+4+r}')
    stamp(a,6,diag)
    a('s_waitcnt lgkmcnt(4)')
    a(f'v_pk_add_f32 {vr(T1,2)}, {vr(T1,2)}, {vr(T1+2,2)}\nv_pk_add_f32 {vr(T1+4,2)}, {vr(T1+4,2)}, {vr(T1+6,2)}')
    a(f'v_cvt_pk_bf16_f32 v{QA}, v{QA+4}, v{QA+5}\nv_cvt_pk_bf16_f32 v{QA+1}, v{QA+6}, v{QA+7}')
    a(f'v_pk_add_f32 {vr(T1,2)}, {vr(T1,2)}, {vr(T1+4,2)}')
    a(f'v_add_f32 v{LX}, v{QA+4}, v{QA+5}')
    a(f'v_mov_b32_dpp v{QA+2}, v{QA} {DPP}\nv_mov_b32_dpp v{QA+3}, v{QA+1} {DPP}')
    MM=T1+2; NM=T1+3; AL=T1+4; TT=T1+5
    a(f'v_max_f32 v{MM}, v{T1}, v{T1+1}')
    a(f'v_add_f32 v{LX}, v{LX}, v{QA+6}')
    a(f'v_mfma_f32_16x16x32_bf16 {vr(T0,4)}, {vr(VX0,4)}, {vr(QA,4)}, 0')
    a(f'v_max_f32_dpp v{MM}, v{MM}, v{MM} {DPP}')
    a(f'v_add_f32 v{LX}, v{LX}, v{QA+7}')
    a(f'v_mfma_f32_16x16x32_bf16 {vr(T0+4,4)}, {vr(VX1,4)}, {vr(QA,4)}, 0')
    c=crossmax('v_max_f32',MM,T20,16)
    a(c[0])
    a(f'v_cvt_pk_bf16_f32 v{VM}, v{VA}, v{VA+1}\nv_cvt_pk_bf16_f32 v{VM+1}, v{VA+2}, v{VA+3}')
    a(c[1]); a(c[2])
    a(f'v_max_f32 v{MM}, v{MM}, v{MX}')
    a(f'v_mul_f32 v{NM}, {sCnst}, v{MM}')
    a(f'v_sub_f32 v{AL}, v{T21}, v{NM}')
    a(f'v_fma_f32 v{T1}, v{T1}, {sCnst}, -v{NM}\nv_fma_f32 v{T1+1}, v{T1+1}, {sCnst}, -v{NM}')
    a(f'v_exp_f32 v{AL}, v{AL}\nv_exp_f32 v{T1}, v{T1}\nv_exp_f32 v{T1+1}, v{T1+1}')
    a(f'v_cvt_pk_bf16_f32 v{VM+2}, v{VA+4}, v{VA+5}\nv_cvt_pk_bf16_f32 v{VM+3}, v{VA+6}, v{VA+7}')
    PM=T2
    a(f'v_cvt_pk_bf16_f32 v{PM}, v{T1}, v{T1+1}')
    for t in range(2):
        a(f'v_pk_mul_f32 {vr(T0+4*t,2)}, {vr(T0+4*t,2)}, {vr(AL,2)} op_sel_hi:[1,0]\nv_pk_mul_f32 {vr(T0+4*t+2,2)}, {vr(T0+4*t+2,2)}, {vr(AL,2)} op_sel_hi:[1,0]')
        if t==0: a(f'v_mov_b32_dpp v{PM+1}, v{PM} {DPP}')
    a(f'v_add_f32 v{TT}, v{T1}, v{T1+1}')
    a(f'v_mul_f32 v{LX}, v{LX}, v{AL}')
    for t in range(2): a(f'v_mfma_f32_16x16x16_bf16 {vr(T0+4*t,4)}, {vr(VM+2*t,2)}, {vr(PM,2)}, {vr(T0+4*t,4)}')
    a(f'v_fma_f32 v{LX}, v{TT}, 0.5, v{LX}')
    a(f'buffer_store_dwordx4 {vr(VM,4)}, v{VPUB}, {S_WS}, {sPub} offen offset:1024 sc1')
    for x in wo_read(2,VA): a(x)
    a(f'v_add_f32_dpp v{LX}, v{LX}, v{LX} {DPP}')
    c16=crossmax('v_add_f32',LX,T20,16); c32=crossmax('v_add_f32',LX,T20,32)
    r3=wo_read(3,QA); r4=wo_read(4,VX0)
    a(c16[0]); a(r3[0]); a(r3[1]); a(c16[1]); a(c16[2]); a(c32[0]); a(r4[0]); a(r4[1]); a(c32[1]); a(c32[2])
    a(f'v_rcp_f32 v{AL}, v{LX}')
    a(f's_add_u32 {sPub}, {sPub}, 262144')
    for t in range(2):
        a(f'v_pk_mul_f32 {vr(T0+4*t,2)}, {vr(T0+4*t,2)}, {vr(AL,2)} op_sel_hi:[1,0]\nv_pk_mul_f32 {vr(T0+4*t+2,2)}, {vr(T0+4*t+2,2)}, {vr(AL,2)} op_sel_hi:[1,0]')
    OP=T2+4
    for t in range(2):
        a(f'v_cvt_pk_bf16_f32 v{OP+2*t}, v{T0+4*t}, v{T0+4*t+1}\nv_cvt_pk_bf16_f32 v{OP+2*t+1}, v{T0+4*t+2}, v{T0+4*t+3}')
    stamp(a,7,diag)
    a(f'ds_write_b128 v{VOW}, {vr(OP,4)}')
    for i in range(0,32,2): a(f'v_mov_b64 {vr(M+i,2)}, 0')
    a('s_waitcnt lgkmcnt(0)\ns_barrier')
    stamp(a,8,diag)
    OA=T0
    a(f'ds_read_b128 {vr(OA,4)}, v{LANE16} offset:{L_O}\nds_read_b128 {vr(OA+4,4)}, v{LANE16} offset:{L_O+1024}')
    for x in wo_read(5,T1)+wo_read(6,T2): a(x)
    slot={0:KA,1:KX0,2:VA,3:QA,4:VX0,5:T1,6:T2}
    pend=[('o',0),('o',1),(5,0),(5,1),(6,0),(6,1)]
    nxt=7
    sHA=[sHA0,sHA1,sHA2,sHA3]
    epi=[]
    def epilogue(u):
        b0=M+8*u; b1=b0+4
        l=[f'v_permlane32_swap_b32 v{b0+r}, v{b1+r}' for r in range(4)]
        l+=[f'v_pk_add_f32 {vr(b0,2)}, {vr(b0,2)}, {vr(b1,2)}', f'v_pk_add_f32 {vr(b0+2,2)}, {vr(b0+2,2)}, {vr(b1+2,2)}']
        l+=[f'v_cvt_pk_bf16_f32 v{b0}, v{b0}, v{b0+1}', f'v_cvt_pk_bf16_f32 v{b0+1}, v{b0+2}, v{b0+3}']
        l+=[f'buffer_store_dwordx2 {vr(b0,2)}, v{VAST}, {S_WS}, {sHA[u]} offen{sc}']
        return l
    for i in range(16):
        ks,t=order[i]
        needs=[('o',ks),(i,1)]
        idx=max([pend.index(x) for x in needs if x in pend],default=-1)
        if idx>=0:
            a(f's_waitcnt lgkmcnt({len(pend)-1-idx})'); pend=pend[idx+1:]
        g=slot[i]
        a(f'v_smfmac_f32_16x16x64_bf16 {vr(M+4*t,4)}, {vr(OA+4*ks,4)}, {vr(g,8)}, v{IDX}')
        if nxt<16:
            for x in wo_read(nxt,g): a(x)
            slot[nxt]=g; pend+=[(nxt,0),(nxt,1)]; nxt+=1
        if i%4==3: epi+=['W']+epilogue(i//4)
        k=0
        while epi and k<3:
            if epi[0]=='W':
                epi.pop(0); break
            a(epi.pop(0)); k+=1
    for x in epi:
        if x!='W': a(x)
    stamp(a,9,diag)
    for i,b in enumerate((KX0,KX1,VX0,VX1)): a(f'buffer_load_dwordx4 {vr(b,4)}, v{VKV}, {S_WS}, {sKV} offen offset:{i*1024} sc1')
    a(f's_add_u32 {sKV}, {sKV}, 524288')
    RA=QA; RB=KA; R=VA
    def issueA(b): a(f'buffer_load_dwordx4 {vr(b,4)}, v{VALD}, {S_WS}, {sHA0} offen sc1\nbuffer_load_dwordx4 {vr(b+4,4)}, v{VALD}, {S_WS}, {sHA0} offen offset:1024 sc1')
    Lp=a.label('PA'); Ld=a.label('PAd')
    a(f's_mov_b32 {sCnt}, 0')
    a('s_nop 7\ns_nop 7')
    issueA(RA)
    a(f'v_mov_b64 {vr(T2,2)}, -1\nv_mov_b64 {vr(T2+2,2)}, -1')
    a('s_nop 7\ns_nop 7')
    issueA(RB)
    a(f'{Lp}:')
    for b in (RA,RB):
        a('s_waitcnt vmcnt(2)')
        a(f'v_mfma_f32_16x16x32_bf16 {vr(R,4)}, {vr(b,4)}, {vr(SELR,4)}, 0\nv_mfma_f32_16x16x32_bf16 {vr(R,4)}, {vr(b+4,4)}, {vr(SELR,4)}, {vr(R,4)}')
        check8(a,b,T20)
        a(f's_cbranch_vccz {Ld}')
        issueA(b)
    a(f's_add_u32 {sCnt}, {sCnt}, 1\ns_cmp_lt_u32 {sCnt}, {SPIN}\ns_cbranch_scc1 {Lp}\ns_branch {exit_label}')
    a(f'{Ld}:')
    stamp(a,10,diag)
    a(f'v_pk_add_f32 {vr(R,2)}, {vr(R,2)}, {vr(R+2,2)}')
    a(f'v_add_f32 v{R}, v{R}, v{R+1}')
    a(f'v_mov_b32 v{R+1}, v{R}')
    a(f'v_permlane16_swap_b32 v{R}, v{R+1}')
    a(f'v_cvt_pk_bf16_f32 v{R}, v{R}, v{R+1}')
    a(f'buffer_store_dword v{R}, v{VBST}, {S_WS}, {sHB} offen{sc}')
    stamp(a,11,diag)
    a('s_waitcnt vmcnt(1)')
    a(f'buffer_store_dwordx4 {vr(T2,4)}, v{VALD}, {S_WS}, {sHA0} offen{sc}\nbuffer_store_dwordx4 {vr(T2,4)}, v{VALD}, {S_WS}, {sHA0} offen offset:1024{sc}')
    a(f's_add_u32 {sHA0}, {sHA0}, 262144\ns_and_b32 {sHA0}, {sHA0}, {NRING*262144-1}\ns_or_b32 {sHA0}, {sHA0}, {WS_HOPA}')
    stamp_acc(a,diag)
    a(f's_add_u32 {sHA1}, {sHA0}, 16384\ns_add_u32 {sHA2}, {sHA0}, 32768\ns_add_u32 {sHA3}, {sHA0}, 49152')

def team_setup(a):
    a(f'''
    v_and_b32 v61, 15, v60               ; c
    v_lshrrev_b32 v62, 4, v60            ; g
    v_mov_b32 v{IDX}, 0x4444
    v_mov_b32 v63, 0xeeee
    v_cmp_lt_u32 vcc, 7, v61
    v_cndmask_b32 v{IDX}, v{IDX}, v63, vcc
    v_lshlrev_b32 v{LANE16}, 4, v60
    s_lshl_b32 s40, {sWv}, 15
    s_add_u32 s40, s40, {L_WO}
    v_add_u32 v{VWO}, s40, v{LANE16}
    v_lshrrev_b32 v63, 1, v62            ; g>>1
    v_lshlrev_b32 v63, 2, v63
    v_lshrrev_b32 v64, 2, v61            ; c>>2
    v_add_u32 v63, v63, v64
    v_lshlrev_b32 v63, 11, v63
    v_and_b32 v64, 3, v61
    v_lshlrev_b32 v64, 4, v64
    v_and_b32 v65, 1, v62
    v_lshlrev_b32 v65, 3, v65
    v_add3_u32 v63, v63, v64, v65
    s_lshl_b32 s40, {sWv}, 16
    s_lshl_b32 s41, {sH}, 6
    s_add_u32 s40, s40, s41
    v_add_u32 v{VAST}, s40, v63
    v_lshlrev_b32 v63, 8, v62
    v_and_b32 v64, 3, v61
    v_lshlrev_b32 v64, 6, v64
    v_lshrrev_b32 v65, 2, v61
    v_lshlrev_b32 v65, 4, v65
    v_add3_u32 v63, v63, v64, v65
    s_lshl_b32 s40, {sH}, 2
    s_add_u32 s40, s40, {sWv}
    s_lshl_b32 s40, s40, 11
    v_add_u32 v{VALD}, s40, v63
    v_and_b32 v63, 7, v61                ; i
    v_lshrrev_b32 v64, 1, v62            ; half
    v_lshlrev_b32 v65, 3, v64
    v_add_u32 v65, v65, v63
    v_lshlrev_b32 v65, 4, v65
    s_lshl_b32 s40, {sH}, 8
    s_lshl_b32 s41, {sWv}, 2
    s_add_u32 s40, s40, s41
    v_add_u32 v{VBST}, s40, v65
    v_lshlrev_b32 v59, 10, v63
    v_lshlrev_b32 v65, 2, v64
    v_add_u32 v59, v59, v65
    s_lshl_b32 s40, {sH}, 5
    s_lshl_b32 s41, {sWv}, 3
    s_add_u32 s40, s40, s41
    v_add_u32 v59, s40, v59
    s_lshl_b32 s40, {sWv}, 11
    v_add_u32 v{VBLD}, s40, v{LANE16}
    s_lshl_b32 s41, {sH}, 13
    s_add_u32 s41, s41, s40
    v_add_u32 v{VPUB}, s41, v{LANE16}
    s_lshl_b32 s41, s41, 1
    v_add_u32 v{VKV}, s41, v{LANE16}
    v_lshlrev_b32 v65, 6, v60
    v_add_u32 v{VWARM}, s41, v65
    ; S exchange
    s_mul_i32 s40, {sWv}, 3072
    s_add_u32 s40, s40, {L_S}
    v_add_u32 v{VSW}, s40, v{LANE16}
    v_lshlrev_b32 v65, 4, v62
    v_add_u32 v65, v65, v63              ; lane' = i + 16g
    v_lshlrev_b32 v65, 4, v65
    v_lshrrev_b32 v66, 3, v61            ; c>>3
    v_lshlrev_b32 v67, 10, v66
    v_add_u32 v67, v67, v65
    v_add_u32 v{VSXR}, {L_S}, v67
    v_lshlrev_b32 v67, 3, v66
    v_add_u32 v67, v67, v65
    v_add_u32 v{VSMR}, {L_S+2048}, v67
    ; o write
    s_lshr_b32 s40, {sWv}, 1
    s_lshl_b32 s40, s40, 10
    s_and_b32 s41, {sWv}, 1
    s_lshl_b32 s41, s41, 7
    s_add_u32 s40, s40, s41
    s_add_u32 s40, s40, {L_O}
    v_add_u32 v{VOW}, s40, v65
    v_add_u32 v67, {L_DUMP}, v{LANE16}
    v_cmp_lt_u32 vcc, 7, v61
    v_cndmask_b32 v{VOW}, v{VOW}, v67, vcc
    ''')
    a(f'''
    v_and_b32 v64, 1, v62
    v_lshlrev_b32 v64, 2, v64
    v_sub_u32 v64, v63, v64
    v_mov_b32 v65, 0x3f80
    v_mov_b32 v66, 0x3f800000
    ''')
    for rg in range(2):
        a(f'''v_cmp_eq_u32 vcc, {2*rg}, v64
        v_cndmask_b32 v{SELT+rg}, 0, v65, vcc
        v_cmp_eq_u32 vcc, {2*rg+1}, v64
        v_cndmask_b32 v{SELT+rg}, v{SELT+rg}, v66, vcc''')
    for rg in range(4):
        a(f'''v_cmp_eq_u32 vcc, {2*rg}, v63
        v_cndmask_b32 v{SELR+rg}, 0, v65, vcc
        v_cmp_eq_u32 vcc, {2*rg+1}, v63
        v_cndmask_b32 v{SELR+rg}, v{SELR+rg}, v66, vcc''')

def team_kernel(name,diag=False,cross=False):
    a=Asm()
    sc=' sc1' if cross else ''
    EXIT=name+'_exit'
    a(f'''
    s_cmp_ge_u32 s2, 256
    s_cbranch_scc1 {EXIT}
    s_getreg_b32 s3, hwreg(HW_REG_XCC_ID)
    s_and_b32 s3, s3, 15
    s_cmp_lg_u32 s3, 0
    s_cbranch_scc1 {EXIT}
    s_load_dwordx4 s[84:87], s[0:1], 8
    s_load_dwordx4 s[88:91], s[0:1], 24
    s_load_dwordx2 s[92:93], s[0:1], 40     ; Wo
    s_load_dwordx4 s[96:99], s[0:1], 112
    v_and_b32 v60, 63, v0
    v_lshrrev_b32 v61, 6, v0
    v_readfirstlane_b32 {sWv}, v61
    s_waitcnt lgkmcnt(0)
    ''')
    srd(a,S_WS,'s98','s99',WS_SIZE); srd(a,S_DBG,'s96','s97',256); srd(a,S_W,'s84','s85',8192)
    L1=a.label('EL')
    a(f'''
    s_cmp_lg_u32 {sWv}, 0
    s_cbranch_scc1 {L1}
    v_mov_b32 v61, 1
    v_mov_b32 v62, 0
    s_mov_b64 exec, 1
    buffer_atomic_add v61, off, {S_DBG}, 0 sc0
    s_waitcnt vmcnt(0)
    ds_write_b32 v62, v61
    s_mov_b64 exec, -1
    s_waitcnt lgkmcnt(0)
    {L1}:
    s_barrier
    v_mov_b32 v62, 0
    ds_read_b32 v61, v62
    s_waitcnt lgkmcnt(0)
    v_readfirstlane_b32 {sH}, v61
    s_barrier
    s_cmp_ge_u32 {sH}, 32
    s_cbranch_scc1 {EXIT}
    ''')
    if diag:
        a('s_memrealtime s[78:79]')
        for k in range(12): a(f's_mov_b32 s{64+k}, 0')
    team_setup(a)
    def extra():
        a(f'''v_mov_b64 v[56:57], -1
        v_mov_b64 v[54:55], -1
        s_lshl_b32 s40, {sH}, 14
        s_lshl_b32 s41, {sWv}, 12
        s_add_u32 s40, s40, s41
        s_add_u32 s40, s40, {WS_HOPB}''')
        for i in range(4): a(f'buffer_store_dwordx4 v[54:57], v{LANE16}, {S_WS}, s40 offen offset:{i*1024}{sc}')
        for r in range(NRING):
            a(f's_mov_b32 s40, {WS_HOPA+r*262144}')
            for i in range(2): a(f'buffer_store_dwordx4 v[54:57], v{VALD}, {S_WS}, s40 offen offset:{i*1024}{sc}')
        a(f'buffer_load_dword v58, v59, {S_W}, 0 offen')
        return 4+2*NRING+1
    load_weights(a,[86,88,90,92],3,True,extra)
    L2=a.label('TB'); L3=a.label('TBd'); L4=a.label('TBs')
    a(f'''
    s_waitcnt vmcnt(0)
    s_barrier
    s_cmp_lg_u32 {sWv}, 0
    s_cbranch_scc1 {L4}
    v_mov_b32 v61, 1
    s_mov_b64 exec, 1
    buffer_atomic_add v61, off, {S_DBG}, 0 offset:4
    s_mov_b64 exec, -1
    {L4}:
    s_mov_b32 {sCnt}, 0
    {L2}:
    buffer_load_dword v61, off, {S_DBG}, 0 offset:4 sc1
    s_waitcnt vmcnt(0)
    v_readfirstlane_b32 s40, v61
    s_cmp_ge_u32 s40, 32
    s_cbranch_scc1 {L3}
    s_add_u32 {sCnt}, {sCnt}, 1
    s_cmp_lt_u32 {sCnt}, {SPIN}
    s_cbranch_scc1 {L2}
    s_branch {EXIT}
    {L3}:
    s_mov_b32 {sHB}, {WS_HOPB}
    s_mov_b32 {sHA0}, {WS_HOPA}
    s_mov_b32 {sHA1}, {WS_HOPA+16384}
    s_mov_b32 {sHA2}, {WS_HOPA+32768}
    s_mov_b32 {sHA3}, {WS_HOPA+49152}
    s_mov_b32 {sKV}, {WS_KV}
    s_mov_b32 {sWarm}, {WS_KV+524288}
    s_mov_b32 {sPub}, {WS_KM}
    s_mov_b32 {sCnst}, {f2u(SCALE_LOG2E):#x}
    s_mov_b32 {sStep}, 0
    buffer_store_dword v58, v{VBST}, {S_WS}, {sHB} offen{sc}
    ''')
    for i,b in enumerate((KX0,KX1,VX0,VX1)): a(f'buffer_load_dwordx4 {vr(b,4)}, v{VKV}, {S_WS}, {sKV} offen offset:{i*1024} sc1')
    a(f's_add_u32 {sKV}, {sKV}, 524288')
    if diag:
        a('s_memrealtime s[80:81]\ns_memtime s[60:61]\ns_waitcnt lgkmcnt(0)\ns_mov_b32 s63, s60')
    LOOP=name+'_loop'
    a(f'{LOOP}:')
    n0=len(a.items)
    step(a,True,cross,EXIT,diag)
    a(f's_add_u32 {sStep}, {sStep}, 1\ns_cmp_lt_u32 {sStep}, 63\ns_cbranch_scc1 {LOOP}')
    n1=len(a.items)
    step(a,False,cross,EXIT,False)
    if diag:
        a(f'''s_memrealtime s[82:83]
        s_waitcnt lgkmcnt(0)
        s_sub_u32 s76, s80, s78
        s_sub_u32 s77, s82, s80
        s_lshl_b32 s40, {sH}, 2
        s_add_u32 s40, s40, {sWv}
        s_lshl_b32 s40, s40, 6
        s_add_u32 s40, s40, {WS_STAMP}''')
        for k in range(14): a(f'v_mov_b32 v61, s{64+k}\nbuffer_store_dword v61, off, {S_WS}, s40 offset:{4*k}')
    a(f's_waitcnt vmcnt(0)')
    a(f'{EXIT}:')
    a('s_endpgm')
    body=[x for x in a.items[n0:n1]]
    errs=check_waits(a.items[:n1]+body+a.items[n1:],name)
    a.fix()
    return a
```

```python
from asmdsl import *
from layout import *
import team as T1m
from team import srd, vr, Wreg, check8, crossmax, DPP, SPIN, S_WS, S_W, S_DBG, LDS_TOTAL, L_WO

L_S=0
L_O=16384
L_DUMP=18432
sH='s20'; sWv='s21'; sStep='s22'; sCnt='s23'; sCnst='s24'
sHB='s25'; sHB2='s26'; sHA0='s27'; sHA1='s28'; sRst='s29'; sKV='s31'; sPub='s32'; sWarm='s33'; sWB='s34'
IDX=0; LANE16=1; VWO=2; VAST=3; SELT=4; VALD=6; VBST=7; SELR=8; ONES=12; VKV=16; VSW=17; VSXR=18; VOW=19
T20=20; T21=21; MX=22; NM=23
KX0=24; KX1=28; VX0=32; VX1=36; KM=40; VM=44; M=48; QA=80; KA=88; VA=96; T0=104; T1=112; T2=120
NST=12
import os
RT=os.environ.get('RT','')
def stamp(a,k,diag):
    if diag: a(f's_mem{RT}time s[{38+2*k}:{39+2*k}]')
def stamp_acc(a,diag):
    if diag:
        a('s_waitcnt lgkmcnt(0)')
        for k in range(NST):
            prev='s63' if k==0 else f's{38+2*(k-1)}'
            a(f's_sub_u32 s62, s{38+2*k}, {prev}\ns_add_u32 s{64+k}, s{64+k}, s62')
        a(f's_mov_b32 s63, s{38+2*(NST-1)}')
        for k in range(NST): a(f'v_writelane_b32 v{T20}, s{38+2*k}, {k}')
        a(f"""s_lshl_b32 s62, {sStep}, 2
        s_add_u32 s62, s62, {sWv}
        s_and_b32 s62, s62, 63
        s_lshl_b32 s62, s62, 6
        s_add_u32 s62, s62, 28672
        v_lshrrev_b32 v{T21}, 2, v{LANE16}
        v_add_u32 v{T21}, s62, v{T21}
        s_mov_b64 exec, 0xffff
        ds_write_b32 v{T21}, v{T20}
        s_mov_b64 exec, -1""")
def chk(b,tmp=T20):
    return [f'v_max3_u32 v{tmp}, v{b}, v{b+1}, v{b+2}', f'v_max3_u32 v{tmp+1}, v{b+3}, v{b+4}, v{b+5}',
            f'v_max3_u32 v{tmp}, v{b+6}, v{b+7}, v{tmp}', f'v_max_u32 v{tmp}, v{tmp}, v{tmp+1}', f'v_cmp_eq_u32 vcc, -1, v{tmp}']
def cvt4(d,s): return [f'v_cvt_pk_bf16_f32 v{d+i}, v{s+2*i}, v{s+2*i+1}' for i in range(4)]
def pkadd(d,x,y): return f'v_pk_add_f32 {vr(d,2)}, {vr(x,2)}, {vr(y,2)}'

def step(a,full,cross,exit_label,tail,P,diag=False):
    sc=' sc1' if cross else ''
    def F(p):
        s=sHB if p<2 else sHB2
        return [f'buffer_load_dwordx4 {vr(M+8*p+4*i,4)}, v{LANE16}, {S_WS}, {s} offen offset:{(p&1)*2048+i*1024} sc1' for i in range(2)]
    def sm(acc,ks,X,t): return f'v_smfmac_f32_16x16x64_bf16 {vr(acc+4*t,4)}, {vr(M+4*ks,4)}, {Wreg(X,ks,t)}, v{IDX}'
    def retry(p):
        Lr=a.label('RT'); Lb=a.label('RB'); Ll=a.label('RL')
        t=[f'{Lr}:', f's_mov_b32 {sCnt}, 0', f'{Ll}:']+F(p)+(['s_add_u32 s76, s76, 1'] if diag else [])+['s_waitcnt vmcnt(0)']+chk(M+8*p)+[f's_cbranch_vccz {Lb}',
           f's_add_u32 {sCnt}, {sCnt}, 1', f's_cmp_lt_u32 {sCnt}, {SPIN}', f's_cbranch_scc1 {Ll}', f's_branch {exit_label}']
        tail.extend(t)
        return [f's_cbranch_vccnz {Lr}', f'{Lb}:']
    Q=lambda p:[sm(QA,2*p+k,0,t) for k in range(2) for t in range(2)]
    K=lambda p:[sm(KA,2*p+k,1,t) for k in range(2) for t in range(2)]
    Vl=[sm(VA,ks,2,t) for ks in range(8) for t in range(2)]
    V=list(Vl)
    def v(n=1):
        for _ in range(n):
            if V: a(V.pop(0))
    for _ in range(P.get('preB',0)): a('s_nop 7')
    for p in range(3):
        for x in F(p): a(x)
    a('s_waitcnt vmcnt(4)')
    stamp(a,0,diag)
    for x in chk(M): a(x)
    for x in retry(0): a(x)
    posF3=P.get('posF3',4)
    cnt=0; f3=False
    for p in range(3):
        mm=(Q(p)+K(p)) if full else (K(p)+V[:4])
        if not full: V=V[4:]
        c=chk(M+8*(p+1))
        wpos=P.get('wpos',1)
        for i,x in enumerate(mm):
            a(x)
            if cnt==posF3 and not f3:
                for y in F(3): a(y)
                f3=True
            cnt+=1
            if p<2:
                if i==wpos: a(f's_waitcnt vmcnt({(2 if p==0 else 0)+(2 if f3 else 0)})')
                if i>=wpos and c: a(c.pop(0))
        if p<2:
            for x in c: a(x)
            for x in retry(p+1): a(x)
    assert f3
    stamp(a,1,diag)
    f=1 if full else 0
    v(f*P.get('vpre',2))
    a('s_waitcnt vmcnt(0)')
    stamp(a,2,diag)
    c=chk(M+24)
    a(c[0]); a(c[1]); v(f); a(c[2]); a(c[3]); a(c[4]); v(f)
    for x in retry(3): a(x)
    QC=T2; KC=T2+4; QB=T2
    if full:
        q=Q(3); k=K(3)
        for x in q: a(x)
        a(f's_mov_b32 m0, {L_DUMP}')
        a(k[0]); a(f'v_lshl_add_u32 v{T21}, v{LANE16}, 2, {sWB}')
        a(k[1]); a(f'buffer_load_dword v{T21}, {S_WS}, {sWarm} offen sc1 lds')
        a(f's_add_u32 {sHB}, {sHB}, 8192\ns_add_u32 {sHB2}, {sHB2}, 8192')
        cq=cvt4(QC,QA)
        a(k[2]); a(cq[0]); a(k[3]); a(cq[1]); a(cq[2]); a(cq[3])
        for t in range(2): a(f'v_mfma_f32_16x16x16_bf16 {vr(T0+4*t,4)}, {vr(QC+2*t,2)}, {vr(SELT,2)}, 0')
        a(f's_add_u32 {sWarm}, {sWarm}, 524288\ns_min_u32 {sWarm}, {sWarm}, {WS_KV+63*524288}')
    else:
        for x in K(3): a(x)
        v(4)
    for x in cvt4(KC,KA): a(x)
    for t in range(2): a(f'v_mfma_f32_16x16x16_bf16 {vr(T1+4*t,4)}, {vr(KC+2*t,2)}, {vr(SELT,2)}, 0')
    order=[(ks,2*u+t) for u in range(4) for ks in range(2) for t in range(2)]
    def wo_read(i,g):
        ks,t=order[i]
        return [f'ds_read_b128 {vr(g+4*hf,4)}, v{VWO} offset:{((ks*8+t)*2+hf)*1024}' for hf in range(2)]
    if full:
        for x in cvt4(QB,T0): a(x)
        a(f'v_mfma_f32_16x16x32_bf16 {vr(T0,4)}, {vr(KX0,4)}, {vr(QB,4)}, 0')
        a(f'v_mfma_f32_16x16x32_bf16 {vr(T0+4,4)}, {vr(KX1,4)}, {vr(QB,4)}, 0')
    else: v(4)
    for x in cvt4(KM,T1): a(x)
    if not full:
        v(16)
        a(f'buffer_store_dwordx4 {vr(KM,4)}, v{VKV}, {S_WS}, {sPub} offen sc1')
        for x in cvt4(VM,VA): a(x)
        a(f'buffer_store_dwordx4 {vr(VM,4)}, v{VKV}, {S_WS}, {sPub} offen offset:1024 sc1')
        return
    a(f'v_mfma_f32_16x16x32_bf16 {vr(T1,4)}, {vr(KM,4)}, {vr(QB,4)}, 0')
    stamp(a,3,diag)
    a(f'ds_write_b128 v{VSW}, {vr(T0,4)}')
    v()
    a(f'ds_write_b128 v{VSW}, {vr(T0+4,4)} offset:1024')
    a(f'buffer_store_dwordx4 {vr(KM,4)}, v{VKV}, {S_WS}, {sPub} offen sc1')
    v()
    a(f'buffer_load_dwordx4 {vr(KX0,4)}, v{VKV}, {S_WS}, {sKV} offen sc1\nbuffer_load_dwordx4 {vr(KX1,4)}, v{VKV}, {S_WS}, {sKV} offen offset:1024 sc1')
    a(f'ds_write2st64_b64 v{VSW}, {vr(T1,2)}, {vr(T1+2,2)} offset0:4 offset1:6')
    v(4)
    a('s_waitcnt lgkmcnt(0)\ns_barrier')
    stamp(a,4,diag)
    XR=[QA,QA+4,T0,T0+4]
    for wv in range(4): a(f'ds_read_b128 {vr(XR[wv],4)}, v{VSXR} offset:{wv*4096}')
    v()
    for wv in range(4): a(f'ds_read_b64 {vr(T1+2*wv,2)}, v{VSXR} offset:{wv*4096+2048}')
    v()
    for x in wo_read(0,KA): a(x)
    v(16)
    a('s_waitcnt lgkmcnt(8)')
    a(pkadd(QA,QA,QA+4)); a(pkadd(QA+2,QA+2,QA+6))
    a('s_waitcnt lgkmcnt(6)')
    a(pkadd(T0,T0,T0+4)); a(pkadd(T0+2,T0+2,T0+6))
    a('s_waitcnt lgkmcnt(2)')
    a(pkadd(T1,T1,T1+2)); a(pkadd(T1+4,T1+4,T1+6))
    a(pkadd(QA,QA,T0)); a(pkadd(QA+2,QA+2,T0+2)); a(pkadd(T1,T1,T1+4))
    a(f'v_max3_f32 v{MX}, v{QA}, v{QA+1}, v{QA+2}\nv_max3_f32 v{MX}, v{MX}, v{QA+3}, v{T1}\nv_max_f32 v{MX}, v{MX}, v{T1+1}')
    cv=cvt4(VM,VA)
    z=[f'v_mov_b64 {vr(M+i,2)}, 0' for i in range(0,32,2)]
    a(cv[0]); a(cv[1])
    a(f'v_max_f32_dpp v{MX}, v{MX}, v{MX} {DPP}')
    c16=crossmax('v_max_f32',MX,T20,16); c32=crossmax('v_max_f32',MX,T20,32)
    a(c16[0]); a(cv[2]); a(cv[3]); a(c16[1]); a(c16[2])
    r1=wo_read(1,VA)
    a(c32[0]); a(r1[0]); a(r1[1]); a(c32[1]); a(c32[2])
    a(f'v_mul_f32 v{NM}, {sCnst}, v{MX}')
    for r in (QA,QA+1,QA+2,QA+3,T1,T1+1): a(f'v_fma_f32 v{r}, v{r}, {sCnst}, -v{NM}')
    for r in (QA,QA+1,QA+2,QA+3,T1,T1+1): a(f'v_exp_f32 v{r}, v{r}')
    PX=QA+4; PM=T1+2
    a(f'v_cvt_pk_bf16_f32 v{PX}, v{QA}, v{QA+1}\nv_cvt_pk_bf16_f32 v{PX+1}, v{QA+2}, v{QA+3}\nv_cvt_pk_bf16_f32 v{PM}, v{T1}, v{T1+1}')
    a(f'v_mov_b32_dpp v{PX+2}, v{PX} {DPP}\nv_mov_b32_dpp v{PX+3}, v{PX+1} {DPP}\nv_mov_b32_dpp v{PM+1}, v{PM} {DPP}')
    stamp(a,5,diag)
    LXa=T2; LMa=T2+4
    a(f'buffer_store_dwordx4 {vr(VM,4)}, v{VKV}, {S_WS}, {sPub} offen offset:1024 sc1')
    a(f'v_mfma_f32_16x16x32_bf16 {vr(LXa,4)}, {vr(ONES,4)}, {vr(PX,4)}, 0')
    a(f'v_mfma_f32_16x16x16_bf16 {vr(LMa,4)}, {vr(ONES,2)}, {vr(PM,2)}, 0')
    a(f'v_mfma_f32_16x16x32_bf16 {vr(T0,4)}, {vr(VX0,4)}, {vr(PX,4)}, 0'); a(z.pop()); a(z.pop())
    a(f'v_mfma_f32_16x16x32_bf16 {vr(T0+4,4)}, {vr(VX1,4)}, {vr(PX,4)}, 0'); a(z.pop()); a(z.pop())
    a(f'v_mfma_f32_16x16x16_bf16 {vr(T0,4)}, {vr(VM,2)}, {vr(PM,2)}, {vr(T0,4)}'); a(z.pop()); a(z.pop())
    a(f'v_mfma_f32_16x16x16_bf16 {vr(T0+4,4)}, {vr(VM+2,2)}, {vr(PM,2)}, {vr(T0+4,4)}')
    RL=T20
    a(f'v_fma_f32 v{RL}, v{LMa}, 0.5, v{LXa}')
    a(f'v_rcp_f32 v{RL}, v{RL}')
    for x in wo_read(2,QA): a(x)
    a(f'buffer_load_dwordx4 {vr(VX0,4)}, v{VKV}, {S_WS}, {sKV} offen offset:2048 sc1\nbuffer_load_dwordx4 {vr(VX1,4)}, v{VKV}, {S_WS}, {sKV} offen offset:3072 sc1')
    for x in wo_read(3,T2): a(x)
    for i in range(4): a(f'v_pk_mul_f32 {vr(T0+2*i,2)}, {vr(T0+2*i,2)}, {vr(RL,2)} op_sel_hi:[1,0]')
    OP=T1+4
    for x in cvt4(OP,T0): a(x)
    a(f'ds_write_b128 v{VOW}, {vr(OP,4)}')
    stamp(a,6,diag)
    for x in z: a(x)
    a(f'v_mov_b64 {vr(KM,2)}, -1\nv_mov_b64 {vr(KM+2,2)}, -1')
    a(f's_add_u32 {sPub}, {sPub}, 524288\ns_add_u32 {sKV}, {sKV}, 524288')
    a(f'buffer_store_dwordx4 {vr(KM,4)}, v{VALD}, {S_WS}, {sRst} offen{sc}\nbuffer_store_dwordx4 {vr(KM,4)}, v{VALD}, {S_WS}, {sRst} offen offset:1024{sc}')
    a('s_waitcnt lgkmcnt(0)\ns_barrier')
    stamp(a,7,diag)
    OA=T0
    a(f'ds_read_b128 {vr(OA,4)}, v{LANE16} offset:{L_O}\nds_read_b128 {vr(OA+4,4)}, v{LANE16} offset:{L_O+1024}')
    for x in wo_read(4,T1): a(x)
    slot={0:KA,1:VA,2:QA,3:T2,4:T1}
    pend=[('o',0),('o',1),(4,0),(4,1)]
    nxt=5
    def epilogue(u):
        b0=M+8*u; b1=b0+4
        l=[f'v_permlane32_swap_b32 v{b0+r}, v{b1+r}' for r in range(4)]
        l+=[pkadd(b0,b0,b1), pkadd(b0+2,b0+2,b1+2)]
        l+=[f'v_cvt_pk_bf16_f32 v{b0}, v{b0}, v{b0+1}', f'v_cvt_pk_bf16_f32 v{b0+1}, v{b0+2}, v{b0+3}']
        l+=[f'buffer_store_dwordx2 {vr(b0,2)}, v{VAST}, {S_WS}, {sHA0 if u<2 else sHA1} offen offset:{(u&1)*2048}{sc}']
        return l
    epi=[]; delay=0
    for i in range(16):
        ks,t=order[i]
        needs=[('o',ks),(i,1)]
        idx=max([pend.index(x) for x in needs if x in pend],default=-1)
        if idx>=0:
            a(f's_waitcnt lgkmcnt({len(pend)-1-idx})'); pend=pend[idx+1:]
        g=slot[i]
        a(f'v_smfmac_f32_16x16x64_bf16 {vr(M+4*t,4)}, {vr(OA+4*ks,4)}, {vr(g,8)}, v{IDX}')
        if nxt<16:
            for x in wo_read(nxt,g): a(x)
            slot[nxt]=g; pend+=[(nxt,0),(nxt,1)]; nxt+=1
        if delay>0: delay-=1
        else:
            k=0
            while epi and k<P.get('epr',4): a(epi.pop(0)); k+=1
        if i%4==3:
            epi+=epilogue(i//4); delay=P.get('edel',1)
        if i==7: stamp(a,8,diag)
    for x in epi: a(x)
    stamp(a,9,diag)
    RA=T0; RB=T1; R=T2
    def issueA(b): a(f'buffer_load_dwordx4 {vr(b,4)}, v{VALD}, {S_WS}, {sHA0} offen sc1\nbuffer_load_dwordx4 {vr(b+4,4)}, v{VALD}, {S_WS}, {sHA0} offen offset:1024 sc1')
    Lp=a.label('PA'); Ld=a.label('PAd')
    zz=[f'v_mov_b64 {vr(QA+i,2)}, 0' for i in range(0,24,2)]
    a(f's_mov_b32 {sCnt}, 0')
    issueA(RA)
    for x in zz: a(x)
    for _ in range(P.get('gapA',1)): a('s_nop 7')
    issueA(RB)
    a(f'{Lp}:')
    for b in (RA,RB):
        a('s_waitcnt vmcnt(2)')
        a(f'v_mfma_f32_16x16x32_bf16 {vr(R,4)}, {vr(b,4)}, {vr(SELR,4)}, 0\nv_mfma_f32_16x16x32_bf16 {vr(R,4)}, {vr(b+4,4)}, {vr(SELR,4)}, {vr(R,4)}')
        for x in chk(b): a(x)
        a(f's_cbranch_vccz {Ld}')
        if diag: a('s_add_u32 s77, s77, 1')
        issueA(b)
    a(f's_add_u32 {sCnt}, {sCnt}, 1\ns_cmp_lt_u32 {sCnt}, {SPIN}\ns_cbranch_scc1 {Lp}\ns_branch {exit_label}')
    a(f'{Ld}:')
    stamp(a,10,diag)
    a(pkadd(R,R,R+2))
    a(f'v_add_f32 v{R}, v{R}, v{R+1}')
    a(f'v_mov_b32 v{R+1}, v{R}')
    a(f's_mov_b32 {sRst}, {sHA0}')
    a(f's_add_u32 {sHA0}, {sHA0}, 262144')
    a(f'v_permlane16_swap_b32 v{R}, v{R+1}')
    a(f'v_cvt_pk_bf16_f32 v{R}, v{R}, v{R+1}')
    a(f'buffer_store_dword v{R}, v{VBST}, {S_WS}, {sHB} offen{sc}')
    stamp(a,11,diag)
    a(f's_and_b32 {sHA0}, {sHA0}, {NRING*262144-1}\ns_or_b32 {sHA0}, {sHA0}, {WS_HOPA}\ns_add_u32 {sHA1}, {sHA0}, 4096')
    stamp_acc(a,diag)

def team_setup(a):
    a(f'''
    v_and_b32 v61, 15, v60               ; c
    v_lshrrev_b32 v62, 4, v60            ; g
    v_mov_b32 v{IDX}, 0x4444
    v_mov_b32 v63, 0xeeee
    v_cmp_lt_u32 vcc, 7, v61
    v_cndmask_b32 v{IDX}, v{IDX}, v63, vcc
    v_lshlrev_b32 v{LANE16}, 4, v60
    s_lshl_b32 s40, {sWv}, 15
    s_add_u32 s40, s40, {L_WO}
    v_add_u32 v{VWO}, s40, v{LANE16}
    v_lshrrev_b32 v63, 1, v62
    v_lshlrev_b32 v63, 2, v63
    v_lshrrev_b32 v64, 2, v61
    v_add_u32 v63, v63, v64
    v_mul_u32_u24 v66, {256*SWZ}, v63
    s_lshl_b32 s41, {sH}, 6
    s_and_b32 s40, {sWv}, {SWZ}
    s_lshl_b32 s40, s40, 7
    s_xor_b32 s41, s41, s40
    v_xor_b32 v66, s41, v66
    v_lshlrev_b32 v63, 13, v63
    v_and_b32 v64, 3, v61
    v_lshlrev_b32 v64, 4, v64
    v_and_b32 v65, 1, v62
    v_lshlrev_b32 v65, 3, v65
    v_add3_u32 v63, v63, v64, v65
    s_lshl_b32 s40, {sWv}, 16
    v_add3_u32 v{VAST}, s40, v63, v66
    v_lshlrev_b32 v63, 8, v62
    v_and_b32 v64, 3, v61
    v_lshlrev_b32 v64, 6, v64
    v_lshrrev_b32 v65, 2, v61
    v_lshlrev_b32 v65, 4, v65
    v_add3_u32 v63, v63, v64, v65
    s_lshl_b32 s40, {sH}, 2
    s_add_u32 s40, s40, {sWv}
    s_lshl_b32 s40, s40, 11
    v_add_u32 v{VALD}, s40, v63
    v_and_b32 v63, 7, v61                ; i
    v_lshrrev_b32 v64, 1, v62            ; half
    v_lshlrev_b32 v65, 3, v64
    v_add_u32 v65, v65, v63
    v_lshlrev_b32 v65, 4, v65
    s_lshl_b32 s40, {sWv}, 11
    s_lshr_b32 s41, {sH}, 2
    s_lshl_b32 s41, s41, 8
    s_add_u32 s40, s40, s41
    s_and_b32 s41, {sH}, 3
    s_lshl_b32 s41, s41, 2
    s_add_u32 s40, s40, s41
    v_add_u32 v{VBST}, s40, v65
    v_lshrrev_b32 v65, 3, v61
    v_and_b32 v66, 1, v62
    v_lshl_add_u32 v65, v66, 1, v65      ; replica
    v_and_b32 v65, {NREP-1}, v65
    v_mul_u32_u24 v65, {HB_REP}, v65
    v_add_u32 v{VBST}, v{VBST}, v65
    v_lshlrev_b32 v59, 10, v63
    v_lshlrev_b32 v65, 2, v64
    v_add_u32 v59, v59, v65
    s_lshr_b32 s40, {sH}, 3
    s_lshl_b32 s40, s40, 8
    s_lshl_b32 s41, {sWv}, 6
    s_add_u32 s40, s40, s41
    s_and_b32 s41, {sH}, 7
    s_lshl_b32 s41, s41, 3
    s_add_u32 s40, s40, s41
    v_add_u32 v59, s40, v59
    s_mul_i32 s40, {sWv}, {KV_W}
    s_mul_i32 s41, {sH}, {KV_H}
    s_add_u32 {sWB}, s41, s40
    v_add_u32 v{VKV}, {sWB}, v{LANE16}
    s_lshl_b32 s40, {sWv}, 12
    s_add_u32 s40, s40, {L_S}
    v_add_u32 v{VSW}, s40, v{LANE16}
    v_lshlrev_b32 v65, 4, v62
    v_add_u32 v65, v65, v63              ; lane' = i + 16g
    v_lshlrev_b32 v65, 4, v65
    v_lshrrev_b32 v66, 3, v61
    v_lshlrev_b32 v67, 10, v66
    v_add_u32 v67, v67, v65
    v_add_u32 v{VSXR}, {L_S}, v67
    s_lshr_b32 s40, {sWv}, 1
    s_lshl_b32 s40, s40, 10
    s_and_b32 s41, {sWv}, 1
    s_lshl_b32 s41, s41, 7
    s_add_u32 s40, s40, s41
    s_add_u32 s40, s40, {L_O}
    v_add_u32 v{VOW}, s40, v65
    v_add_u32 v67, {L_DUMP}, v{LANE16}
    v_cmp_lt_u32 vcc, 7, v61
    v_cndmask_b32 v{VOW}, v{VOW}, v67, vcc
    v_and_b32 v64, 1, v62
    v_lshlrev_b32 v64, 2, v64
    v_sub_u32 v64, v63, v64
    v_mov_b32 v65, 0x3f80
    v_mov_b32 v66, 0x3f800000
    ''')
    for rg in range(2):
        a(f'''v_cmp_eq_u32 vcc, {2*rg}, v64
        v_cndmask_b32 v{SELT+rg}, 0, v65, vcc
        v_cmp_eq_u32 vcc, {2*rg+1}, v64
        v_cndmask_b32 v{SELT+rg}, v{SELT+rg}, v66, vcc''')
    for rg in range(4):
        a(f'''v_cmp_eq_u32 vcc, {2*rg}, v63
        v_cndmask_b32 v{SELR+rg}, 0, v65, vcc
        v_cmp_eq_u32 vcc, {2*rg+1}, v63
        v_cndmask_b32 v{SELR+rg}, v{SELR+rg}, v66, vcc
        v_mov_b32 v{ONES+rg}, 0x3f803f80''')

def team_kernel(name,P,diag=False,cross=False):
    a=Asm()
    sc=' sc1' if cross else ''
    EXIT=name+'_exit'
    a(f'''
    s_cmp_ge_u32 s2, 256
    s_cbranch_scc1 {EXIT}
    s_getreg_b32 s3, hwreg(HW_REG_XCC_ID)
    s_and_b32 s3, s3, 15
    s_cmp_lg_u32 s3, 0
    s_cbranch_scc1 {EXIT}
    s_load_dwordx4 s[84:87], s[0:1], 8
    s_load_dwordx4 s[88:91], s[0:1], 24
    s_load_dwordx2 s[92:93], s[0:1], 40
    s_load_dwordx4 s[96:99], s[0:1], 112
    v_and_b32 v60, 63, v0
    v_lshrrev_b32 v61, 6, v0
    v_readfirstlane_b32 {sWv}, v61
    s_waitcnt lgkmcnt(0)
    ''')
    srd(a,S_WS,'s98','s99',WS_SIZE); srd(a,S_DBG,'s96','s97',256); srd(a,S_W,'s84','s85',8192)
    L1=a.label('EL')
    a(f'''
    s_cmp_lg_u32 {sWv}, 0
    s_cbranch_scc1 {L1}
    v_mov_b32 v61, 1
    v_mov_b32 v62, 0
    s_mov_b64 exec, 1
    buffer_atomic_add v61, off, {S_DBG}, 0 sc0
    s_waitcnt vmcnt(0)
    ds_write_b32 v62, v61
    s_mov_b64 exec, -1
    s_waitcnt lgkmcnt(0)
    {L1}:
    s_barrier
    v_mov_b32 v62, 0
    ds_read_b32 v61, v62
    s_waitcnt lgkmcnt(0)
    v_readfirstlane_b32 {sH}, v61
    s_barrier
    s_cmp_ge_u32 {sH}, 32
    s_cbranch_scc1 {EXIT}
    ''')
    if diag: a('s_memrealtime s[78:79]')
    team_setup(a)
    def extra():
        a(f'''v_mov_b64 v[56:57], -1
        v_mov_b64 v[54:55], -1
        s_lshl_b32 s40, {sH}, 14
        s_lshl_b32 s41, {sWv}, 12
        s_add_u32 s40, s40, s41
        s_add_u32 s40, s40, {WS_HOPB}''')
        for i in range(4): a(f'buffer_store_dwordx4 v[54:57], v{LANE16}, {S_WS}, s40 offen offset:{i*1024}{sc}')
        for r in range(NRING):
            a(f's_mov_b32 s40, {WS_HOPA+r*262144}')
            for i in range(2): a(f'buffer_store_dwordx4 v[54:57], v{VALD}, {S_WS}, s40 offen offset:{i*1024}{sc}')
        a(f'buffer_load_dword v58, v59, {S_W}, 0 offen')
        return 4+2*NRING+1
    T1m.load_weights(a,[86,88,90,92],3,True,extra,perm=True)
    L2=a.label('TB'); L3=a.label('TBd'); L4=a.label('TBs')
    a(f'''
    s_waitcnt vmcnt(0)
    s_barrier
    s_cmp_lg_u32 {sWv}, 0
    s_cbranch_scc1 {L4}
    v_mov_b32 v61, 1
    s_mov_b64 exec, 1
    buffer_atomic_add v61, off, {S_DBG}, 0 offset:4
    s_mov_b64 exec, -1
    {L4}:
    s_mov_b32 {sCnt}, 0
    {L2}:
    buffer_load_dword v61, off, {S_DBG}, 0 offset:4 sc1
    s_waitcnt vmcnt(0)
    v_readfirstlane_b32 s40, v61
    s_cmp_ge_u32 s40, 32
    s_cbranch_scc1 {L3}
    s_add_u32 {sCnt}, {sCnt}, 1
    s_cmp_lt_u32 {sCnt}, {SPIN}
    s_cbranch_scc1 {L2}
    s_branch {EXIT}
    {L3}:
    s_mov_b32 {sHB}, {WS_HOPB}
    s_mov_b32 {sHB2}, {WS_HOPB+4096}
    s_mov_b32 {sHA0}, {WS_HOPA}
    s_mov_b32 {sHA1}, {WS_HOPA+4096}
    s_mov_b32 {sRst}, {WS_HOPA+(NRING-1)*262144}
    s_mov_b32 {sKV}, {WS_KV}
    s_mov_b32 {sWarm}, {WS_KV+2*524288}
    s_mov_b32 {sPub}, {WS_KM}
    s_mov_b32 {sCnst}, {f2u(SCALE_LOG2E):#x}
    s_mov_b32 {sStep}, 0
    buffer_store_dword v58, v{VBST}, {S_WS}, {sHB} offen{sc}
    ''')
    for i,b in enumerate((KX0,KX1,VX0,VX1)): a(f'buffer_load_dwordx4 {vr(b,4)}, v{VKV}, {S_WS}, {sKV} offen offset:{i*1024} sc1')
    a(f's_add_u32 {sKV}, {sKV}, 524288')
    for i in range(0,24,2): a(f'v_mov_b64 {vr(QA+i,2)}, 0')
    if diag:
        for k in range(14): a(f's_mov_b32 s{64+k}, 0')
        a('s_memrealtime s[80:81]\ns_memtime s[60:61]\ns_waitcnt lgkmcnt(0)\ns_mov_b32 s63, s60')
    LOOP=name+'_loop'
    tail=[]
    a('.p2align 5')
    a(f'{LOOP}:')
    n0=len(a.items)
    step(a,True,cross,EXIT,tail,P,diag)
    a(f's_add_u32 {sStep}, {sStep}, 1\ns_cmp_lt_u32 {sStep}, 63\ns_cbranch_scc1 {LOOP}')
    n1=len(a.items)
    step(a,False,cross,EXIT,tail,P,False)
    if diag:
        a(f'''s_memrealtime s[82:83]
        s_waitcnt lgkmcnt(0)
        s_sub_u32 s78, s80, s78
        s_sub_u32 s79, s82, s80
        s_lshl_b32 s40, {sH}, 2
        s_add_u32 s40, s40, {sWv}
        s_lshl_b32 s40, s40, 6
        s_add_u32 s40, s40, {WS_STAMP}''')
        for k in range(16): a(f'v_mov_b32 v61, s{64+k}\nbuffer_store_dword v61, off, {S_WS}, s40 offset:{4*k}')
    a(f's_waitcnt vmcnt(0)')
    a(f'{EXIT}:')
    a('s_endpgm')
    n2=len(a.items)
    check_waits(a.items[:n1]+a.items[n0:n1]+a.items[n1:n2],name)
    for x in tail: a(x)
    a.fix()
    return a
```

```python
from asmdsl import *
from layout import *
import team as T1m
import team2
from team import srd, vr, Wreg, crossmax, DPP, SPIN, S_WS, S_W, S_DBG, LDS_TOTAL, L_WO
from team2 import *
L_MEM=19456

def body(a0,w,cross,exit_label,tail,P,diag,LOOP,ENTRY,FINAL):
    class W:
        def __call__(self,t):
            for l in t.split('\n'):
                if P.get('nokv') and 'buffer_load_dwordx4' in l and sKV in l: continue
                if P.get('nopub') and 'buffer_store' in l and (sPub in l or sPubV in l): continue
                if P.get('nowarm') and ' lds' in l: continue
                if P.get('nopubv') and 'buffer_store' in l and (sPubV in l): continue
                if P.get('pubmod') and 'buffer_store' in l and (sPub in l or sPubV in l): l=l.replace(' sc1',' '+P['pubmod'])
                if P.get('kvnt') and 'buffer_load' in l and (sKV in l): l=l.replace(' sc1',' sc1 nt')
                if P.get('kvmod') is not None and 'buffer_load' in l and (sKV in l or sWarm in l): l=l.replace(' sc1',' '+P['kvmod'])
                a0(l)
        def label(self,p): return a0.label(p)
    a=W()
    sc=' sc1' if cross else ''
    SM_=P.get('smap',{0:0,1:1,2:2,3:3,4:4,5:5,6:6,7:7,8:8,9:9,10:10,11:11})
    def stamp(a,k,diag):
        if k in SM_: team2.stamp(a,SM_[k],diag)
    def sm(acc,ks,X,t): return f'v_smfmac_f32_16x16x64_bf16 {vr(acc+4*t,4)}, {vr(M+4*ks,4)}, {Wreg(X,ks,t)}, v{IDX}'
    Q=lambda p:[sm(QA,2*p+k,0,t) for k in range(2) for t in range(2)]
    K=lambda p:[sm(KA,2*p+k,1,t) for k in range(2) for t in range(2)]
    V=[sm(VA,ks,2,t) for ks in range(8) for t in range(2)]
    nv3=P.get('nv3',3)
    if w>=2: nv3=0
    Vpost=V[nv3:]
    def v(n=1):
        for _ in range(n):
            if Vpost: a(Vpost.pop(0))
    order=[(ks,2*u+t) for u in range(4) for ks in range(2) for t in range(2)]
    def wo_read(i,g):
        ks,t=order[i]
        return [f'ds_read_b128 {vr(g+4*hf,4)}, v{VWO} offset:{((ks*8+t)*2+hf)*1024}' for hf in range(2)]
    QC=T2; KC=T2+4; QB=T2
    a(f'{LOOP}:')
    k=K(3 if w<2 else 5-w)
    a(k[0]); a(k[1])
    cq=cvt4(QC,QA)
    a(k[2]); a(cq[0]); a(k[3]); a(cq[1]); a(cq[2]); a(cq[3])
    a(f's_cmp_eq_u32 {sStep}, 63')
    for t in range(2): a(f'v_mfma_f32_16x16x16_bf16 {vr(T0+4*t,4)}, {vr(QC+2*t,2)}, {vr(SELT,2)}, 0')
    a(f's_cbranch_scc1 {FINAL}')
    a(f's_add_u32 {sWarm}, {sWarm}, {KV_SEG}\ns_min_u32 {sWarm}, {sWarm}, {WS_KV+63*KV_SEG}')
    for x in cvt4(KC,KA): a(x)
    for t in range(2): a(f'v_mfma_f32_16x16x16_bf16 {vr(T1+4*t,4)}, {vr(KC+2*t,2)}, {vr(SELT,2)}, 0')
    for x in cvt4(QB,T0): a(x)
    a(f'v_mfma_f32_16x16x32_bf16 {vr(T0,4)}, {vr(KX0,4)}, {vr(QB,4)}, 0')
    a(f'v_mfma_f32_16x16x32_bf16 {vr(T0+4,4)}, {vr(KX1,4)}, {vr(QB,4)}, 0')
    for x in cvt4(KM,T1): a(x)
    a(f'v_mfma_f32_16x16x32_bf16 {vr(T1,4)}, {vr(KM,4)}, {vr(QB,4)}, 0')
    stamp(a,0,diag)
    v()
    a(f'ds_write_b128 v{VSW}, {vr(T0,4)}')
    a(f'ds_write_b128 v{VSW}, {vr(T0+4,4)} offset:1024')
    v()
    a(f'ds_write2st64_b64 v{VSW}, {vr(T1,2)}, {vr(T1+2,2)} offset0:4 offset1:6')
    v()
    a(f'buffer_load_dwordx4 {vr(KX0,4)}, v{VKV}, {S_WS}, {sKV} offen sc1')
    v()
    a(f'buffer_load_dwordx4 {vr(KX1,4)}, v{VKV}, {S_WS}, {sKV} offen offset:1024 sc1')
    v(P.get('vw',2))
    a('s_waitcnt lgkmcnt(0)\ns_barrier')
    stamp(a,1,diag)
    XR=[QA,QA+4,T0,T0+4]
    for wv in range(4):
        a(f'ds_read_b128 {vr(XR[wv],4)}, v{VSXR} offset:{wv*4096}')
        if wv&1: v()
    for wv in range(4):
        a(f'ds_read_b64 {vr(T1+2*wv,2)}, v{VSXR} offset:{wv*4096+2048}')
        if wv&1: v()
    for x in wo_read(0,KA): a(x)
    v(16)
    a('s_waitcnt lgkmcnt(8)')
    a(pkadd(QA,QA,QA+4)); a(pkadd(QA+2,QA+2,QA+6))
    a('s_waitcnt lgkmcnt(6)')
    a(pkadd(T0,T0,T0+4)); a(pkadd(T0+2,T0+2,T0+6))
    a(pkadd(QA,QA,T0)); a(pkadd(QA+2,QA+2,T0+2))
    a('s_waitcnt lgkmcnt(2)')
    a(pkadd(T1,T1,T1+2)); a(pkadd(T1+4,T1+4,T1+6))
    a(f'v_max3_f32 v{MX}, v{QA}, v{QA+1}, v{QA+2}')
    a(pkadd(T1,T1,T1+4))
    a(f'v_max3_f32 v{MX}, v{MX}, v{QA+3}, v{T1}\nv_max_f32 v{MX}, v{MX}, v{T1+1}')
    cv=cvt4(VM,VA)
    z=[f'v_mov_b64 {vr(M+i,2)}, 0' for i in range(0,32,2)]
    a(z.pop()); a(z.pop())
    a(f'v_max_f32_dpp v{MX}, v{MX}, v{MX} {DPP}')
    c16=crossmax('v_max_f32',MX,T20,16); c32=crossmax('v_max_f32',MX,T20,32)
    a(c16[0]); a(cv[0]); a(cv[1]); a(c16[1]); a(c16[2])
    a(c32[0]); a(cv[2]); a(cv[3]); a(c32[1]); a(c32[2])
    a(f'v_mul_f32 v{NM}, {sCnst}, v{MX}')
    for r in (QA,QA+1,QA+2,QA+3,T1,T1+1): a(f'v_fma_f32 v{r}, v{r}, {sCnst}, -v{NM}')
    r1=wo_read(1,VA)
    for i,r in enumerate((QA,QA+1,QA+2,QA+3,T1,T1+1)):
        a(f'v_exp_f32 v{r}, v{r}')
    PX=QA+4; PM=T1+2
    a(f'v_cvt_pk_bf16_f32 v{PX}, v{QA}, v{QA+1}\nv_cvt_pk_bf16_f32 v{PX+1}, v{QA+2}, v{QA+3}\nv_cvt_pk_bf16_f32 v{PM}, v{T1}, v{T1+1}')
    a(f'v_mov_b32_dpp v{PX+2}, v{PX} {DPP}\nv_mov_b32_dpp v{PX+3}, v{PX+1} {DPP}\nv_mov_b32_dpp v{PM+1}, v{PM} {DPP}')
    stamp(a,2,diag)
    LXa=T2; LMa=T2+4
    a(r1[0])
    a(f'v_mfma_f32_16x16x32_bf16 {vr(T0,4)}, {vr(VX0,4)}, {vr(PX,4)}, 0'); a(r1[1]); a(z.pop())
    a(f'v_mfma_f32_16x16x32_bf16 {vr(T0+4,4)}, {vr(VX1,4)}, {vr(PX,4)}, 0'); a(z.pop()); a(z.pop())
    a(f'v_mfma_f32_16x16x32_bf16 {vr(LXa,4)}, {vr(ONES,4)}, {vr(PX,4)}, 0'); a(z.pop()); a(z.pop())
    a(f'v_mfma_f32_16x16x16_bf16 {vr(LMa,4)}, {vr(ONES,2)}, {vr(PM,2)}, 0'); a(z.pop()); a(z.pop())
    a(f'v_mfma_f32_16x16x16_bf16 {vr(T0,4)}, {vr(VM,2)}, {vr(PM,2)}, {vr(T0,4)}'); a(z.pop()); a(z.pop())
    a(f'v_mfma_f32_16x16x16_bf16 {vr(T0+4,4)}, {vr(VM+2,2)}, {vr(PM,2)}, {vr(T0+4,4)}')
    for x in wo_read(2,QA): a(x)
    a(z.pop()); a(z.pop()); a(z.pop())
    RL=T20
    a(f'v_fma_f32 v{RL}, v{LMa}, 0.5, v{LXa}')
    a(f'v_rcp_f32 v{RL}, v{RL}')
    a(z.pop())
    for i in range(4): a(f'v_pk_mul_f32 {vr(T0+2*i,2)}, {vr(T0+2*i,2)}, {vr(RL,2)} op_sel_hi:[1,0]')
    OP=T1+4
    for x in cvt4(OP,T0): a(x)
    a(f'ds_write_b128 v{VOW}, {vr(OP,4)}')
    stamp(a,3,diag)
    for x in wo_read(3,T2): a(x)
    for x in z: a(x)
    a(f'buffer_load_dwordx4 {vr(VX0,4)}, v{VKV}, {S_WS}, {sKV} offen offset:2048 sc1\nbuffer_load_dwordx4 {vr(VX1,4)}, v{VKV}, {S_WS}, {sKV} offen offset:3072 sc1')
    a(f'v_mov_b64 {vr(KM,2)}, -1\nv_mov_b64 {vr(KM+2,2)}, -1')
    a(f's_add_u32 {sKV}, {sKV}, {KV_SEG}')
    a(f'buffer_store_dwordx4 {vr(KM,4)}, v{VALD}, {S_WS}, {sRst} offen{sc}\nbuffer_store_dwordx4 {vr(KM,4)}, v{VALD}, {S_WS}, {sRst} offen offset:1024{sc}')
    a(f's_add_u32 {sCnt}, {sHB}, {3*HB_STEP}\ns_and_b32 {sCnt}, {sCnt}, {WS_HOPB+3*HB_STEP}')
    a(f'buffer_store_dword v{KM}, v{VBST}, {S_WS}, {sCnt} offen{sc}')
    a('s_waitcnt lgkmcnt(2)\ns_barrier')
    stamp(a,4,diag)
    OA=T0
    a(f'ds_read_b128 {vr(OA,4)}, v{LANE16} offset:{L_O}\nds_read_b128 {vr(OA+4,4)}, v{LANE16} offset:{L_O+1024}')
    for x in wo_read(4,T1): a(x)
    slot={0:KA,1:VA,2:QA,3:T2,4:T1}
    pend=[(3,0),(3,1),('o',0),('o',1),(4,0),(4,1)]
    nxt=5
    RA=T0; R=T2
    if P.get('posA',[13,16,99,99])[w]<16: RA=M+8 if w==0 else M
    def issueA(b): a(f'buffer_load_dwordx4 {vr(b,4)}, v{VALD}, {S_WS}, {sHA0} offen sc1 ;poll\nbuffer_load_dwordx4 {vr(b+4,4)}, v{VALD}, {S_WS}, {sHA0} offen offset:1024 sc1 ;poll')
    def epilogue(u):
        b0=M+8*u; b1=b0+4
        l=[f'v_permlane32_swap_b32 v{b0+r}, v{b1+r}' for r in range(4)]
        l+=[pkadd(b0,b0,b1), pkadd(b0+2,b0+2,b1+2)]
        l+=[f'v_cvt_pk_bf16_f32 v{b0}, v{b0}, v{b0+1}', f'v_cvt_pk_bf16_f32 v{b0+1}, v{b0+2}, v{b0+3}']
        l+=[f'buffer_store_dwordx2 {vr(b0,2)}, v{VAST}, {S_WS}, {sHA0 if u<2 else sHA1} offen offset:{(u&1)*2048}{sc}']
        return l
    epi=[]; delay=0
    posA=P.get('posA',[13,16,99,99])[w]
    nst=0; issuedA=False; stores_after=0
    def emit_epi(x):
        nonlocal nst,stores_after
        a(x)
        if x.startswith('buffer_store'):
            nst+=1
            if issuedA: stores_after+=1
            if nst==1: stamp(a,5,diag)
    for i in range(16):
        ks,t=order[i]
        needs=[('o',ks),(i,1)]
        idx=max([pend.index(x) for x in needs if x in pend],default=-1)
        if idx>=0:
            a(f's_waitcnt lgkmcnt({len(pend)-1-idx})'); pend=pend[idx+1:]
        g=slot[i]
        a(f'v_smfmac_f32_16x16x64_bf16 {vr(M+4*t,4)}, {vr(OA+4*ks,4)}, {vr(g,8)}, v{IDX}')
        if nxt<16:
            for x in wo_read(nxt,g): a(x)
            slot[nxt]=g; pend+=[(nxt,0),(nxt,1)]; nxt+=1
        if i==posA:
            assert nst>=2 and w<2
            issueA(RA); issuedA=True
        if delay>0: delay-=1
        else:
            kk=0
            while epi and kk<P.get('epr',5): emit_epi(epi.pop(0)); kk+=1
        if i%4==3:
            epi+=epilogue(i//4); delay=P.get('edel',1)
    if posA==16: issueA(RA); issuedA=True
    for x in epi: emit_epi(x)
    stamp(a,6,diag)
    Lp=a.label('PA'); Ld=a.label('PAd')
    zz=[f'v_mov_b64 {vr(QA+i,2)}, 0' for i in range(0,24,2)]
    a(f's_mov_b32 {sCnt}, 0')
    def red(b):
        for x in chk(b): a(x)
        a(f'v_mfma_f32_16x16x32_bf16 {vr(R,4)}, {vr(b,4)}, {vr(SELR,4)}, 0\nv_mfma_f32_16x16x32_bf16 {vr(R,4)}, {vr(b+4,4)}, {vr(SELR,4)}, {vr(R,4)}')
        a(f's_cbranch_vccz {Ld}')
        if diag: a('s_add_u32 s77, s77, 1')
    NA=P.get('NA',3); gA=P.get('gapA',2)
    nissued=1 if issuedA else 0
    pre=P.get('preA',[0,0,0,3])[w]
    fill=list(zz); zz=[]
    if not issuedA:
        k0=min(len(fill),pre*8)
        for x in fill[:k0]: a(x)
        fill=fill[k0:]
        for _ in range(max(0,pre-2)): a('s_nop 7')
        issueA(RA); nissued=1
    first=True
    while nissued<NA:
        if fill:
            for x in fill: a(x)
            fill=[]
            for _ in range(max(0,gA-1)): a('s_nop 7')
        else:
            for _ in range(gA): a('s_nop 7')
        issueA(RA); nissued+=1
    for x in fill: a(x)
    stamp(a,23,diag)
    a(f'{Lp}:')
    a(f's_waitcnt vmcnt({2*(NA-1)})')
    stamp(a,24,diag)
    red(RA)
    if P.get('mask',1): a('s_mov_b64 exec, vcc')
    issueA(RA)
    if P.get('mask',1): a('s_mov_b64 exec, -1')
    a(f's_add_u32 {sCnt}, {sCnt}, 1\ns_cmp_lt_u32 {sCnt}, {SPIN}\ns_cbranch_scc1 {Lp}\ns_branch {exit_label}')
    a(f'{Ld}:')
    stamp(a,7,diag)
    a(pkadd(R,R,R+2))
    a(f'v_add_f32 v{R}, v{R}, v{R+1}')
    a(f'v_mov_b32 v{R+1}, v{R}')
    a(f's_add_u32 {sHB}, {sHB}, {HB_STEP}\ns_and_b32 {sHB}, {sHB}, {WS_HOPB+3*HB_STEP}')
    a(f's_mov_b32 {sRst}, {sHA0}')
    a(f'v_permlane16_swap_b32 v{R}, v{R+1}')
    a(f'v_cvt_pk_bf16_f32 v{R}, v{R}, v{R+1}')
    a(f'buffer_store_dword v{R}, v{VBST}, {S_WS}, {sHB} offen{sc}')
    a(f's_add_u32 {sHA0}, {sHA0}, 262144\ns_and_b32 {sHA0}, {sHA0}, {NRING*262144-1}\ns_or_b32 {sHA0}, {sHA0}, {WS_HOPA}\ns_add_u32 {sHA1}, {sHA0}, 4096')
    a(f's_add_u32 {sStep}, {sStep}, 1')
    stamp(a,25,diag)
    for x in zz: a(x)
    a(f'{ENTRY}:')
    a(f's_add_u32 {sHB2}, {sHB}, {sRep}')
    Fw=[f'buffer_load_dwordx4 {vr(M+8*w+4*i,4)}, v{LANE16}, {S_WS}, {sHB2} offen offset:{i*1024} sc1 ;poll' for i in range(2)]
    Ww=[f'ds_write_b128 v{LANE16}, {vr(M+8*w+4*i,4)} offset:{L_MEM+w*2048+i*1024}' for i in range(2)]
    NB=P.get('NB',3); gB=P.get('gapB',2)
    for _ in range(P.get('preB',[3,3,3,3])[w]): a('s_nop 7')
    nb0=NB if w!=3 else P.get('nb3',2)
    for j in range(nb0):
        if j:
            for _ in range(gB): a('s_nop 7')
        for x in Fw: a(x)
    stamp(a,8,diag)
    def own_check(fill,inter=False):
        Lr=a.label('RT'); Lb=a.label('RB'); Ll=a.label('RL')
        tail.extend([f'{Lr}:', f's_mov_b32 {sCnt}, 0', f'{Ll}:']+(['s_mov_b64 exec, vcc'] if P.get('mask',1) else [])+Fw+(['s_mov_b64 exec, -1'] if P.get('mask',1) else [])+(['s_add_u32 s76, s76, 1'] if diag else [])+[f's_waitcnt vmcnt({2*(NB-1)})']+chk(M+8*w)+Ww+[f's_cbranch_vccz {Lb}',
           f's_add_u32 {sCnt}, {sCnt}, 1', f's_cmp_lt_u32 {sCnt}, {SPIN}', f's_cbranch_scc1 {Ll}', f's_branch {exit_label}'])
        a(f's_waitcnt vmcnt({2*(NB-1) if w<2 else P.get("wB",[0,0,0,2])[w]})')
        if w<2: stamp(a,20,diag)
        c=chk(M+8*w)+Ww; fill=list(fill)
        while c or fill:
            if c: a(c.pop(0))
            if fill and (inter or not c): a(fill.pop(0))
        a(f's_cbranch_vccnz {Lr}\n{Lb}:')
    def MM(p): return [Q(p)[0],Q(p)[1],K(p)[0],K(p)[1],Q(p)[2],Q(p)[3],K(p)[2],K(p)[3]]
    def rds(p): return [f'ds_read_b128 {vr(M+8*p+4*i,4)}, v{LANE16} offset:{L_MEM+p*2048+i*1024}' for i in range(2)]
    if w<2:
        own_check([]); stamp(a,21,diag); a('s_waitcnt lgkmcnt(0)'); stamp(a,22,diag)
    else:
        stamp(a,20,diag); stamp(a,21,diag); stamp(a,22,diag)
    a('s_barrier')
    stamp(a,9,diag)
    if w<2:
        o=1-w
        for x in rds(o): a(x)
        for x in MM(w): a(x)
        a('s_waitcnt lgkmcnt(0)')
        for x in MM(o): a(x)
    else:
        for x in rds(0)+rds(1): a(x)
        for j in range(NB-nb0):
            for x in Fw: a(x)
        mm=MM(0)+MM(1)
        a('s_waitcnt lgkmcnt(3)')
        for x in mm[:4]: a(x)
        a('s_waitcnt lgkmcnt(2)')
        cp=P.get('cpos',[0,0,6,9])[w]
        for i in range(4,cp):
            if i==8: a('s_waitcnt lgkmcnt(0)')
            a(mm[i])
        if cp<=8: a('s_waitcnt lgkmcnt(0)')
        own_check(mm[cp:cp+6],True)
        for x in mm[cp+6:]: a(x)
        a('s_waitcnt lgkmcnt(0)')
    a('s_barrier')
    stamp(a,10,diag)
    if w<2:
        for x in rds(2)+rds(3): a(x)
        for x in V[:nv3]: a(x)
        a('s_waitcnt lgkmcnt(2)')
        first,second=2,3
    else:
        first,second=w,5-w
        for x in rds(second): a(x)
    win=[f'v_lshl_add_u32 v{T21}, v{LANE16}, 2, {sWB}', f's_mov_b32 m0, {L_DUMP}', f's_and_b32 {sCnt}, {sStep}, 31', 's_nop 0', 's_nop 0', 's_nop 0', 's_waitcnt vmcnt(0)', f'buffer_load_dword v{T21}, {S_WS}, {sWarm} offen sc1 lds']
    Lsk=a.label('NP')
    if P.get('fused'):
        Lf=a.label('FB'); Lk=a.label('FK'); Ls=a.label('FS'); Lo=a.label('FO')
        win=win[:-1]+[f's_cmp_eq_u32 {sAll}, 0\ns_cbranch_scc1 {Lf}\n{Lk}:\ns_mov_b32 m0, {L_DUMP}\ns_nop 0\n'+win[-1]]
        tail.extend([f'{Lf}:', f'v_lshrrev_b32 v{T20}, 2, v{LANE16}', f'ds_read_b32 v{MX}, v{T20} offset:{L_FLG+w*256}',
            f's_add_u32 s40, {sStep}, 2', 's_min_u32 s40, s40, 63', 's_mov_b32 s41, 0', 's_waitcnt lgkmcnt(0)', f'{Ls}:',
            f'v_cmp_ne_u32 vcc, 0, v{MX}', 's_nop 3', 's_bitcmp1_b64 vcc, s40', f's_cbranch_scc1 {Lo}',
            f'buffer_load_dword v{MX}, v{T20}, {S_WS}, {sFrow} offen sc1', 's_add_u32 s41, s41, 1', f's_cmp_ge_u32 s41, {SPIN}', f's_cbranch_scc1 {exit_label}',
            's_waitcnt vmcnt(0)', f's_branch {Ls}', f'{Lo}:',
            's_cmp_eq_u64 vcc, -1', f's_cselect_b32 {sAll}, 1, 0', f's_mov_b32 m0, {L_FLG+w*256}', 's_nop 0',
            f'buffer_load_dword v{T20}, {S_WS}, {sFrow} offen sc1 lds', f's_branch {Lk}'])
    for i,x in enumerate(Q(first)+K(first)):
        a(x)
        if win: a(win.pop(0))
    a(f's_cmp_lg_u32 {sCnt}, {sH}')
    a('s_waitcnt lgkmcnt(0)')
    for x in Q(second)[:2]: a(x)
    a(f's_cbranch_scc1 {Lsk}')
    a(f's_lshl_b32 {sCnt}, {sStep}, 13\ns_add_u32 {sCnt}, {sCnt}, {WS_MPUB+w*2048}')
    for i in range(2): a(f'buffer_store_dwordx4 {vr(M+8*w+4*i,4)}, v{LANE16}, {S_WS}, {sCnt} offen offset:{i*1024} sc1')
    a(f'{Lsk}:')
    for x in Q(second)[2:]: a(x)
    stamp(a,11,diag)
    stamp_acc(a,diag)
    a(f's_branch {LOOP}')
    a(f'{FINAL}:')

sRep='s35'; sAll='s30'; sFrow='s32'; L_FLG=27648
def team_main(a,name,P,EXIT,tail,diag=False):
    fused=P.get('fused')
    a("""s_load_dwordx4 s[84:87], s[0:1], 8
    s_load_dwordx4 s[88:91], s[0:1], 24
    s_load_dwordx2 s[92:93], s[0:1], 40
    s_waitcnt lgkmcnt(0)""")
    srd(a,S_W,'s84','s85',8192)
    if diag: a('s_memrealtime s[78:79]')
    team_setup(a)
    def extra():
        a('v_mov_b64 v[56:57], -1\nv_mov_b64 v[54:55], -1')
        for i in range(4):
            a(f's_mov_b32 s40, {WS_HOPB+i*HB_STEP}')
            a(f'buffer_store_dword v54, v{VBST}, {S_WS}, s40 offen sc1')
        for r in range(NRING):
            a(f's_mov_b32 s40, {WS_HOPA+r*262144}')
            for i in range(2): a(f'buffer_store_dwordx4 v[54:57], v{VALD}, {S_WS}, s40 offen offset:{i*1024} sc1')
        a(f'buffer_load_dword v58, v59, {S_W}, 0 offen')
        return 4+2*NRING+1
    T1m.load_weights(a,[86,88,90,92],3,True,extra,perm=True)
    L2=a.label('TB'); L3=a.label('TBd'); L4=a.label('TBs')
    a(f"""
    s_waitcnt vmcnt(0)
    s_barrier
    s_cmp_lg_u32 {sWv}, 0
    s_cbranch_scc1 {L4}
    s_cmp_eq_u32 s3, 0
    s_cselect_b32 s40, 1, 0x10001
    v_mov_b32 v61, s40
    s_mov_b64 exec, 1
    buffer_atomic_add v61, off, {S_DBG}, 0 offset:{D_TEAM}
    s_mov_b64 exec, -1
    {L4}:
    s_mov_b32 {sCnt}, 0
    {L2}:
    buffer_load_dword v61, off, {S_DBG}, 0 offset:{D_TEAM} sc1
    s_waitcnt vmcnt(0)
    v_readfirstlane_b32 s41, v61
    s_and_b32 s40, s41, 0xffff
    s_cmp_ge_u32 s40, 32
    s_cbranch_scc1 {L3}
    s_add_u32 {sCnt}, {sCnt}, 1
    s_cmp_lt_u32 {sCnt}, {SPIN}
    s_cbranch_scc1 {L2}
    s_branch {EXIT}
    {L3}:
    s_lshr_b32 s7, s41, 16
    s_lshl_b32 {sFrow}, {sH}, 8
    s_mov_b32 {sAll}, 0
    """)
    if fused:
        import roles
        roles.poll_ge(a,S_DBG,'0',D_INIT,64,EXIT)
        L5=a.label('TF'); L6=a.label('TFd')
        a(f"""v_lshrrev_b32 v62, 2, v{LANE16}
        s_mov_b32 {sCnt}, 0
        {L5}:
        buffer_load_dword v61, v62, {S_WS}, {sFrow} offen sc1
        s_waitcnt vmcnt(0)
        v_cmp_ne_u32 vcc, 0, v61
        s_nop 3
        s_and_b32 s40, vcc_lo, 7
        s_cmp_eq_u32 s40, 7
        s_cbranch_scc1 {L6}
        s_add_u32 {sCnt}, {sCnt}, 1
        s_cmp_lt_u32 {sCnt}, {SPIN}
        s_cbranch_scc1 {L5}
        s_branch {EXIT}
        {L6}:
        s_lshl_b32 s40, {sWv}, 8
        v_add_u32 v62, s40, v62
        ds_write_b32 v62, v61 offset:{L_FLG}
        s_waitcnt lgkmcnt(0)""")
    a(f"""
    s_mov_b32 {sHB}, {WS_HOPB}
    s_and_b32 s40, {sH}, {NREP-1}
    s_mul_i32 s40, s40, {HB_REP}
    s_lshl_b32 {sRep}, {sWv}, 11
    s_add_u32 {sRep}, {sRep}, s40
    s_mov_b32 {sHA0}, {WS_HOPA}
    s_mov_b32 {sHA1}, {WS_HOPA+4096}
    s_mov_b32 {sRst}, {WS_HOPA+(NRING-1)*262144}
    s_mov_b32 {sKV}, {WS_KV}
    s_mov_b32 {sWarm}, {WS_KV+KV_SEG}
    s_mov_b32 {sCnst}, {f2u(SCALE_LOG2E):#x}
    s_mov_b32 {sStep}, 0
    buffer_store_dword v58, v{VBST}, {S_WS}, {sHB} offen sc1
    v_lshl_add_u32 v{T21}, v{LANE16}, 2, {sWB}
    s_mov_b32 m0, {L_DUMP}
    """)
    for i,b in enumerate((KX0,KX1,VX0,VX1)): a(f'buffer_load_dwordx4 {vr(b,4)}, v{VKV}, {S_WS}, {sKV} offen offset:{i*1024} sc1')
    a(f'buffer_load_dword v{T21}, {S_WS}, {sWarm} offen sc1 lds')
    a(f's_add_u32 {sKV}, {sKV}, {KV_SEG}\ns_add_u32 {sWarm}, {sWarm}, {KV_SEG}')
    for i in range(0,24,2): a(f'v_mov_b64 {vr(QA+i,2)}, 0')
    a('s_waitcnt vmcnt(0)')
    if diag:
        for k in range(14): a(f's_mov_b32 s{64+k}, 0')
        a("""s_memrealtime s[40:41]
        s_waitcnt lgkmcnt(0)
        CAL:
        s_memrealtime s[42:43]
        s_memtime s[100:101]
        s_waitcnt lgkmcnt(0)
        s_cmp_eq_u32 s42, s40
        s_cbranch_scc1 CAL
        s_mov_b32 s101, s42""")
        a('s_memrealtime s[80:81]\ns_mem'+team2.RT+'time s[60:61]\ns_waitcnt lgkmcnt(0)')
        for k in range(NST): a(f's_mov_b32 s{38+2*k}, s60')
        a('s_mov_b32 s63, s60')
    modes=[False,True] if fused else [False]
    if fused: a(f's_cmp_lg_u32 s7, 0\ns_cbranch_scc1 {name}_xsel')
    DONE=name+'_done'
    for cross in modes:
        nm=name+('x' if cross else '')
        if cross: a(f'{name}_xsel:')
        for w in range(3): a(f's_cmp_eq_u32 {sWv}, {w}\ns_cbranch_scc1 {nm}_ent{w}')
        a(f's_branch {nm}_ent3')
    for cross in modes:
        nm=name+('x' if cross else '')
        for w in range(4):
            a('.p2align 5')
            n0=len(a.items)
            body(a,w,cross,EXIT,tail,P,diag,f'{nm}_loop{w}',f'{nm}_ent{w}',f'{nm}_fin{w}')
            a(f's_branch {DONE}')
            it=a.items[n0:]
            e=it.index(f'{nm}_ent{w}:'); f=it.index(f'{nm}_fin{w}:')
            check_waits(it[e:f]+it[:f]+it[:f]+it[:20]+it[f:],f'{nm}{w}')
    a(f'{DONE}:')
    if diag:
        a(f"""s_memrealtime s[82:83]
        s_waitcnt lgkmcnt(0)
        s_sub_u32 s78, s80, s78
        s_sub_u32 s79, s82, s80
        s_lshl_b32 s40, {sH}, 2
        s_add_u32 s40, s40, {sWv}
        s_lshl_b32 s40, s40, 6
        s_add_u32 s40, s40, {WS_STAMP}""")
        for k in range(16): a(f'v_mov_b32 v61, s{64+k}\nbuffer_store_dword v61, off, {S_WS}, s40 offset:{4*k}')
        a(f"""s_add_u32 s40, s40, 8192
        v_mov_b32 v61, s100
        buffer_store_dword v61, off, {S_WS}, s40
        v_mov_b32 v61, s101
        buffer_store_dword v61, off, {S_WS}, s40 offset:4
        s_barrier
        s_lshl_b32 s40, {sWv}, 10
        v_add_u32 v62, s40, v{LANE16}
        ds_read_b128 v[64:67], v62 offset:28672
        s_lshl_b32 s41, {sH}, 12
        s_add_u32 s41, s41, {WS_LOG}
        s_waitcnt lgkmcnt(0)
        buffer_store_dwordx4 v[64:67], v62, {S_WS}, s41 offen""")
```

```python
import sys
from asmdsl import *
from layout import *
NAME='adaLN_cond__memory_aug_recurrent_mem_tr__geglu_ffn__prompt'
HEADER=open('cdna_kernels/'+NAME+'.s.ref').read().split('; Override launch')[0] if len(sys.argv)<0 or True else ''

def build(kernels,launches):
    out=HEADER
    for (k,g,b,l) in launches: out+=f'; @launch kernel={k} grid=({g},1,1) block=({b},1,1) lds={l}\n'
    out+='.amdgcn_target "amdgcn-amd-amdhsa--gfx950"\n.text\n'
    for (k,a,nv,acc,ns) in kernels:
        out+=f'.globl {k}\n.p2align 8\n.type {k},@function\n{k}:\n'+a.text()
    out+='.section .rodata,"a"\n'
    for (k,a,nv,acc,ns) in kernels:
        out+=f'''.p2align 6
.amdhsa_kernel {k}
  .amdhsa_next_free_vgpr {nv}
  .amdhsa_next_free_sgpr {ns}
  .amdhsa_accum_offset {acc}
  .amdhsa_group_segment_fixed_size 0
  .amdhsa_kernarg_size 128
  .amdhsa_user_sgpr_count 2
  .amdhsa_user_sgpr_kernarg_segment_ptr 1
  .amdhsa_system_sgpr_workgroup_id_x 1
  .amdhsa_float_denorm_mode_32 3
.end_amdhsa_kernel
'''
    return out

if __name__=='__main__':
    import team
    mode=sys.argv[1]; dst=sys.argv[2]
    if mode.startswith('team'):
        a=team.team_kernel('team_kernel',diag=('d' in mode[4:]),cross=('x' in mode[4:]))
        open(dst,'w').write(build([('team_kernel',a,512,256,102)],[('team_kernel',256,256,team.LDS_TOTAL)]))
        print('instrs',a.count())
    if mode.startswith('t2'):
        import team2
        for i,P in enumerate(eval(sys.argv[3])):
            a=team2.team_kernel('team_kernel',P,diag=('d' in mode[2:]),cross=('x' in mode[2:]))
            open(dst.replace('.s',f'{i}.s'),'w').write(build([('team_kernel',a,512,256,102)],[('team_kernel',256,256,team.LDS_TOTAL)]))
        print('instrs',a.count())
    if mode.startswith('t3'):
        import mega
        for i,P in enumerate(eval(sys.argv[3])):
            P['tdiag']=('d' in mode[2:])
            a=mega.mega('team_kernel',P,standalone_team=True)
            open(dst.replace('.s',f'{i}.s'),'w').write(build([('team_kernel',a,512,256,102)],[('team_kernel',256,256,team.LDS_TOTAL)]))
        print('instrs',a.count())
    if mode.startswith('mega'):
        import mega
        P=eval(sys.argv[3]); P['fused']=1
        upto=int(sys.argv[4]) if len(sys.argv)>4 else 99
        K=NAME+'_kernel'
        a=mega.mega('m',P,diag=('d' in mode[4:]),upto=upto)
        open(dst,'w').write(build([(K,a,512,256,102)],[(K,256,256,team.LDS_TOTAL)]))
        print('instrs',a.count())
```

```python
WS_FLAGS=0x0
WS_MOD  =0x10000
WS_STAMP=0x18000
WS_HOPB =0x100000
import os
NREP=int(os.environ.get('NREP','1'))
HB_REP=8192+256
HB_STEP=65536
WS_HOPA =0x200000
import os
NRING=int(os.environ.get('NRING','2'))
SWZ=int(os.environ.get('SWZ','1'))
WS_H    =0x400000
WS_X1   =0x600000
WS_H2   =0x800000
WS_G    =0xA00000
WS_Q    =0x2000000
WS_KV   =0x3000000
KV_H=16384
KV_SEG=32*KV_H
KV_W=4096
WS_MPUB =0x20000
WS_P1   =0x6000000
WS_SIZE =0x10000000
SCALE_LOG2E = (128 ** -0.5) * 1.4426950408889634
import struct
def f2u(f): return struct.unpack('<I', struct.pack('<f', f))[0]

F_KV=0
C_P1=8192
C_H2=16384
C_G =24576
D_SLOT=0
D_TEAM=16
D_INIT=80
D_MOD=144
D_LN=208
G_SEG=2*43*1024
WS_LOG=0xF000000
WS_TL=0xF100000
HA_BLK=int(os.environ.get('HABLK','2176'))
HA_SLOT=524288
```

```python
from asmdsl import *
from layout import *
from team import srd, vr, Wpair, L_WO
sH='s20'; sWv='s21'
def perm_u(u): return 2*(2*(u&3)+(u>>3))+((u>>2)&1)

def load_coop(a,ptrs,nmat,with_wo,VWO=2,extra=None,UB=2,AH=28,mod=''):
    srds=['s[44:47]','s[48:51]','s[52:55]','s[56:59]']
    for i,p in enumerate(ptrs): srd(a,srds[i],f's{p}',f's{p+1}',4194304)
    a(f'''
    v_lshrrev_b32 v61, 4, v60            ; row&3
    v_lshlrev_b32 v62, 13, v61
    v_and_b32 v63, 15, v60
    v_lshlrev_b32 v63, 4, v63
    v_lshlrev_b32 v64, 5, v61
    v_xor_b32 v63, v63, v64
    s_and_b32 s40, {sWv}, 1
    s_lshl_b32 s40, s40, 7
    v_xor_b32 v63, s40, v63
    s_lshl_b32 s40, {sH}, 8
    s_lshl_b32 s41, {sWv}, 16
    s_add_u32 s40, s40, s41
    v_add3_u32 v62, v62, v63, s40
    s_lshl_b32 s42, {sWv}, 11
    s_add_u32 s42, s42, {L_WO}
    v_lshrrev_b32 v63, 4, v60            ; g
    v_bfe_u32 v64, v60, 2, 2             ; r
    v_and_b32 v65, 3, v60                ; cc
    v_lshlrev_b32 v66, 3, v63
    v_add_u32 v66, v66, v64
    v_lshlrev_b32 v66, 8, v66            ; (8g+r)*256
    v_and_b32 v67, 1, v63
    v_lshlrev_b32 v67, 2, v67
    v_or_b32 v67, v67, v64               ; f
    s_lshl_b32 s40, {sWv}, 1
    v_xor_b32 v67, s40, v67
    v_lshlrev_b32 v67, 5, v67
    v_lshlrev_b32 v68, 3, v65
    v_add3_u32 v66, v66, v67, v68
    v_add_u32 v66, {L_WO}, v66
    v_xor_b32 v67, 32, v66               ; t=1
    v_add_u32 v73, 0x10000, v66
    v_add_u32 v74, 0x10000, v67
    ''')
    if with_wo:
        a(f'''
    v_lshrrev_b32 v68, 4, v60
    v_lshlrev_b32 v69, 10, v68
    v_and_b32 v68, 1, v68
    v_lshlrev_b32 v68, 5, v68
    v_and_b32 v70, 15, v60
    v_lshlrev_b32 v70, 4, v70
    v_xor_b32 v70, v70, v68
    v_add_u32 v69, v69, v70
    s_lshl_b32 s40, {sH}, 17
    s_lshl_b32 s41, {sWv}, 8
    s_add_u32 s40, s40, s41
    v_add_u32 v69, s40, v69
    v_xor_b32 v70, 64, v69
    v_xor_b32 v71, 128, v69
    v_xor_b32 v72, 192, v69
    s_lshl_b32 s39, {sWv}, 15
    s_add_u32 s39, s39, {L_WO}
    ''')
    NU=nmat*16
    def issue(op):
        if op[0]=='u':
            _,u,j=op
            a(f's_add_u32 m0, s42, {(u%16)*8192+j*1024}\ns_mov_b32 s43, {(u%16)*262144+j*32768}\nbuffer_load_dwordx4 v62, {srds[u//16]}, s43 offen lds{mod}')
        else:
            sg=op[1]; v=['v69','v70','v71','v72'][(sg>>2)&3]
            a(f's_add_u32 m0, s39, {sg*1024}\ns_mov_b32 s43, {sg*4096}\nbuffer_load_dwordx4 {v}, {srds[nmat]}, s43 offen lds{mod}')
    todo=[('u',u,j) for u in range(NU) for j in range(2)]
    ops=[]
    def can(op,done):
        return op[1]-16<done
    while todo and len(ops)<AH and can(todo[0],0): op=todo.pop(0); issue(op); ops.append(op)
    if extra: ops+=['x']*extra()
    for u0 in range(0,NU,UB):
        last=('u',u0+UB-1,1)
        a(f's_waitcnt vmcnt({len(ops)-1-ops.index(last)}) lgkmcnt(0)\ns_barrier')
        k=0
        while todo and can(todo[0],u0) and k<2*UB: op=todo.pop(0); issue(op); ops.append(op); k+=1
        for u in range(u0,u0+UB):
            X=u//16; uu=perm_u(u%16); pos=u%16
            for t in range(2):
                for jh in range(2):
                    a(f'ds_read_b64_tr_b16 {Wpair(X,uu,t,jh)}, v{(66 if pos<8 else 73)+t} offset:{(pos%8)*8192+jh*1024}')
        if with_wo and u0>=NU-16+4 and (u0-(NU-16))%4==0:
            pass
    a('s_waitcnt lgkmcnt(0)\ns_barrier')
    if with_wo:
        for sg in range(32): issue(('o',sg)); ops.append(('o',sg))
        a(f'''
    v_lshrrev_b32 v63, 4, v60
    v_bfe_u32 v64, v60, 2, 2
    v_and_b32 v65, 3, v60
    v_and_b32 v73, 1, v63
    v_lshlrev_b32 v74, 4, v73
    v_lshrrev_b32 v75, 1, v63
    v_lshlrev_b32 v75, 2, v75
    v_add_u32 v74, v74, v75
    v_and_b32 v75, 1, v64
    v_add_u32 v74, v74, v75
    v_lshrrev_b32 v76, 1, v64
    v_lshlrev_b32 v77, 5, v76
    v_add_u32 v74, v74, v77
    v_lshlrev_b32 v74, 8, v74
    v_lshlrev_b32 v73, 1, v73
    v_lshlrev_b32 v76, 2, v76
    v_or3_b32 v75, v75, v73, v76
    v_lshlrev_b32 v75, 5, v75
    v_lshlrev_b32 v65, 3, v65
    v_add3_u32 v74, v74, v75, v65
    v_add_u32 v74, s39, v74
    ''')
        for ks in range(2):
            a(f's_waitcnt vmcnt({16-16*ks})')
            dst=[80,88,96,104,112,120,24,32]
            for t in range(8):
                a(f'v_xor_b32 v75, {t*32}, v74')
                for P,ro in enumerate((0,2,8,10)):
                    a(f'ds_read_b64_tr_b16 {vr(dst[t]+2*P,2)}, v75 offset:{(64*ks+ro)*256}')
            a('s_waitcnt lgkmcnt(0)')
            for t in range(8):
                for hf in range(2):
                    a(f'ds_write_b128 v{VWO}, {vr(dst[t]+4*hf,4)} offset:{((ks*8+t)*2+hf)*1024}')
            a('s_waitcnt lgkmcnt(0)')
```

```python
from asmdsl import *
from layout import *
from team import srd, vr, S_WS, S_DBG, SPIN, LDS_TOTAL
import team4 as team3, roles
from roles import sH, sWv, sRep, sE
NAB=3; NR1=48

def tl(a,k,diag):
    if diag:
        a(f'''s_memrealtime s[82:83]
        s_lshl_b32 s81, s4, 5
        s_add_u32 s81, s81, s19x
        '''.replace('s19x','s99'))
        a(f'''s_lshl_b32 s81, s81, 6
        s_add_u32 s81, s81, {WS_TL}
        s_waitcnt lgkmcnt(0)
        v_mov_b32 v59, s82
        buffer_store_dword v59, off, {S_WS}, s81 offset:{4*k}
        s_waitcnt vmcnt(0)''')

def mega(name,P,diag=False,upto=99,standalone_team=False):
    a=Asm(); tail=[]
    EXIT=name+'_exit'
    C1=a.label('CL'); C2=a.label('CD'); C3=a.label('CW')
    a(f'''
    s_cmp_ge_u32 s2, 256
    s_cbranch_scc1 {EXIT}
    s_load_dwordx4 s[96:99], s[0:1], 112
    s_getreg_b32 s3, hwreg(HW_REG_XCC_ID)
    s_and_b32 s3, s3, 7
    v_and_b32 v60, 63, v0
    v_lshrrev_b32 v61, 6, v0
    v_readfirstlane_b32 {sWv}, v61
    s_waitcnt lgkmcnt(0)
    ''')
    srd(a,S_WS,'s98','s99',WS_SIZE); srd(a,S_DBG,'s96','s97',256)
    a(f'''
    s_cmp_lg_u32 {sWv}, 0
    s_cbranch_scc1 {C3}
    s_mov_b32 s4, s3
    s_mov_b32 s5, 0
    s_mov_b64 exec, 1
    {C1}:
    v_mov_b32 v61, 1
    s_lshl_b32 s6, s4, 5
    buffer_atomic_add v61, off, {S_DBG}, s6 offset:{D_SLOT} sc0
    s_waitcnt vmcnt(0)
    v_readfirstlane_b32 s6, v61
    s_cmp_lt_u32 s6, 32
    s_cbranch_scc1 {C2}
    s_add_u32 s4, s4, 1
    s_and_b32 s4, s4, 7
    s_add_u32 s5, s5, 1
    s_cmp_lt_u32 s5, 8
    s_cbranch_scc1 {C1}
    s_mov_b32 s4, 8
    {C2}:
    s_lshl_b32 s4, s4, 5
    s_add_u32 s4, s4, s6
    v_mov_b32 v61, s4
    v_mov_b32 v62, 0
    ds_write_b32 v62, v61
    s_mov_b64 exec, -1
    s_waitcnt lgkmcnt(0)
    {C3}:
    s_barrier
    v_mov_b32 v62, 0
    ds_read_b32 v61, v62
    s_waitcnt lgkmcnt(0)
    v_readfirstlane_b32 s5, v61
    s_barrier
    s_cmp_ge_u32 s5, 256
    s_cbranch_scc1 {EXIT}
    s_lshr_b32 s4, s5, 5
    s_and_b32 s99, s5, 31
    s_cmp_lt_u32 s5, 32
    s_cbranch_scc1 {name}_team
    ''')
    if standalone_team:
        a(f's_branch {EXIT}')
    else:
        tl(a,0,diag)
        a(f'''s_sub_u32 s5, s5, 32
        s_mul_i32 {sH}, s5, 9363
        s_lshr_b32 {sH}, {sH}, 16
        s_mul_i32 s40, {sH}, 7
        s_sub_u32 {sRep}, s5, s40
        s_cmp_eq_u32 {sRep}, 0
        s_cbranch_scc1 {name}_qkv
        s_cmp_ge_u32 {sRep}, 3
        s_cbranch_scc1 {name}_ln''')
        roles.role_init_mod(a,EXIT)
        a(f's_branch {name}_qkv\n{name}_ln:')
        roles.role_ln1(a,EXIT)
        a(f'{name}_qkv:')
        tl(a,1,diag)
        if upto>=2:
            roles.role_qkv(a,EXIT,(lambda: tl(a,4,True)) if diag else None,P.get('coop',1))
        tl(a,2,diag)
        if upto>=4:
            a(f'''s_cmp_lt_u32 {sRep}, {NAB}
            s_cbranch_scc1 {name}_ab
            s_lshl_b32 {sE}, {sH}, 2
            s_add_u32 {sE}, {sE}, {sRep}
            s_sub_u32 {sE}, {sE}, 3
            s_cmp_lt_u32 {sE}, {NR1}
            s_cbranch_scc1 {name}_r1
            s_sub_u32 {sE}, {sE}, {NR1}
            s_cmp_lt_u32 {sE}, 43
            s_cbranch_scc1 {name}_c
            s_sub_u32 {sE}, {sE}, 43
            s_cmp_lt_u32 {sE}, 32
            s_cbranch_scc0 {EXIT}''')
            if upto>=7: roles.role_d(a,EXIT,sE)
            a(f's_branch {name}_fin\n{name}_c:')
            if upto>=6: roles.role_c(a,EXIT,sE)
            a(f's_branch {name}_fin\n{name}_r1:')
            if upto>=5: roles.role_r1(a,EXIT,sE,NR1)
            a(f's_branch {name}_fin\n{name}_ab:')
            roles.role_ab(a,EXIT,NAB)
            a(f'{name}_fin:')
            tl(a,3,diag)
        a(f's_branch {EXIT}')
    a(f'{name}_team:')
    a(f's_mov_b32 {sH}, s5')
    tl(a,0,diag and not standalone_team)
    if upto>=3:
        if diag and not standalone_team: P['tl']=lambda k: tl(a,k,True)
        team3.team_main(a,name+'_t',P,EXIT,tail,diag=P.get('tdiag',False))
    tl(a,3,diag and not standalone_team)
    a(f's_waitcnt vmcnt(0)\n{EXIT}:\ns_endpgm')
    for x in tail: a(x)
    check_waits([x for x in a.items][:a.items.index(f'{name}_team:')],'workers')
    a.fix()
    return a
```

```python
from asmdsl import *
from layout import *
from team import srd, vr, Wpair, S_WS, S_DBG, L_WO, DPP, SPIN
import team as T1m
sH='s20'; sWv='s21'; sRep='s6'; sE='s5'; sCnt='s23'
import os
TEAMGATE=int(os.environ.get('TG','32'))
LOG2E=1.4426950408889634
def dpp(c): return f'{c} row_mask:0xf bank_mask:0xf'
def cvt2(d,s): return [f'v_cvt_pk_bf16_f32 v{d}, v{s}, v{s+1}', f'v_cvt_pk_bf16_f32 v{d+1}, v{s+2}, v{s+3}']
def perm_u(u): return 2*(2*(u&3)+(u>>3))+((u>>2)&1)
def Wd4(X,u,t):
    uu=perm_u(u); b=((uu>>1)*2+t)*8+(uu&1)*4
    return [f'a[{b}:{b+3}]',f'a[{128+b}:{128+b+3}]',f'v[{128+b}:{128+b+3}]'][X]

def poll_ge(a,srdn,off_expr,imm,target,exit_label,vt=61,st='s40'):
    L=a.label('PL'); D=a.label('PD')
    a(f'''s_mov_b32 {sCnt}, 0
    {L}:
    buffer_load_dword v{vt}, off, {srdn}, {off_expr} offset:{imm} sc1
    s_waitcnt vmcnt(0)
    v_readfirstlane_b32 {st}, v{vt}
    s_cmp_ge_u32 {st}, {target}
    s_cbranch_scc1 {D}
    s_sleep 2
    s_add_u32 {sCnt}, {sCnt}, 1
    s_cmp_lt_u32 {sCnt}, {SPIN}
    s_cbranch_scc1 {L}
    s_branch {exit_label}
    {D}:''')

def poll_wg(a,srdn,off_expr,imm,target,exit_label,vt=61,st='s40',mask=None,slp=2):
    L=a.label('PL'); D=a.label('PD')
    a(f"""s_cmp_lg_u32 {sWv}, 0
    s_cbranch_scc1 {D}
    s_mov_b32 {sCnt}, 0
    {L}:
    buffer_load_dword v{vt}, off, {srdn}, {off_expr} offset:{imm} sc1
    s_waitcnt vmcnt(0)
    v_readfirstlane_b32 {st}, v{vt}""")
    if mask: a(f's_and_b32 {st}, {st}, {mask}')
    a(f"""s_cmp_ge_u32 {st}, {target}
    s_cbranch_scc1 {D}
    s_sleep {slp}
    s_add_u32 {sCnt}, {sCnt}, 1
    s_cmp_lt_u32 {sCnt}, {SPIN}
    s_cbranch_scc1 {L}
    s_branch {exit_label}
    {D}:
    s_barrier""")

def signal_add(a,srdn,off_expr,imm,vt=61):
    L=a.label('SG')
    a(f'''s_waitcnt vmcnt(0)
    s_barrier
    s_cmp_lg_u32 {sWv}, 0
    s_cbranch_scc1 {L}
    v_mov_b32 v{vt}, 1
    s_mov_b64 exec, 1
    buffer_atomic_add v{vt}, off, {srdn}, {off_expr} offset:{imm}
    s_mov_b64 exec, -1
    {L}:''')

def wave_sum(a,regs,t):
    for sh in (1,2,4,8):
        for r in regs: a(dpp(f'v_add_f32_dpp v{r}, v{r}, v{r} row_ror:{sh}'))
    for sw in ('v_permlane16_swap_b32','v_permlane32_swap_b32'):
        for i,r in enumerate(regs): a(f'v_mov_b32 v{t+i}, v{r}')
        for i,r in enumerate(regs): a(f'{sw} v{r}, v{t+i}')
        for i,r in enumerate(regs): a(f'v_add_f32 v{r}, v{r}, v{t+i}')

def unpack(a,d,s,n):
    for i in range(n):
        a(f'v_and_b32 v{d+2*i+1}, 0xffff0000, v{s+i}\nv_lshlrev_b32 v{d+2*i}, 16, v{s+i}')

def mod_piece(a,ncol,sCol):
    ng=ncol//8; nsl=256//ng; kper=512//nsl
    lg=ng.bit_length()-1
    L=a.label('NM')
    a(f"""v_lshrrev_b32 v2, {lg}, v0
    v_mul_u32_u24 v3, {2*kper}, v2""")
    if kper==4: a('buffer_load_dwordx2 v[8:9], v3, s[44:47], 0 offen')
    else: a('buffer_load_dwordx4 v[8:11], v3, s[44:47], 0 offen')
    a(f"""s_mov_b32 s37, {kper*6144}
    v_mul_lo_u32 v3, s37, v2
    v_and_b32 v4, {ng-1}, v0
    v_lshlrev_b32 v4, 4, v4
    v_add_u32 v3, v3, v4
    s_lshl_b32 s37, {sCol}, 1""")
    for k in range(kper):
        a(f'buffer_load_dwordx4 {vr(64+4*k,4)}, v3, s[48:51], s37 offen\ns_add_u32 s37, s37, 6144')
    a(f's_waitcnt vmcnt({kper})')
    unpack(a,16,8,kper//2)
    a(f's_mov_b32 s38, {f2u(-LOG2E):#x}')
    for k in range(kper): a(f'v_mul_f32 v{32+k}, s38, v{16+k}')
    for k in range(kper): a(f'v_exp_f32 v{32+k}, v{32+k}')
    for k in range(kper): a(f'v_add_f32 v{32+k}, 1.0, v{32+k}')
    for k in range(kper): a(f'v_rcp_f32 v{32+k}, v{32+k}')
    a('s_nop 0')
    for k in range(kper): a(f'v_mul_f32 v{16+k}, v{16+k}, v{32+k}')
    for k in range(kper//2): a(f'v_cvt_pk_bf16_f32 v{8+k}, v{16+2*k}, v{17+2*k}')
    unpack(a,16,8,kper//2)
    for k in range(kper):
        a(f's_waitcnt vmcnt({kper-1-k})')
        unpack(a,40,64+4*k,4)
        for i in range(8): a(f'v_mul_f32 v{32+i}, v{16+k}, v{40+i}' if k==0 else f'v_fmac_f32 v{32+i}, v{16+k}, v{40+i}')
    npart=64//ncol; per=nsl//npart
    a(f"""v_lshlrev_b32 v2, 5, v0
    ds_write_b128 v2, v[32:35]
    ds_write_b128 v2, v[36:39] offset:16
    s_waitcnt lgkmcnt(0)
    s_barrier
    s_cmp_lg_u32 {sWv}, 0
    s_cbranch_scc1 {L}
    v_lshlrev_b32 v2, 2, v0""")
    for k in range(per): a(f'ds_read_b32 v{64+k}, v2 offset:{k*256}')
    a('s_waitcnt lgkmcnt(0)')
    st=per//2
    while st>=1:
        for k in range(st): a(f'v_add_f32 v{64+k}, v{64+k}, v{64+k+st}')
        st//=2
    sw=['v_permlane32_swap_b32']+(['v_permlane16_swap_b32'] if npart==4 else [])
    for x in sw: a(f'v_mov_b32 v65, v64\n{x} v64, v65\nv_add_f32 v64, v64, v65')
    a(f"""v_cvt_pk_bf16_f32 v64, v64, v64
    v_lshlrev_b32 v64, 16, v64
    s_lshr_b32 s37, {sCol}, 9
    s_cmp_eq_u32 s37, 1
    s_cselect_b32 s38, 1.0, 0
    s_cmp_eq_u32 s37, 4
    s_cselect_b32 s38, 1.0, s38
    v_add_f32 v64, s38, v64
    v_cvt_pk_bf16_f32 v64, v64, v64
    v_lshlrev_b32 v64, 16, v64
    v_and_b32 v2, {4*ncol-1}, v2
    s_lshl_b32 s37, {sCol}, 2
    s_add_u32 s37, s37, {WS_MOD}
    buffer_store_dword v64, v2, {S_WS}, s37 offen sc1
    {L}:""")

def role_init_mod(a,EXIT):
    a(f"""s_sub_u32 s36, {sRep}, 1
    s_lshl_b32 s36, s36, 5
    s_add_u32 s36, s36, {sH}
    s_load_dwordx4 s[84:87], s[0:1], 88      ; c, w_mod
    s_lshl_b32 s39, s36, 4
    s_waitcnt lgkmcnt(0)""")
    srd(a,'s[44:47]','s84','s85',1024); srd(a,'s[48:51]','s86','s87',512*6144)
    mod_piece(a,16,'s39')
    signal_add(a,S_DBG,'0',D_MOD)
    a(f"""v_lshlrev_b32 v1, 4, v0
    v_mov_b64 v[4:5], -1
    v_mov_b64 v[6:7], -1
    v_mov_b32 v8, 0
    s_lshl_b32 s37, s36, 13
    s_add_u32 s37, s37, {WS_MPUB}
    buffer_store_dwordx4 v[4:7], v1, {S_WS}, s37 offen sc1
    s_add_u32 s37, s37, 4096
    buffer_store_dwordx4 v[4:7], v1, {S_WS}, s37 offen sc1
    v_and_b32 v2, 127, v0
    v_lshlrev_b32 v2, 2, v2
    s_lshl_b32 s37, s36, 9
    buffer_store_dword v8, v2, {S_WS}, s37 offen sc1
    s_lshl_b32 s39, s36, 5
    s_add_u32 s39, s39, 1024""")
    mod_piece(a,32,'s39')
    signal_add(a,S_DBG,'0',D_INIT)

def role_ln1(a,EXIT):
    a(f'''s_load_dwordx2 s[84:85], s[0:1], 0
    s_lshl_b32 s36, {sH}, 2
    s_add_u32 s36, s36, {sRep}
    s_sub_u32 s36, s36, 3
    v_lshlrev_b32 v1, 4, v60
    s_lshl_b32 s37, s36, 14
    s_lshl_b32 s38, {sWv}, 12
    s_add_u32 s37, s37, s38
    s_waitcnt lgkmcnt(0)''')
    srd(a,'s[44:47]','s84','s85',2048*1024)
    for r in range(4): a(f'buffer_load_dwordx4 {vr(8+4*r,4)}, v1, s[44:47], s37 offen offset:{r*1024}')
    a('s_waitcnt vmcnt(0)')
    X=64
    for r in range(4): unpack(a,X+8*r,8+4*r,4)
    S=[24,25,26,27]
    for r in range(4):
        b=X+8*r
        a(f'v_add_f32 v{S[r]}, v{b}, v{b+1}')
        for i in range(2,8): a(f'v_add_f32 v{S[r]}, v{S[r]}, v{b+i}')
    wave_sum(a,S,28)
    a(f's_mov_b32 s38, {f2u(1/512):#x}')
    for r in range(4): a(f'v_mul_f32 v{S[r]}, s38, v{S[r]}')
    for r in range(4):
        for i in range(8): a(f'v_sub_f32 v{X+8*r+i}, v{X+8*r+i}, v{S[r]}')
    for r in range(4):
        b=X+8*r
        a(f'v_mul_f32 v{S[r]}, v{b}, v{b}')
        for i in range(1,8): a(f'v_fmac_f32 v{S[r]}, v{b+i}, v{b+i}')
    wave_sum(a,S,28)
    a(f'v_mov_b32 v28, {f2u(1e-5):#x}')
    for r in range(4): a(f'v_fma_f32 v{S[r]}, v{S[r]}, s38, v28')
    for r in range(4): a(f'v_rsq_f32 v{S[r]}, v{S[r]}')
    for r in range(4):
        for i in range(8): a(f'v_mul_f32 v{X+8*r+i}, v{X+8*r+i}, v{S[r]}')
    poll_wg(a,S_DBG,'0',D_MOD,64,EXIT)
    a(f'''v_lshlrev_b32 v2, 5, v60
    s_mov_b32 s38, {WS_MOD}
    buffer_load_dwordx4 v[32:35], v2, {S_WS}, s38 offen sc1
    buffer_load_dwordx4 v[36:39], v2, {S_WS}, s38 offen offset:16 sc1
    buffer_load_dwordx4 v[40:43], v2, {S_WS}, s38 offen offset:2048 sc1
    buffer_load_dwordx4 v[44:47], v2, {S_WS}, s38 offen offset:2064 sc1
    v_lshrrev_b32 v3, 2, v60
    v_lshlrev_b32 v3, 10, v3
    v_and_b32 v4, 3, v60
    v_lshlrev_b32 v4, 8, v4
    v_add_u32 v3, v3, v4
    s_lshl_b32 s37, s36, 14
    s_lshl_b32 s38, {sWv}, 6
    s_add_u32 s37, s37, s38
    s_add_u32 s37, s37, {WS_H}
    s_waitcnt vmcnt(0)''')
    for r in range(4):
        for i in range(8): a(f'v_fma_f32 v{X+8*r+i}, v{X+8*r+i}, v{40+i}, v{32+i}')
        for i in range(4): a(f'v_cvt_pk_bf16_f32 v{8+4*r+i}, v{X+8*r+2*i}, v{X+8*r+2*i+1}')
        a(f'buffer_store_dwordx4 {vr(8+4*r,4)}, v3, {S_WS}, s37 offen offset:{r*16} sc1')
    signal_add(a,S_DBG,'0',D_LN)
    poll_wg(a,S_DBG,'0',D_TEAM,TEAMGATE,EXIT,mask='0xffff',slp=16)

def role_qkv(a,EXIT,hook=None,coop=1):
    a('s_load_dwordx4 s[84:87], s[0:1], 16\ns_load_dwordx2 s[88:89], s[0:1], 32\ns_waitcnt lgkmcnt(0)')
    if coop:
        import loader
        loader.load_coop(a,[84,86,88],3,False)
    else: T1m.load_weights(a,[84,86,88],3,False,None,perm=True)
    if hook: hook()
    poll_wg(a,S_DBG,'0',D_LN,128,EXIT)
    poll_wg(a,S_DBG,'0',D_INIT,64,EXIT)
    sSeg='s36'; sBuf='s37'; sPrev='s38'; sNext='s42'
    LOOP=a.label('QL'); END=a.label('QE')
    a(f"""v_lshlrev_b32 v1, 4, v60
    s_lshl_b32 s39, {sWv}, 13
    v_add_u32 v2, s39, v1
    s_lshl_b32 s40, {sH}, 14
    s_lshl_b32 s41, {sWv}, 12
    s_add_u32 s40, s40, s41
    v_add_u32 v3, s40, v1
    s_lshr_b32 s40, s40, 1
    v_add_u32 v4, s40, v1
    v_mov_b32 v5, 1
    v_mov_b32 v7, 2
    s_add_u32 s40, {sRep}, 6
    s_cmp_lt_u32 {sRep}, 3
    s_cselect_b32 {sSeg}, {sRep}, s40
    s_mov_b32 {sBuf}, 0
    s_mov_b32 {sPrev}, -1""")
    def dma(seg,buf):
        a(f's_lshl_b32 s40, {seg}, 15\ns_add_u32 s40, s40, {WS_H}\ns_add_u32 s41, {buf}, s39')
        for i in range(8):
            if i%4==0: a(f's_add_u32 m0, s41, {(i//4)*4096}')
            if i==4: a('s_add_u32 s40, s40, 4096')
            a(f'buffer_load_dwordx4 v2, {S_WS}, s40 offen offset:{(i%4)*1024} sc1 lds')
    dma(sSeg,sBuf)
    a('s_waitcnt vmcnt(0)')
    a(f'{LOOP}:')
    a('s_waitcnt vmcnt(2)\ns_barrier')
    a(f"""s_cmp_lt_u32 {sSeg}, 6
    s_cselect_b32 {sNext}, 3, 7
    s_add_u32 {sNext}, {sNext}, {sSeg}
    s_min_u32 s44, {sNext}, 63
    s_xor_b32 s43, {sBuf}, 32768
    v_add_u32 v6, {sBuf}, v1""")
    dma('s44','s43')
    HB=[8,16]
    AQ=64; AK=80; AV=96
    def rd(ks):
        b=HB[ks&1]
        a(f'ds_read_b128 {vr(b,4)}, v6 offset:{ks*1024}\nds_read_b128 {vr(b+4,4)}, v6 offset:{16384+ks*1024}')
    def gemm(mats):
        rd(0)
        for ks in range(16):
            b=HB[ks&1]
            if ks<15: rd(ks+1); a('s_waitcnt lgkmcnt(2)')
            else: a('s_waitcnt lgkmcnt(0)')
            for X,A in mats:
                for t in range(2):
                    for x in range(2):
                        d=vr(A+8*x+4*t,4) if X!=2 else vr(A+8*t+4*x,4)
                        c='0' if ks==0 else d
                        if X!=2: a(f'v_mfma_f32_16x16x32_bf16 {d}, {Wd4(X,ks,t)}, {vr(b+4*x,4)}, {c}')
                        else: a(f'v_mfma_f32_16x16x32_bf16 {d}, {vr(b+4*x,4)}, {Wd4(X,ks,t)}, {c}')
    def out(lst,o0):
        for i,(A,vo,so,off) in enumerate(lst):
            o=o0+4*i
            for x in cvt2(o,A)+cvt2(o+2,A+4): a(x)
            a(f'buffer_store_dwordx4 {vr(o,4)}, v{vo}, {S_WS}, {so} offen offset:{off} sc1')
    gemm(((1,AK),(2,AV)))
    a(f's_lshl_b32 s40, {sSeg}, 19\ns_add_u32 s40, s40, {WS_KV}\ns_lshl_b32 s41, {sSeg}, 18\ns_add_u32 s41, s41, {WS_Q}')
    out([(AK,3,'s40',0),(AK+8,3,'s40',1024),(AV,3,'s40',2048),(AV+8,3,'s40',3072)],24)
    gemm(((0,AQ),))
    L=a.label('QF'); L2=a.label('QG')
    a(f"""s_lshl_b32 s45, {sH}, 8
    s_lshl_b32 s40, {sSeg}, 2
    s_add_u32 s45, s45, s40
    s_waitcnt vmcnt(0)
    s_barrier
    s_cmp_lg_u32 {sWv}, 0
    s_cbranch_scc1 {L}
    s_mov_b64 exec, 1
    buffer_store_dword v5, off, {S_WS}, s45 sc1
    s_cmp_eq_u32 {sPrev}, -1
    s_cbranch_scc1 {L2}
    buffer_store_dword v7, off, {S_WS}, {sPrev} sc1
    {L2}:
    s_mov_b64 exec, -1
    {L}:""")
    out([(AQ,4,'s41',0),(AQ+8,4,'s41',1024)],40)
    a(f"""s_mov_b32 {sPrev}, s45
    s_mov_b32 {sSeg}, {sNext}
    s_xor_b32 {sBuf}, {sBuf}, 32768
    s_cmp_lt_u32 {sSeg}, 64
    s_cbranch_scc1 {LOOP}
    s_waitcnt vmcnt(0)
    s_barrier
    s_cmp_lg_u32 {sWv}, 0
    s_cbranch_scc1 {END}
    s_mov_b64 exec, 1
    buffer_store_dword v7, off, {S_WS}, {sPrev} sc1
    s_mov_b64 exec, -1
    {END}:""")

def lane_consts(a):
    a(f"""v_and_b32 v61, 15, v60
    v_lshrrev_b32 v62, 4, v60
    v_bfe_u32 v63, v60, 2, 2
    v_and_b32 v64, 3, v60
    s_lshl_b32 s42, {sWv}, 15
    s_add_u32 s42, s42, {L_WO}""")

def role_ab(a,EXIT,NREPL):
    from team import Wreg
    a('s_load_dwordx2 s[84:85], s[0:1], 40\ns_waitcnt lgkmcnt(0)\ns_barrier')
    srd(a,'s[44:47]','s84','s85',4194304)
    lane_consts(a)
    a(f"""v_lshlrev_b32 v65, 10, v62
    v_lshlrev_b32 v66, 4, v61
    v_lshlrev_b32 v67, 5, v62
    v_xor_b32 v66, v66, v67
    s_lshl_b32 s40, {sH}, 17
    s_lshl_b32 s41, {sWv}, 8
    s_add_u32 s40, s40, s41
    v_add3_u32 v65, v65, v66, s40
    v_xor_b32 v66, 128, v65""")
    for d in range(32):
        a(f's_add_u32 m0, s42, {d*1024}\ns_mov_b32 s43, {d*4096}\nbuffer_load_dwordx4 v{65+(d&1)}, s[44:47], s43 offen lds')
    a(f"""v_lshlrev_b32 v67, 2, v62
    v_add_u32 v67, v67, v63              ; row = 4g+r
    v_and_b32 v68, 7, v67
    v_lshlrev_b32 v68, 5, v68
    v_lshlrev_b32 v67, 8, v67
    v_lshlrev_b32 v69, 3, v64
    v_add3_u32 v67, v67, v68, v69
    v_add_u32 v67, s42, v67""")
    for ks in range(4):
        a(f's_waitcnt vmcnt({24-8*ks})')
        for t in range(8):
            a(f'v_xor_b32 v68, {t*32}, v67')
            for jh in range(2):
                b=(ks*8+t)*4+2*jh
                a(f'ds_read_b64_tr_b16 a[{b}:{b+1}], v68 offset:{ks*8192+jh*4096}')
    IDX=0; L16=1; SELT=2; VQ=4; VK=5; VP=6; VF=7
    Qf=8; K0=24; K1=40; ONES=56; MEM=64; Vf=64; KMf=80; KA=96; VA=104; VMf=96; SM=112; S0=116; S1=120; TT=124; PX=104; PM=108
    LK=0; LV=4096; LO=8192
    sSeg='s36'; sQt='s37'; sEh='s38'; sC='s39'
    import team4
    team4.sel_consts(a,IDX,SELT)
    a(f"""
    v_lshlrev_b32 v{L16}, 4, v60
    s_and_b32 {sQt}, {sWv}, 1
    s_lshr_b32 {sEh}, {sWv}, 1
    s_lshl_b32 s40, {sH}, 13
    s_lshl_b32 s41, {sQt}, 10
    s_add_u32 s40, s40, s41
    v_add_u32 v{VQ}, s40, v{L16}
    s_lshl_b32 s40, {sH}, 14
    v_add_u32 v{VK}, s40, v{L16}
    v_lshlrev_b32 v65, 10, v61
    v_lshlrev_b32 v66, 4, v62
    s_lshl_b32 s40, {sH}, 15
    s_lshl_b32 s41, {sWv}, 8
    s_add_u32 s40, s40, s41
    v_add3_u32 v{VP}, v65, v66, s40
    v_and_b32 v65, 7, v60
    v_lshlrev_b32 v{VF}, 10, v65
    s_mov_b32 {sC}, {f2u(SCALE_LOG2E):#x}
    s_mov_b32 {sSeg}, {sRep}""")
    for rg in range(4): a(f'v_mov_b32 v{ONES+rg}, 0x3f803f80')
    a('v_lshlrev_b32 v65, 2, v62')
    for r in range(4):
        a(f'v_add_u32 v66, {r}, v65\nv_cmp_le_u32 s[{48+2*r}:{49+2*r}], v66, v61')
    a('s_waitcnt lgkmcnt(0)')
    LOOP=a.label('AL')
    a(f'{LOOP}:')
    a(f's_lshl_b32 s40, {sH}, 8\ns_lshl_b32 s41, {sSeg}, 2\ns_add_u32 s41, s41, s40')
    poll_ge(a,S_WS,'s41',0,2,EXIT,vt=TT)
    a(f's_lshl_b32 s56, {sSeg}, 18\ns_add_u32 s56, s56, {WS_Q}\ns_lshl_b32 s57, {sSeg}, 19\ns_add_u32 s57, s57, {WS_KV}')
    for w2 in range(4):
        if w2==2: a('s_add_u32 s56, s56, 4096')
        a(f'buffer_load_dwordx4 {vr(Qf+4*w2,4)}, v{VQ}, {S_WS}, s56 offen offset:{(w2&1)*2048} sc1')
    for w2 in range(4):
        a(f's_add_u32 s58, s57, {w2*4096}')
        a(f'buffer_load_dwordx4 {vr(K0+4*w2,4)}, v{VK}, {S_WS}, s58 offen sc1\nbuffer_load_dwordx4 {vr(K1+4*w2,4)}, v{VK}, {S_WS}, s58 offen offset:1024 sc1')
    for i in range(0,16,2): a(f'v_mov_b64 {vr(KA+i,2)}, 0')
    L=a.label('MP'); L2=a.label('MF'); D=a.label('MD')
    a(f"""s_lshl_b32 s58, {sSeg}, 13
    s_add_u32 s58, s58, {WS_MPUB}
    s_add_u32 s59, s58, 4096
    s_mov_b32 {sCnt}, 0
    {L}:
    s_add_u32 {sCnt}, {sCnt}, 1
    s_cmp_ge_u32 {sCnt}, {SPIN}
    s_cbranch_scc1 {EXIT}
    buffer_load_dword v{TT}, v{VF}, {S_WS}, s58 offen sc1
    s_waitcnt vmcnt(0)
    v_cmp_eq_u32 vcc, -1, v{TT}
    s_cbranch_vccz {L2}
    s_sleep 4
    s_branch {L}
    {L2}:""")
    for k in range(8): a(f'buffer_load_dwordx4 {vr(MEM+4*k,4)}, v{L16}, {S_WS}, {"s58" if k<4 else "s59"} offen offset:{(k&3)*1024} sc1')
    a('s_waitcnt vmcnt(0)')
    a(f'v_max3_u32 v{TT}, v{MEM}, v{MEM+1}, v{MEM+2}')
    for k in range(3,31,2): a(f'v_max3_u32 v{TT}, v{TT}, v{MEM+k}, v{MEM+k+1}')
    a(f'v_max_u32 v{TT}, v{TT}, v{MEM+31}\nv_cmp_eq_u32 vcc, -1, v{TT}\ns_cbranch_vccnz {L}')
    for X,A in ((1,KA),(2,VA)):
        for ks in range(8):
            for t in range(2): a(f'v_smfmac_f32_16x16x64_bf16 {vr(A+4*t,4)}, {vr(MEM+4*ks,4)}, {Wreg(X,ks,t)}, v{IDX}')
    a(f's_lshl_b32 s58, {sEh}, 13\ns_add_u32 s58, s58, s57\ns_add_u32 s59, s58, 4096')
    for i in range(4): a(f'buffer_load_dwordx4 {vr(Vf+4*i,4)}, v{VK}, {S_WS}, {"s58" if i<2 else "s59"} offen offset:{2048+(i&1)*1024} sc1')
    for x in cvt2(TT,KA)+cvt2(TT+2,KA+4): a(x)
    for t in range(2): a(f'v_mfma_f32_16x16x16_bf16 {vr(SM+4*t,4)}, {vr(TT+2*t,2)}, {vr(SELT,2)}, 0')
    for x in cvt2(KA,VA)+cvt2(KA+2,VA+4): a(x)
    a(f's_lshl_b32 s40, {sWv}, 10\nv_add_u32 v{KA+4}, s40, v{L16}')
    a(f'ds_write_b128 v{KA+4}, {vr(KA,4)} offset:{LV}')
    for x in cvt2(TT,SM)+cvt2(TT+2,SM+4): a(x)
    a(f'ds_write_b128 v{KA+4}, {vr(TT,4)} offset:{LK}')
    a('s_waitcnt lgkmcnt(0)\ns_barrier')
    for w2 in range(4): a(f'ds_read_b128 {vr(KMf+4*w2,4)}, v{L16} offset:{LK+w2*1024}')
    a(f's_lshl_b32 s40, {sEh}, 11\nv_add_u32 v{TT}, s40, v{L16}')
    for i in range(2): a(f'ds_read_b128 {vr(VMf+4*i,4)}, v{TT} offset:{LV+i*1024}')
    for w2 in range(4):
        for S,K in ((S0,K0),(S1,K1)):
            a(f'v_mfma_f32_16x16x32_bf16 {vr(S,4)}, {vr(K+4*w2,4)}, {vr(Qf+4*w2,4)}, {"0" if w2==0 else vr(S,4)}')
    a('s_waitcnt lgkmcnt(2)')
    for w2 in range(4): a(f'v_mfma_f32_16x16x32_bf16 {vr(SM,4)}, {vr(KMf+4*w2,4)}, {vr(Qf+4*w2,4)}, {"0" if w2==0 else vr(SM,4)}')
    Lq=a.label('Q1'); Lm=a.label('QM')
    a(f'v_mov_b32 v{TT}, 0xff800000\ns_cmp_lg_u32 {sQt}, 0\ns_cbranch_scc1 {Lq}')
    for r in range(4): a(f'v_cndmask_b32 v{S0+r}, v{TT}, v{S0+r}, s[{48+2*r}:{49+2*r}]\nv_mov_b32 v{S1+r}, v{TT}')
    a(f's_branch {Lm}\n{Lq}:')
    for r in range(4): a(f'v_cndmask_b32 v{S1+r}, v{TT}, v{S1+r}, s[{48+2*r}:{49+2*r}]')
    a(f'{Lm}:')
    MX=TT+1
    a(f'v_max3_f32 v{MX}, v{S0}, v{S0+1}, v{S0+2}')
    for k in range(S0+3,S1+3,2): a(f'v_max3_f32 v{MX}, v{MX}, v{k}, v{k+1}')
    a(f'v_max3_f32 v{MX}, v{MX}, v{S1+3}, v{SM}\nv_max3_f32 v{MX}, v{MX}, v{SM+1}, v{SM+2}\nv_max_f32 v{MX}, v{MX}, v{SM+3}')
    for sw in ('v_permlane16_swap_b32','v_permlane32_swap_b32'):
        a(f'v_mov_b32 v{TT+2}, v{MX}\n{sw} v{MX}, v{TT+2}\nv_max_f32 v{MX}, v{MX}, v{TT+2}')
    a(f'v_mul_f32 v{MX}, {sC}, v{MX}')
    for k in range(SM,SM+12): a(f'v_fma_f32 v{k}, v{k}, {sC}, -v{MX}')
    for k in range(SM,SM+12): a(f'v_exp_f32 v{k}, v{k}')
    for x in cvt2(PX,S0)+cvt2(PX+2,S1)+cvt2(PM,SM): a(x)
    a('s_waitcnt vmcnt(0) lgkmcnt(0)')
    LX=SM; LM=S0; OA=Qf
    a(f'v_mfma_f32_16x16x32_bf16 {vr(LX,4)}, {vr(ONES,4)}, {vr(PX,4)}, 0')
    a(f'v_mfma_f32_16x16x16_bf16 {vr(LM,4)}, {vr(ONES,2)}, {vr(PM,2)}, 0')
    for i in range(4): a(f'v_mfma_f32_16x16x32_bf16 {vr(OA+4*i,4)}, {vr(Vf+4*i,4)}, {vr(PX,4)}, 0')
    for i in range(4): a(f'v_mfma_f32_16x16x16_bf16 {vr(OA+4*i,4)}, {vr(VMf+2*i,2)}, {vr(PM,2)}, {vr(OA+4*i,4)}')
    a(f'v_fma_f32 v{TT}, v{LM}, 0.5, v{LX}\nv_rcp_f32 v{TT}, v{TT}')
    a(f's_lshl_b32 s40, {sQt}, 12\ns_lshl_b32 s41, {sEh}, 11\ns_add_u32 s40, s40, s41\nv_add_u32 v{TT+2}, s40, v{L16}')
    for i in range(8): a(f'v_pk_mul_f32 {vr(OA+2*i,2)}, {vr(OA+2*i,2)}, {vr(TT,2)} op_sel_hi:[1,0]')
    for i in range(2):
        for x in cvt2(24+4*i,OA+8*i)+cvt2(26+4*i,OA+8*i+4): a(x)
        a(f'ds_write_b128 v{TT+2}, {vr(24+4*i,4)} offset:{LO+i*1024}')
    a('s_waitcnt lgkmcnt(0)\ns_barrier')
    OF=24
    for ks in range(4):
        for q in range(2): a(f'ds_read_b128 {vr(OF+8*ks+4*q,4)}, v{L16} offset:{LO+q*4096+ks*1024}')
    for ks in range(4):
        a(f's_waitcnt lgkmcnt({6-2*ks})')
        for t in range(8):
            for q in range(2):
                d=vr(64+32*q+4*t,4); b=(ks*8+t)*4
                a(f'v_mfma_f32_16x16x32_bf16 {d}, a[{b}:{b+3}], {vr(OF+8*ks+4*q,4)}, {"0" if ks==0 else d}')
    a(f's_lshl_b32 s56, {sSeg}, 20\ns_add_u32 s56, s56, {WS_P1}\ns_add_u32 s57, s56, 16384')
    for q in range(2):
        for p in range(4):
            o=8+4*((q*4+p)%4)
            b=64+32*q+8*p
            for x in cvt2(o,b)+cvt2(o+2,b+4): a(x)
            a(f'buffer_store_dwordx4 {vr(o,4)}, v{VP}, {S_WS}, {"s56" if q==0 else "s57"} offen offset:{p*64} sc1')
    a(f's_lshl_b32 s40, {sSeg}, 7')
    signal_add(a,S_WS,'s40',C_P1-4096 if False else 0,vt=TT) if False else None
    a(f's_add_u32 s40, s40, {C_P1}')
    signal_add(a,S_WS,'s40',0,vt=TT)
    a(f's_add_u32 {sSeg}, {sSeg}, {NREPL}\ns_cmp_lt_u32 {sSeg}, 64\ns_cbranch_scc1 {LOOP}')

def role_r1(a,EXIT,sIdx,NCU):
    a('s_load_dwordx2 s[84:85], s[0:1], 0\ns_waitcnt lgkmcnt(0)')
    srd(a,'s[44:47]','s84','s85',2048*1024)
    lane_consts(a)
    SA=8; SB=12; VL=1; VX=2; VH=3; GA=16; CB=24; SBv=32
    sT='s36'
    a(f"""v_mov_b32 v65, 0x3f80
    v_mov_b32 v66, 0x3f800000
    v_subrev_u32 v67, 8, v61""")
    for base,src in ((SA,61),(SB,67)):
        for rg in range(4):
            a(f"""v_cmp_eq_u32 vcc, {2*rg}, v{src}
            v_cndmask_b32 v{base+rg}, 0, v65, vcc
            v_cmp_eq_u32 vcc, {2*rg+1}, v{src}
            v_cndmask_b32 v{base+rg}, v{base+rg}, v66, vcc""")
    a(f"""v_lshlrev_b32 v65, 15, v62
    v_lshlrev_b32 v66, 4, v61
    s_lshl_b32 s40, {sWv}, 10
    v_add3_u32 v{VL}, v65, v66, s40
    v_lshrrev_b32 v65, 1, v62
    v_lshlrev_b32 v65, 7, v65
    v_lshrrev_b32 v66, 2, v61
    v_lshlrev_b32 v66, 5, v66
    v_and_b32 v67, 1, v62
    v_lshlrev_b32 v67, 4, v67
    v_add3_u32 v65, v65, v66, v67
    v_lshlrev_b32 v66, 2, v64
    v_add_u32 v65, v65, v66              ; col
    v_lshlrev_b32 v66, 1, v65
    v_add_u32 v{VX}, s40, v66
    v_lshrrev_b32 v66, 5, v65
    v_lshlrev_b32 v66, 10, v66
    v_bfe_u32 v67, v65, 3, 2
    v_lshlrev_b32 v67, 8, v67
    v_and_b32 v68, 4, v65
    v_lshlrev_b32 v68, 1, v68
    v_add3_u32 v66, v66, v67, v68
    s_lshl_b32 s40, {sWv}, 4
    v_add_u32 v{VH}, s40, v66
    v_lshlrev_b32 v65, 2, v65
    s_mov_b32 s40, {WS_MOD+2*2048}
    s_mov_b32 s41, {WS_MOD+4*2048}
    s_mov_b32 s43, {WS_MOD+3*2048}""")
    for i,(reg,so) in enumerate(((GA,'s40'),(CB,'s41'),(SBv,'s43'))):
        for ac in range(2): a(f'buffer_load_dwordx4 {vr(reg+4*ac,4)}, v65, {S_WS}, {so} offen offset:{ac*1024} sc1')
    a(f's_mov_b32 {sT}, {sIdx}')
    LOOP=a.label('RL')
    a(f'{LOOP}:')
    a(f"""s_lshl_b32 s48, {sT}, 12
    buffer_load_dwordx2 v[40:41], v{VX}, s[44:47], s48 offen
    buffer_load_dwordx2 v[42:43], v{VX}, s[44:47], s48 offen offset:512
    s_lshr_b32 s49, {sT}, 3
    s_lshl_b32 s50, s49, 7
    s_add_u32 s50, s50, {C_P1}""")
    poll_ge(a,S_WS,'s50',0,32,EXIT,vt=44)
    a(f"""s_lshl_b32 s51, s49, 20
    s_and_b32 s52, {sT}, 7
    s_lshl_b32 s52, s52, 12
    s_add_u32 s51, s51, s52
    s_add_u32 s51, s51, {WS_P1}""")
    D=64
    AC=[48,52]
    seq=[(l,b) for l in range(8) for b in range(4)]
    def ld(i):
        l,b=seq[i]
        if b==0 and l: a(f's_add_u32 s51, s51, {4*32768}')
        a(f'buffer_load_dwordx4 {vr(D+4*(i%16),4)}, v{VL}, {S_WS}, s51 offen offset:{b*256} sc1')
    for i in range(16): ld(i)
    for i in range(32):
        l,b=seq[i]
        a(f's_waitcnt vmcnt({min(15,31-i)})')
        ac=vr(AC[b>>1],4)
        a(f'v_mfma_f32_16x16x32_bf16 {ac}, {vr(SB if b&1 else SA,4)}, {vr(D+4*(i%16),4)}, {"0" if (l==0 and not b&1) else ac}')
        if i+16<32: ld(i+16)
    unpack(a,56,40,4)
    for i in range(8): a(f'v_fma_f32 v{56+i}, v{48+i}, v{GA+i}, v{56+i}')
    for i in range(4): a(f'v_cvt_pk_bf16_f32 v{40+i}, v{56+2*i}, v{57+2*i}')
    a(f's_add_u32 s48, s48, {WS_X1}')
    a(f'buffer_store_dwordx2 v[40:41], v{VX}, {S_WS}, s48 offen sc1\nbuffer_store_dwordx2 v[42:43], v{VX}, {S_WS}, s48 offen offset:512 sc1')
    unpack(a,56,40,4)
    a('v_add_f32 v44, v56, v57')
    for i in range(2,8): a(f'v_add_f32 v44, v44, v{56+i}')
    wave_sum(a,[44],45)
    a(f's_mov_b32 s52, {f2u(1/512):#x}\nv_mul_f32 v44, s52, v44')
    for i in range(8): a(f'v_sub_f32 v{56+i}, v{56+i}, v44')
    a('v_mul_f32 v44, v56, v56')
    for i in range(1,8): a(f'v_fmac_f32 v44, v{56+i}, v{56+i}')
    wave_sum(a,[44],45)
    a(f'v_mov_b32 v45, {f2u(1e-5):#x}\nv_fma_f32 v44, v44, s52, v45\nv_rsq_f32 v44, v44')
    for i in range(8): a(f'v_mul_f32 v{56+i}, v{56+i}, v44')
    for i in range(8): a(f'v_fma_f32 v{56+i}, v{56+i}, v{CB+i}, v{SBv+i}')
    for i in range(4): a(f'v_cvt_pk_bf16_f32 v{44+i}, v{56+2*i}, v{57+2*i}')
    a(f"""s_lshr_b32 s52, {sT}, 2
    s_lshl_b32 s52, s52, 14
    s_and_b32 s53, {sT}, 3
    s_lshl_b32 s53, s53, 6
    s_add_u32 s52, s52, s53
    s_add_u32 s52, s52, {WS_H2}
    s_add_u32 s53, s52, 8192
    buffer_store_dwordx2 v[44:45], v{VH}, {S_WS}, s52 offen sc1
    buffer_store_dwordx2 v[46:47], v{VH}, {S_WS}, s53 offen sc1
    s_add_u32 s50, s50, {C_H2-C_P1}""")
    signal_add(a,S_WS,'s50',0,vt=48)
    a(f's_add_u32 {sT}, {sT}, {NCU}\ns_cmp_lt_u32 {sT}, 512\ns_cbranch_scc1 {LOOP}')

def role_c(a,EXIT,sIdx):
    a('s_load_dwordx4 s[84:87], s[0:1], 64\ns_waitcnt lgkmcnt(0)\ns_barrier')
    srd(a,'s[44:47]','s84','s85',512*2752); srd(a,'s[48:51]','s86','s87',512*2752)
    lane_consts(a)
    a(f"""v_lshrrev_b32 v65, 1, v60
    v_mul_u32_u24 v65, 2752, v65
    v_and_b32 v66, 1, v60
    v_lshlrev_b32 v66, 4, v66
    s_lshl_b32 s40, {sIdx}, 6
    s_lshr_b32 s41, {sWv}, 1
    s_lshl_b32 s41, s41, 5
    s_add_u32 s40, s40, s41
    v_add3_u32 v65, v65, v66, s40""")
    for d in range(32):
        a(f's_add_u32 m0, s42, {d*1024}\ns_mov_b32 s43, {(d%16)*32*2752}\nbuffer_load_dwordx4 v65, {"s[44:47]" if d<16 else "s[48:51]"}, s43 offen lds')
    a(f"""v_lshlrev_b32 v66, 3, v62
    v_add_u32 v66, v66, v63
    v_lshlrev_b32 v66, 5, v66
    v_lshlrev_b32 v67, 3, v64
    v_add3_u32 v66, v66, v67, s42""")
    for d in range(32):
        if d%4==0: a(f's_waitcnt vmcnt({28-d})')
        for jh in range(2): a(f'ds_read_b64_tr_b16 a[{4*d+2*jh}:{4*d+2*jh+1}], v66 offset:{d*1024+jh*128}')
    sSeg='s36'
    a(f"""v_lshlrev_b32 v1, 4, v60
    s_lshl_b32 s39, {sWv}, 13
    v_add_u32 v2, s39, v1
    s_and_b32 s40, {sWv}, 1
    s_lshl_b32 s41, s40, 14
    v_add_u32 v3, s41, v1
    s_mul_i32 s40, s40, {43*1024}
    s_lshl_b32 s41, {sIdx}, 10
    s_add_u32 s40, s40, s41
    s_lshr_b32 s41, {sWv}, 1
    s_lshl_b32 s41, s41, 3
    s_add_u32 s40, s40, s41
    v_add_u32 v4, s40, v1
    s_mov_b32 s52, {f2u(-2*0.7978845608028654*LOG2E):#x}
    v_mov_b32 v5, {f2u(-2*0.7978845608028654*0.044715*LOG2E):#x}
    s_mov_b32 {sSeg}, 0
    s_waitcnt lgkmcnt(0)""")
    LOOP=a.label('CL'); HAVE=a.label('CH'); NOPF=a.label('CN')
    sBuf='s37'; sPre='s38'
    def dma(seg,buf):
        a(f's_lshl_b32 s40, {seg}, 15\ns_add_u32 s40, s40, {WS_H2}\ns_add_u32 s41, {buf}, s39')
        for i in range(8):
            if i%4==0: a(f's_add_u32 m0, s41, {(i//4)*4096}')
            if i==4: a('s_add_u32 s40, s40, 4096')
            a(f'buffer_load_dwordx4 v2, {S_WS}, s40 offen offset:{(i%4)*1024} sc1 lds')
    a(f's_mov_b32 {sBuf}, 0\ns_mov_b32 {sPre}, 0\nv_mov_b32 v7, 65536')
    a(f'{LOOP}:')
    a(f's_lshl_b32 s50, {sSeg}, 7\ns_add_u32 s50, s50, {C_H2}\ns_cmp_lg_u32 {sPre}, 0\ns_cbranch_scc1 {HAVE}')
    poll_ge(a,S_WS,'s50',0,8,EXIT,vt=6)
    dma(sSeg,sBuf)
    def peek(off):
        N=a.label('CN')
        a(f"""buffer_load_dword v6, off, {S_WS}, s50 offset:{off} sc1
        s_waitcnt vmcnt(0)
        s_cmp_lg_u32 {sWv}, 0
        s_cbranch_scc1 {N}
        ds_write_b32 v7, v6
        s_waitcnt lgkmcnt(0)
        {N}:""")
    peek(128)
    a(f"""s_barrier
    {HAVE}:
    ds_read_b32 v6, v7
    v_add_u32 v20, {sBuf}, v3""")
    for ks in range(14): a(f'ds_read_b128 {vr(64+4*ks,4)}, v20 offset:{ks*1024}')
    L=a.label('CP')
    a(f"""s_waitcnt lgkmcnt(14)
    v_readfirstlane_b32 s51, v6
    s_xor_b32 {sBuf}, {sBuf}, 32768
    s_add_u32 s53, {sSeg}, 1
    s_cmp_lt_u32 s53, 64
    s_cselect_b32 s51, s51, 0
    s_cmp_ge_u32 s51, 8
    s_cselect_b32 {sPre}, 1, 0
    s_cbranch_scc0 {L}""")
    dma('s53',sBuf)
    a(f'{L}:')
    for ks in range(16):
        if ks in (1,2): a(f'ds_read_b128 {vr(64+4*(13+ks),4)}, v20 offset:{(13+ks)*1024}')
        a(f's_waitcnt lgkmcnt({13 if ks<3 else 15-ks})')
        for m,d in ((0,8),(1,12)):
            a(f'v_mfma_f32_16x16x32_bf16 {vr(d,4)}, a[{64*m+4*ks}:{64*m+4*ks+3}], {vr(64+4*ks,4)}, {"0" if ks==0 else vr(d,4)}')
    for r in range(4): a(f'v_mul_f32 v{16+r}, v{8+r}, v{8+r}')
    for r in range(4): a(f'v_fma_f32 v{16+r}, v{16+r}, v5, s52')
    for r in range(4): a(f'v_mul_f32 v{16+r}, v{16+r}, v{8+r}')
    for r in range(4): a(f'v_exp_f32 v{16+r}, v{16+r}')
    for r in range(4): a(f'v_mul_f32 v{8+r}, v{8+r}, v{12+r}')
    for r in range(4): a(f'v_add_f32 v{16+r}, 1.0, v{16+r}')
    for r in range(4): a(f'v_rcp_f32 v{16+r}, v{16+r}')
    a('s_nop 0')
    for r in range(4): a(f'v_mul_f32 v{8+r}, v{8+r}, v{16+r}')
    for x in cvt2(12,8): a(x)
    a(f's_mul_i32 s40, {sSeg}, {G_SEG}\ns_add_u32 s40, s40, {WS_G}\nbuffer_store_dwordx2 v[12:13], v4, {S_WS}, s40 offen sc1')
    a('s_barrier')
    peek(256)
    a(f's_add_u32 s50, s50, {C_G-C_H2}')
    signal_add(a,S_WS,'s50',0,vt=6)
    a(f's_add_u32 {sSeg}, {sSeg}, 1\ns_cmp_lt_u32 {sSeg}, 64\ns_cbranch_scc1 {LOOP}')

def role_d(a,EXIT,sIdx):
    a('s_load_dwordx2 s[84:85], s[0:1], 80\ns_load_dwordx2 s[86:87], s[0:1], 104\ns_waitcnt lgkmcnt(0)\ns_barrier')
    srd(a,'s[44:47]','s84','s85',1376*1024); srd(a,'s[48:51]','s86','s87',2048*1024)
    lane_consts(a)
    sDu='s37'; sSeg='s36'
    a(f"""s_and_b32 {sDu}, {sIdx}, 15
    s_lshr_b32 {sSeg}, {sIdx}, 4
    v_lshrrev_b32 v65, 2, v60
    v_lshlrev_b32 v65, 10, v65
    v_lshlrev_b32 v66, 4, v64
    s_mul_i32 s40, {sWv}, {11*32*1024}
    s_lshl_b32 s41, {sDu}, 6
    s_add_u32 s40, s40, s41
    v_add3_u32 v65, v65, v66, s40""")
    for d in range(22):
        a(f's_add_u32 m0, s42, {d*1024}\ns_mov_b32 s43, {d*16384}\nbuffer_load_dwordx4 v65, s[44:47], s43 offen lds')
    a(f"""v_lshlrev_b32 v66, 2, v62
    v_add_u32 v66, v66, v63
    v_lshlrev_b32 v66, 6, v66
    v_lshlrev_b32 v67, 3, v64
    v_add3_u32 v66, v66, v67, s42""")
    for u in range(11):
        a(f's_waitcnt vmcnt({20-2*u})')
        for t in range(2):
            for jh in range(2):
                b=(u*2+t)*4+2*jh
                a(f'ds_read_b64_tr_b16 a[{b}:{b+1}], v66 offset:{u*2048+jh*1024+t*32}')
    a(f"""v_lshlrev_b32 v1, 4, v60
    s_mul_i32 s40, {sWv}, {11*1024}
    v_add_u32 v2, s40, v1
    s_lshl_b32 s40, {sWv}, 12
    v_add_u32 v3, s40, v1
    s_lshl_b32 s40, {sWv}, 10
    v_add_u32 v4, s40, v1
    s_lshr_b32 s40, {sWv}, 1
    s_lshl_b32 s40, s40, 4
    s_lshl_b32 s41, {sDu}, 5
    s_add_u32 s40, s40, s41
    v_lshlrev_b32 v65, 2, v62
    v_add_u32 v65, s40, v65              ; column
    v_lshlrev_b32 v66, 2, v65
    s_mov_b32 s43, {WS_MOD+5*2048}
    buffer_load_dwordx4 v[8:11], v66, {S_WS}, s43 offen sc1
    v_lshlrev_b32 v65, 1, v65
    v_lshlrev_b32 v66, 10, v61
    s_and_b32 s40, {sWv}, 1
    s_lshl_b32 s40, s40, 14
    v_add3_u32 v5, v65, v66, s40
    s_waitcnt lgkmcnt(0)""")
    LOOP=a.label('DL'); SK=a.label('DS'); SK2=a.label('DT')
    a(f'{LOOP}:')
    a(f's_lshl_b32 s52, {sSeg}, 7\ns_add_u32 s52, s52, {C_G}')
    poll_ge(a,S_WS,'s52',0,43,EXIT,vt=6)
    a(f"""s_mul_i32 s40, {sSeg}, {G_SEG}
    s_add_u32 s40, s40, {WS_G}
    s_lshl_b32 s53, {sSeg}, 15
    s_add_u32 s54, s53, {WS_X1}
    buffer_load_dwordx2 v[6:7], v5, {S_WS}, s54 offen sc1""")
    GB=32
    def gl(u,x): return f'buffer_load_dwordx4 {vr(GB+8*u+4*x,4)}, v2, {S_WS}, s{56+x} offen offset:{(u%4)*1024} sc1'
    a(f's_mov_b32 s56, s40\ns_add_u32 s57, s40, {43*1024}')
    for u in range(10):
        if u%4==0 and u: a('s_add_u32 s56, s56, 4096\ns_add_u32 s57, s57, 4096')
        a(gl(u,0)); a(gl(u,1))
    a(f's_cmp_eq_u32 {sWv}, 3\ns_cbranch_scc1 {SK}')
    a(gl(10,0)); a(gl(10,1))
    a(f'{SK}:')
    AC=12
    def mm(u):
        for t in range(2):
            for x in range(2):
                d=vr(AC+8*t+4*x,4); b=(u*2+t)*4
                a(f'v_mfma_f32_16x16x32_bf16 {d}, a[{b}:{b+3}], {vr(GB+8*u+4*x,4)}, {"0" if u==0 else d}')
    for u in range(10):
        a(f's_waitcnt vmcnt({18-2*u})')
        mm(u)
    a(f's_waitcnt vmcnt(0)\ns_cmp_eq_u32 {sWv}, 3\ns_cbranch_scc1 {SK2}')
    mm(10)
    a(f'{SK2}:')
    for i in range(4): a(f'ds_write_b128 v3, {vr(AC+4*i,4)} offset:{i*1024}')
    a('s_waitcnt lgkmcnt(0)\ns_barrier')
    for i in range(4): a(f'ds_read_b128 {vr(32+4*i,4)}, v4 offset:{i*4096}')
    unpack(a,28,6,2)
    a('s_waitcnt lgkmcnt(0)')
    for r in range(4): a(f'v_add_f32 v{32+r}, v{32+r}, v{36+r}\nv_add_f32 v{40+r}, v{40+r}, v{44+r}')
    for r in range(4): a(f'v_add_f32 v{32+r}, v{32+r}, v{40+r}')
    for r in range(4): a(f'v_fma_f32 v{32+r}, v{32+r}, v{8+r}, v{28+r}')
    for x in cvt2(6,32): a(x)
    a(f'buffer_store_dwordx2 v[6:7], v5, s[48:51], s53 offen')
    a(f's_barrier\ns_add_u32 {sSeg}, {sSeg}, 2\ns_cmp_lt_u32 {sSeg}, 64\ns_cbranch_scc1 {LOOP}')
```

```python
from asmdsl import *
from layout import *
import team2, loader
from team import srd, vr, Wreg, crossmax, SPIN, S_WS, S_W, S_DBG, LDS_TOTAL, L_WO
from team2 import chk, cvt4, pkadd, stamp_acc, NST
L_S=0; L_O=16384; L_DUMP=18432; L_MEM=19456; L_FLG=27648
sH='s20'; sWv='s21'; sStep='s22'; sCnt='s23'; sCnst='s24'; sHB='s25'; sHB2='s26'; sHA0='s27'; sHA1='s28'; sT='s29'
sAll='s30'; sKV='s31'; sFrow='s32'; sWarm='s33'; sWB='s34'; sRep='s35'; sPm='s[36:37]'
IDX=0; LANE16=1; VWO=2; VAST=3; SELT=4; VALD=6; VBST=7; SELR=8; ONES=12; VSC=17; VSXR=18; VOW=19; VKV=16
T20=20; T21=21; MX=22; NM=23
KX0=24; KX1=28; VX0=32; VX1=36; KM=40; VM=44; M=48; QA=80; KA=88; VA=96; T0=104; T1=112; T2=120
QP='quad_perm:[2,3,0,1] row_mask:0xf bank_mask:0xf'

def body(a,w,cross,exit_label,tail,P,diag,LOOP,ENTRY,DONE):
    sc=' sc1' if cross else ''
    SM_=P.get('smap',{k:k for k in range(12)})
    def stamp(k):
        if k in SM_: team2.stamp(a,SM_[k],diag)
    def sm(acc,ks,X,t): return f'v_smfmac_f32_16x16x64_bf16 {vr(acc+4*t,4)}, {vr(M+4*ks,4)}, {Wreg(X,ks,t)}, v{IDX}'
    Q=lambda p:[sm(QA,2*p+k,0,t) for k in range(2) for t in range(2)]
    K=lambda p:[sm(KA,2*p+k,1,t) for k in range(2) for t in range(2)]
    V=[sm(VA,ks,2,t) for ks in range(8) for t in range(2)]
    nv0=P.get('nv0',0) if w<2 else 0
    nv3=nv0+(P.get('nv3',3) if w<2 else 0)
    Vpost=V[nv3:]
    def v(n=1):
        for _ in range(n):
            if Vpost: a(Vpost.pop(0))
    order=[(ks,2*u+t) for u in range(4) for ks in range(2) for t in range(2)]
    def wo_read(i,g):
        ks,t=order[i]
        return [f'ds_read_b128 {vr(g+4*hf,4)}, v{VWO} offset:{((ks*8+t)*2+hf)*1024}' for hf in range(2)]
    QC=T2; KC=T2+4; QB=T2
    a(f'{LOOP}:')
    k=K(3 if w<2 else 5-w)
    a(k[0]); a(f'v_lshl_add_u32 v{T21}, v{LANE16}, 2, {sWB}'); a(k[1])
    cq=cvt4(QC,QA)
    a(k[2]); a(cq[0]); a(k[3]); a(cq[1]); a(cq[2]); a(cq[3])
    a('s_waitcnt vmcnt(6)' if P.get('rst')=='Y' else 's_waitcnt vmcnt(4)')
    for t in range(2): a(f'v_mfma_f32_16x16x16_bf16 {vr(T0+4*t,4)}, {vr(QC+2*t,2)}, {vr(SELT,2)}, 0')
    v(P.get('v1',1))
    for x in cvt4(KC,KA): a(x)
    for t in range(2): a(f'v_mfma_f32_16x16x16_bf16 {vr(T1+4*t,4)}, {vr(KC+2*t,2)}, {vr(SELT,2)}, 0')
    for x in cvt4(QB,T0): a(x)
    a('s_waitcnt vmcnt(1)' if P.get('warm')=='Y' else 's_waitcnt vmcnt(0)')
    a(f'v_mfma_f32_16x16x32_bf16 {vr(T0,4)}, {vr(KX0,4)}, {vr(QB,4)}, 0')
    a(f'v_mfma_f32_16x16x32_bf16 {vr(T0+4,4)}, {vr(KX1,4)}, {vr(QB,4)}, 0')
    for x in cvt4(KM,T1): a(x)
    a(f's_mov_b32 m0, {L_DUMP}')
    a(f'v_mfma_f32_16x16x32_bf16 {vr(T1,4)}, {vr(KM,4)}, {vr(QB,4)}, 0')
    stamp(0)
    v()
    a(f'ds_write_b128 v{LANE16}, {vr(T0,4)} offset:{L_S+w*4096}')
    a(f'ds_write_b128 v{LANE16}, {vr(T0+4,4)} offset:{L_S+w*4096+1024}')
    v()
    a(f'ds_write_b64 v{LANE16}, {vr(T1,2)} offset:{L_S+w*4096+2048}')
    v()
    warm=f'buffer_load_dword v{T21}, {S_WS}, {sWarm} offen sc1 lds'
    Lsl=a.label('SL'); Lbk=a.label('SB')
    a(f's_lshl_b32 {sT}, {sStep}, 13\ns_add_u32 {sT}, {sT}, {WS_MPUB+w*2048}\ns_mov_b64 exec, {sPm}')
    for i in range(2): a(f'buffer_store_dwordx4 {vr(M+8*w+4*i,4)}, v{LANE16}, {S_WS}, {sT} offen offset:{i*1024} sc1')
    a(f's_mov_b64 exec, -1\ns_cmp_eq_u32 {sAll}, 0')
    v()
    a(f's_cbranch_scc1 {Lsl}\n{Lbk}:')
    if P.get('warm','S')=='S': a(warm)
    nvm=1
    t=[f'{Lsl}:']
    Ls=a.label('FS'); Lo=a.label('FO')
    t+=[f'v_lshrrev_b32 v{T20}, 2, v{LANE16}', f'ds_read_b32 v{MX}, v{T20} offset:{L_FLG+w*256}',
        f's_add_u32 s40, {sStep}, 2', 's_min_u32 s40, s40, 63', 's_mov_b32 s41, 0', 's_waitcnt lgkmcnt(0)', f'{Ls}:',
        f'v_cmp_ne_u32 vcc, 0, v{MX}', 's_nop 3', 's_bitcmp1_b64 vcc, s40', f's_cbranch_scc1 {Lo}',
        f'buffer_load_dword v{MX}, v{T20}, {S_WS}, {sFrow} offen sc1', 's_add_u32 s41, s41, 1', f's_cmp_ge_u32 s41, {SPIN}', f's_cbranch_scc1 {exit_label}',
        's_waitcnt vmcnt(0)', f's_branch {Ls}', f'{Lo}:',
        's_cmp_eq_u64 vcc, -1', f's_cselect_b32 {sAll}, 1, 0', f's_mov_b32 m0, {L_FLG+w*256}', 's_nop 0',
        f'buffer_load_dword v{T20}, {S_WS}, {sFrow} offen sc1 lds', f's_mov_b32 m0, {L_DUMP}', f's_branch {Lbk}']
    tail.extend(t)
    v(P.get('vw',2))
    a('s_waitcnt lgkmcnt(0)\ns_barrier')
    stamp(1)
    XR=[QA,QA+4,T0,T0+4]
    oth=[x for x in range(4) if x!=w]
    for wv in range(4):
        a(f'ds_read_b128 {vr(XR[wv],4)}, v{VSXR} offset:{wv*4096}')
        if wv&1: v()
    for j,wv in enumerate(oth):
        a(f'ds_read_b64 {vr(T1+2+2*j,2)}, v{LANE16} offset:{L_S+wv*4096+2048}')
    v()
    for x in wo_read(2,KA): a(x)
    v()
    for x in wo_read(3,KX0): a(x)
    rr=wo_read(4,T2)
    v(); a(rr[0]); v(); a(rr[1])
    v(16)
    a(f's_add_u32 {sWarm}, {sWarm}, {KV_SEG}')
    a('s_waitcnt lgkmcnt(11)')
    a(pkadd(QA,QA,QA+4)); a(pkadd(QA+2,QA+2,QA+6))
    a('s_waitcnt lgkmcnt(9)')
    a(pkadd(T0,T0,T0+4)); a(pkadd(T0+2,T0+2,T0+6))
    a(pkadd(QA,QA,T0)); a(pkadd(QA+2,QA+2,T0+2))
    a('s_waitcnt lgkmcnt(6)')
    a(pkadd(T1,T1,T1+2)); a(pkadd(T1+4,T1+4,T1+6))
    a(f'v_max3_f32 v{MX}, v{QA}, v{QA+1}, v{QA+2}')
    a(pkadd(T1,T1,T1+4))
    a(f'v_max3_f32 v{MX}, v{MX}, v{QA+3}, v{T1}\nv_max_f32 v{MX}, v{MX}, v{T1+1}')
    cv=cvt4(VM,VA)
    z=[f'v_mov_b64 {vr(M+i,2)}, 0' for i in range(0,16,2)]
    z2=[f'v_mov_b64 {vr(M+i,2)}, 0' for i in range(16,32,2)]
    r0=wo_read(0,M+16); r1=wo_read(1,M+24); r5=wo_read(5,VA)
    a(r0[0]); a(r0[1])
    a(f'v_max_f32_dpp v{MX}, v{MX}, v{MX} {QP}')
    c16=crossmax('v_max_f32',MX,T20,16); c32=crossmax('v_max_f32',MX,T20,32)
    a(c16[0]); a(cv[0]); a(cv[1]); a(c16[1]); a(c16[2])
    a(c32[0]); a(cv[2]); a(cv[3]); a(c32[1]); a(c32[2])
    a(f'v_mul_f32 v{NM}, {sCnst}, v{MX}')
    for r in (QA,QA+1,QA+2,QA+3,T1,T1+1): a(f'v_fma_f32 v{r}, v{r}, {sCnst}, -v{NM}')
    ex=r1+r5
    for i,r in enumerate((QA,QA+1,QA+2,QA+3,T1,T1+1)):
        a(f'v_exp_f32 v{r}, v{r}')
        if P.get('exi',0): a(ex.pop(0))
    PX=QA+4; PM=T1+2
    a(f'v_cvt_pk_bf16_f32 v{PX}, v{QA}, v{QA+1}\nv_cvt_pk_bf16_f32 v{PX+1}, v{QA+2}, v{QA+3}\nv_cvt_pk_bf16_f32 v{PM}, v{T1}, v{T1+1}')
    a(f'v_mov_b32_dpp v{PX+2}, v{PX} {QP}\nv_mov_b32_dpp v{PX+3}, v{PX+1} {QP}\nv_cvt_pk_bf16_f32 v{PM+1}, v{T1}, v{T1+1}')
    stamp(2)
    LA=KM
    a(f'v_cvt_pk_bf16_f32 v{PM+2}, v{T1}, v{T1+1}')
    def zf(n):
        for _ in range(n):
            if ex: a(ex.pop(0))
            elif z: a(z.pop())
    a(f'v_mfma_f32_16x16x32_bf16 {vr(LA,4)}, {vr(ONES,4)}, {vr(PX,4)}, 0'); a(f'v_mov_b32 v{PM+3}, 0'); zf(1)
    a(f'v_mfma_f32_16x16x32_bf16 {vr(T0,4)}, {vr(VX0,4)}, {vr(PX,4)}, 0'); zf(2)
    a(f'v_mfma_f32_16x16x16_bf16 {vr(LA,4)}, {vr(ONES,2)}, {vr(PM+2,2)}, {vr(LA,4)}'); zf(2)
    a(f'v_mfma_f32_16x16x32_bf16 {vr(T0+4,4)}, {vr(VX1,4)}, {vr(PX,4)}, 0'); zf(2)
    a(f'v_mfma_f32_16x16x16_bf16 {vr(T0,4)}, {vr(VM,2)}, {vr(PM,2)}, {vr(T0,4)}'); zf(2)
    a(f'v_mfma_f32_16x16x16_bf16 {vr(T0+4,4)}, {vr(VM+2,2)}, {vr(PM,2)}, {vr(T0+4,4)}')
    RL=T20
    a(f'v_rcp_f32 v{RL}, v{LA}')
    zf(16)
    a(f'v_mov_b64 {vr(KM,2)}, -1\nv_mov_b64 {vr(KM+2,2)}, -1')
    for i in range(4): a(f'v_pk_mul_f32 {vr(T0+2*i,2)}, {vr(T0+2*i,2)}, {vr(RL,2)} op_sel_hi:[1,0]')
    OP=T1+4
    for x in cvt4(OP,T0): a(x)
    a(f'ds_write_b128 v{VOW}, {vr(OP,4)}')
    stamp(3)
    for x in wo_read(6,QA)+wo_read(7,VX0): a(x)
    if P.get('rst','O')=='O':
        a(f's_xor_b32 {sT}, {sHA0}, 262144')
        a(f'buffer_store_dwordx4 {vr(KM,4)}, v{VALD}, {S_WS}, {sT} offen{sc}\nbuffer_store_dwordx4 {vr(KM,4)}, v{VALD}, {S_WS}, {sT} offen offset:1024{sc}')
    a(f's_add_u32 {sT}, {sHB}, {3*HB_STEP}\ns_and_b32 {sT}, {sT}, {WS_HOPB+3*HB_STEP}')
    a(f'buffer_store_dword v{KM}, v{VBST}, {S_WS}, {sT} offen{sc}')
    a(f's_min_u32 {sWarm}, {sWarm}, {WS_KV+63*KV_SEG}\ns_add_u32 {sKV}, {sKV}, {0 if P.get("samekv") else KV_SEG}')
    a('s_waitcnt lgkmcnt(4)\ns_barrier')
    stamp(4)
    OA=T0
    a(f'ds_read_b128 {vr(OA,4)}, v{LANE16} offset:{L_O}\nds_read_b128 {vr(OA+4,4)}, v{LANE16} offset:{L_O+1024}')
    for x in wo_read(8,T1): a(x)
    slot={0:M+16,1:M+24,2:KA,3:KX0,4:T2,5:VA,6:QA,7:VX0,8:T1}
    pend=[(6,0),(6,1),(7,0),(7,1),('o',0),('o',1),(8,0),(8,1)]
    nxt=9
    posA=P.get('posA',[99,99,99,99])[w]
    RA=KA if posA<99 else T0; R=T2
    def issueA(b): a(f'buffer_load_dwordx4 {vr(b,4)}, v{VALD}, {S_WS}, {sHA0} offen sc1 ;poll\nbuffer_load_dwordx4 {vr(b+4,4)}, v{VALD}, {S_WS}, {sHA0} offen offset:1024 sc1 ;poll')
    def prefill(b): return [f'v_mov_b64 {vr(b+i,2)}, -1' for i in range(0,8,2)]
    def epilogue(u):
        b0=M+8*u; b1=b0+4
        return [pkadd(b0,b0,b0+2), pkadd(b1,b1,b1+2), f'v_cvt_pk_bf16_f32 v{b0}, v{b0}, v{b0+1}', f'v_cvt_pk_bf16_f32 v{b0+1}, v{b1}, v{b1+1}',
                f'buffer_store_dwordx2 {vr(b0,2)}, v{VAST}, {S_WS}, {sHA0 if u<2 else sHA1} offen offset:{(u&1)*2048}{sc}']
    epi=[]; delay=0; nst=0; issuedA=False
    def emit_epi(x):
        nonlocal nst
        a(x)
        if x.startswith('buffer_store'):
            nst+=1
            if nst==1: stamp(5)
    rq=[]
    RPS=P.get('rps',[0,0,2,2,1,1,1,1,1,1,1,1,1,1,0,0])
    for i in range(16):
        ks,t=order[i]
        while any(f==i for f,h,x in rq):
            f,h,x=rq.pop(0); a(x); pend.append((f,h))
        needs=[('o',ks),(i,1),(i,0)]
        idx=max([pend.index(x) for x in needs if x in pend],default=-1)
        if idx>=0:
            a(f's_waitcnt lgkmcnt({len(pend)-1-idx})'); pend=pend[idx+1:]
        g=slot[i]
        a(f'v_smfmac_f32_16x16x64_bf16 {vr(M+4*t,4)}, {vr(OA+4*ks,4)}, {vr(g,8)}, v{IDX}')
        if nxt<16 and i>=2:
            rq+=[(nxt,h,x) for h,x in enumerate(wo_read(nxt,g))]
            slot[nxt]=g; nxt+=1
        for _ in range(RPS[i]):
            if rq: f,h,x=rq.pop(0); a(x); pend.append((f,h))
        if i==posA:
            assert i>=11
            for x in prefill(RA): a(x)
            issueA(RA); issuedA=True; nst0=nst
        nv=0
        if i<=1 or (not epi) or delay>0:
            lim=2 if i<2 else 1
            if i>=1 or True:
                for _ in range(lim):
                    if z2 and (i>=1 or False) and (len(z2)>4 or i>=2): a(z2.pop(0)); nv+=1
        if delay>0: delay-=1
        else:
            kk=0
            while epi and kk<P.get('epr',2): emit_epi(epi.pop(0)); kk+=1
        if i==7:
            for x in z2: a(x)
            z2=[]
        if i%4==3:
            epi+=epilogue(i//4); delay=P.get('edel',1)
    if posA==16:
        for x in prefill(RA): a(x)
        issueA(RA); issuedA=True; nst0=nst
    for x in epi: emit_epi(x)
    stamp(6)
    if P.get('ackA'): a('s_waitcnt vmcnt(0)'); stamp(26)

    Lp=a.label('PA'); Ld=a.label('PAd')
    zq=[f'v_mov_b64 {vr(QA+i,2)}, 0' for i in range(0,24,2) if not (RA<=QA+i<RA+8)]
    zk=[f'v_mov_b64 {vr(QA+i,2)}, 0' for i in range(0,24,2) if (RA<=QA+i<RA+8)]
    a(f's_mov_b32 {sCnt}, 0')
    pre=P.get('preA',[4,6,9,12])[w]
    NA=P.get('NA',[2,2,2,2])[w]
    mf=f'v_mfma_f32_16x16x32_bf16 {vr(R,4)}, {vr(RA,4)}, {vr(SELR,4)}, 0\nv_mfma_f32_16x16x32_bf16 {vr(R,4)}, {vr(RA+4,4)}, {vr(SELR,4)}, {vr(R,4)}'
    gA=P.get('gapA',[4,4,4,4])[w]
    if not issuedA:
        if pre>=2:
            for x in zq: a(x)
            zq=[]
        for x in prefill(RA): a(x)
        for _ in range(max(0,pre-2)): a('s_nop 7')
        issueA(RA)
    wl=P.get('wlA',[0,0,0,0])[w]
    if wl:
        for x in zq: a(x)
        zq=[]
        for _ in range(P.get('wlA0',[2,2,2,2])[w]): a('s_nop 7')
        stamp(23)
        for j in range(wl):
            for x in chk(RA): a(x)
            a(mf)
            a(f's_cbranch_vccz {Ld}')
        a('s_mov_b64 exec, vcc'); issueA(RA); a('s_mov_b64 exec, -1')
    else:
        if zq:
            for x in zq: a(x)
            gA=max(0,gA-1)
        for j in range(NA-1):
            for _ in range(gA if j==0 else P.get('gapA',[4,4,4,4])[w]): a('s_nop 7')
            issueA(RA)
        stamp(23)
    if issuedA and not wl:
        a(f's_waitcnt vmcnt({2*(NA-1)+4-nst0})')
        for x in chk(RA): a(x)
        a(mf)
        a(f's_cbranch_vccz {Ld}')
        a('s_mov_b64 exec, vcc'); issueA(RA); a('s_mov_b64 exec, -1')
    a(f'{Lp}:')
    for j in range(2):
        a(f's_waitcnt vmcnt({2*(NA-1)})')
        for x in chk(RA): a(x)
        a(mf)
        a(f's_cbranch_vccz {Ld}')
        if diag: a('s_add_u32 s77, s77, 1')
        a('s_mov_b64 exec, vcc'); issueA(RA); a('s_mov_b64 exec, -1')
    a(f's_add_u32 {sCnt}, {sCnt}, 1\ns_cmp_lt_u32 {sCnt}, {SPIN}\ns_cbranch_scc1 {Lp}\ns_branch {exit_label}')
    a(f'{Ld}:')
    stamp(7)
    Lfin=a.label('FN')
    a(f's_add_u32 {sHB}, {sHB}, {HB_STEP}\ns_and_b32 {sHB}, {sHB}, {WS_HOPB+3*HB_STEP}\ns_cmp_eq_u32 {sStep}, 62')
    a(pkadd(R,R,R+2))
    a(f'v_add_f32 v{R}, v{R}, v{R+1}')
    a(f'v_mov_b32 v{R+1}, v{R}')
    a(f's_cbranch_scc1 {Lfin}')
    a(f's_add_u32 {sHB2}, {sHB}, {w*2048}')
    a(f'v_permlane16_swap_b32 v{R}, v{R+1}')
    a(f'v_cvt_pk_bf16_f32 v{R}, v{R}, v{R+1}')
    a(f'buffer_store_dword v{R}, v{VBST}, {S_WS}, {sHB} offen{sc}')
    tail.extend([f'{Lfin}:', f's_mov_b32 {sT}, {WS_MPUB+63*8192}', f'v_permlane16_swap_b32 v{R}, v{R+1}', f'v_cvt_pk_bf16_f32 v{R}, v{R}, v{R+1}',
                 f'buffer_store_dword v{R}, v{VBST}, {S_WS}, {sT} offen sc1', f's_branch {DONE}'])
    stamp(25)
    if P.get('ackB'): a('s_waitcnt vmcnt(0)'); stamp(27)
    a(f's_xor_b32 {sHA0}, {sHA0}, 262144\ns_add_u32 {sHA1}, {sHA0}, 4096\ns_add_u32 {sStep}, {sStep}, 1')
    a(f'{ENTRY}:')
    PB=M+8*w
    Fw=[f'buffer_load_dwordx4 {vr(PB+4*i,4)}, v{LANE16}, {S_WS}, {sHB2} offen offset:{i*1024} sc1 ;poll' for i in range(2)]
    Ww=[f'ds_write_b128 v{LANE16}, {vr(PB+4*i,4)} offset:{L_MEM+w*2048+i*1024}' for i in range(2)]
    late=P.get('lateB',[None,None,None,None])[w]
    if late is None:
        for _ in range(P.get('preB',[8,8,8,8])[w]): a('s_nop 7')
        for x in Fw: a(x)
    gB=P.get('gapB',4)
    if zk:
        a('s_waitcnt vmcnt(2)')
        for x in zk: a(x)
        gB-=1
    NB=P.get('NB',[2,2,2,2])[w]
    if late is None:
        for j in range(NB-1):
            for _ in range(gB if j==0 else P.get('gapB',4)): a('s_nop 7')
            for x in Fw: a(x)
    elif late[0]<0:
        for _ in range(P.get('preB',[8,8,8,8])[w]): a('s_nop 7')
        for x in Fw: a(x)
    stamp(8)
    def loop(Lok):
        Ll=a.label('RL'); t=[f's_mov_b32 {sCnt}, 0', f'{Ll}:']
        for j in range(2):
            t+=[f's_waitcnt vmcnt({2*(NB-1)})']+chk(PB)+Ww+[f's_cbranch_vccz {Lok}','s_mov_b64 exec, vcc']+Fw+['s_mov_b64 exec, -1']+(['s_add_u32 s76, s76, 1'] if diag else [])
        t+=[f's_add_u32 {sCnt}, {sCnt}, 1', f's_cmp_lt_u32 {sCnt}, {SPIN}', f's_cbranch_scc1 {Ll}', f's_branch {exit_label}']
        return t
    def own_check(fill,inter=False):
        Lr=a.label('RT'); Lb=a.label('RB'); Lw=a.label('RW')
        if not inter:
            stamp(20)
            for x in loop(Lb): a(x)
            a(f'{Lb}:')
            return
        tail.extend([f'{Lr}:','s_mov_b64 exec, vcc']+Fw+['s_mov_b64 exec, -1']+loop(Lb))
        a(f's_waitcnt vmcnt({P.get("wB",[0,0,2,2])[w]})')
        c=chk(PB)+Ww; fill=list(fill)
        while c or fill:
            if c: a(c.pop(0))
            if fill: a(fill.pop(0))
        a(f's_cbranch_vccnz {Lr}\n{Lb}:')
    def MM(p): return [Q(p)[0],Q(p)[1],K(p)[0],K(p)[1],Q(p)[2],Q(p)[3],K(p)[2],K(p)[3]]
    def rds(p): return [f'ds_read_b128 {vr(M+8*p+4*i,4)}, v{LANE16} offset:{L_MEM+p*2048+i*1024}' for i in range(2)]
    early=(w<2 or (w==2 and P.get('e2',0)))
    if early:
        own_check([]); stamp(21); a('s_waitcnt lgkmcnt(0)'); stamp(22)
    else:
        stamp(20); stamp(21); stamp(22)
    a('s_barrier')
    stamp(9)
    if w<2:
        o=1-w
        for x in rds(o): a(x)
        for x in MM(w): a(x)
        a('s_waitcnt lgkmcnt(0)')
        for x in MM(o): a(x)
        for x in V[:nv0]: a(x)
    elif early:
        for x in rds(0)+rds(1): a(x)
        mm=MM(0)+MM(1)
        for i,x in enumerate(mm):
            if i%4==0: a(f's_waitcnt lgkmcnt({3-i//4})')
            a(x)
    else:
        for x in rds(0)+rds(1): a(x)
        mm=MM(0)+MM(1)
        if late is not None:
            for p_ in late:
                if p_==0:
                    for x in Fw: a(x)
                elif p_>0: mm[p_-1]=mm[p_-1]+'\n'+'\n'.join(Fw)
        a('s_waitcnt lgkmcnt(3)')
        for x in mm[:4]: a(x)
        a('s_waitcnt lgkmcnt(2)')
        cp=P.get('cpos',[0,0,8,10])[w]
        for i in range(4,cp):
            if i==8: a('s_waitcnt lgkmcnt(0)')
            a(mm[i])
        if cp<=8: a('s_waitcnt lgkmcnt(0)')
        own_check(mm[cp:cp+6],True)
        for x in mm[cp+6:]: a(x)
        a('s_waitcnt lgkmcnt(0)')
    a('s_barrier')
    stamp(10)
    if w<2:
        for x in rds(2)+rds(3): a(x)
        for x in V[nv0:nv3]: a(x)
        a('s_waitcnt lgkmcnt(2)')
        first,second=2,3
    else:
        first,second=w,5-w
        for x in rds(second): a(x)
    if P.get('rst')=='Y':
        a(f'v_mov_b64 {vr(T1,2)}, -1\nv_mov_b64 {vr(T1+2,2)}, -1\ns_xor_b32 {sT}, {sHA0}, 262144')
    kxl=[f'buffer_load_dwordx4 {vr(KX0+4*i,4)}, v{VKV}, {S_WS}, {sKV} offen offset:{i*1024} sc1' for i in range(4)]
    for i,x in enumerate(Q(first)+K(first)):
        a(x)
        if i in (0,2,4,6): a(kxl.pop(0))
        if P.get('rst')=='Y' and i in (1,3): a(f'buffer_store_dwordx4 {vr(T1,4)}, v{VALD}, {S_WS}, {sT} offen offset:{512*(i-1)}{sc}{P.get("rmod","")}')
        if P.get('warm')=='Y' and i==5: a(f'v_lshl_add_u32 v{T21}, v{LANE16}, 2, {sWB}\ns_mov_b32 m0, {L_DUMP}')
        if P.get('warm')=='Y' and i==7: a(warm)
    a('s_waitcnt lgkmcnt(0)')
    for x in Q(second): a(x)
    stamp(11)
    stamp_acc(a,diag)
    a(f's_branch {LOOP}')

def sel_consts(a,IDXr,SELTr):
    a(f'''v_mov_b32 v{IDXr}, 0x4444
    v_mov_b32 v63, 0xeeee
    v_and_b32 v64, 2, v61
    v_cmp_ne_u32 vcc, 0, v64
    v_cndmask_b32 v{IDXr}, v{IDXr}, v63, vcc
    v_lshrrev_b32 v63, 2, v61
    v_cmp_eq_u32 vcc, v63, v62           ; (c>>2)==g
    v_and_b32 v64, 1, v61
    v_lshlrev_b32 v64, 4, v64
    v_mov_b32 v65, 0x3f80
    v_lshlrev_b32 v64, v64, v65
    v_cndmask_b32 v{SELTr}, 0, v64, vcc
    v_mov_b32 v{SELTr+1}, v{SELTr}''')

def team_setup(a):
    a(f'''
    v_and_b32 v61, 15, v60               ; c
    v_lshrrev_b32 v62, 4, v60            ; g
    ''')
    sel_consts(a,IDX,SELT)
    a(f'''
    v_lshlrev_b32 v{LANE16}, 4, v60
    s_lshl_b32 s40, {sWv}, 15
    s_add_u32 s40, s40, {L_WO}
    v_add_u32 v{VWO}, s40, v{LANE16}
    v_lshrrev_b32 v63, 1, v61
    v_lshlrev_b32 v66, 8, v63
    s_lshl_b32 s41, {sH}, 6
    s_and_b32 s40, {sWv}, 1
    s_lshl_b32 s40, s40, 7
    s_xor_b32 s41, s41, s40
    v_xor_b32 v66, s41, v66
    v_lshlrev_b32 v63, 13, v63
    v_and_b32 v64, 2, v62
    v_and_b32 v65, 1, v61
    v_add_u32 v64, v64, v65
    v_lshlrev_b32 v64, 4, v64
    v_and_b32 v65, 1, v62
    v_lshlrev_b32 v65, 3, v65
    v_add3_u32 v63, v63, v64, v65
    s_lshl_b32 s40, {sWv}, 16
    v_add3_u32 v{VAST}, s40, v63, v66
    v_lshlrev_b32 v63, 8, v62
    v_and_b32 v64, 3, v61
    v_lshlrev_b32 v64, 6, v64
    v_lshrrev_b32 v65, 2, v61
    v_lshlrev_b32 v65, 4, v65
    v_add3_u32 v63, v63, v64, v65
    s_lshl_b32 s40, {sH}, 2
    s_add_u32 s40, s40, {sWv}
    s_lshl_b32 s40, s40, 11
    v_add_u32 v{VALD}, s40, v63
    v_bfe_u32 v63, v61, 2, 1
    v_and_b32 v64, 2, v62
    v_add_u32 v63, v63, v64              ; i>>1
    v_and_b32 v64, 1, v61                ; i&1
    v_bfe_u32 v65, v61, 1, 1             ; tau
    v_lshlrev_b32 v66, 6, v63
    v_lshlrev_b32 v67, 4, v64
    v_lshlrev_b32 v68, 8, v65
    v_add3_u32 v66, v66, v67, v68
    s_lshl_b32 s40, {sWv}, 11
    s_lshr_b32 s41, {sH}, 3
    s_lshl_b32 s41, s41, 9
    s_add_u32 s40, s40, s41
    s_and_b32 s41, {sH}, 1
    s_lshl_b32 s41, s41, 5
    s_add_u32 s40, s40, s41
    s_and_b32 s41, {sH}, 6
    s_lshl_b32 s41, s41, 1
    s_add_u32 s40, s40, s41
    v_add_u32 v{VBST}, s40, v66
    v_lshlrev_b32 v66, 11, v63
    v_lshlrev_b32 v67, 10, v64
    v_lshlrev_b32 v68, 5, v65
    v_add3_u32 v59, v66, v67, v68
    s_lshr_b32 s40, {sH}, 3
    s_lshl_b32 s40, s40, 8
    s_lshl_b32 s41, {sWv}, 6
    s_add_u32 s40, s40, s41
    s_and_b32 s41, {sH}, 7
    s_lshl_b32 s41, s41, 2
    s_add_u32 s40, s40, s41
    v_add_u32 v59, s40, v59
    s_mul_i32 s40, {sWv}, {KV_W}
    s_mul_i32 s41, {sH}, {KV_H}
    s_add_u32 {sWB}, s41, s40
    v_add_u32 v{VKV}, {sWB}, v{LANE16}
    v_bfe_u32 v65, v61, 1, 1
    v_lshlrev_b32 v66, 10, v65
    v_add_u32 v{VSXR}, v66, v{LANE16}
    s_lshr_b32 s40, {sWv}, 1
    s_lshl_b32 s40, s40, 10
    s_and_b32 s41, {sWv}, 1
    s_lshl_b32 s41, s41, 5
    s_add_u32 s40, s40, s41
    s_add_u32 s40, s40, {L_O}
    v_add_u32 v{VOW}, s40, v{LANE16}
    v_add_u32 v67, {L_DUMP}, v{LANE16}
    v_cmp_ne_u32 vcc, 0, v65
    v_cndmask_b32 v{VOW}, v{VOW}, v67, vcc
    v_and_b32 v63, 7, v61
    v_mov_b32 v65, 0x3f80
    v_mov_b32 v66, 0x3f800000
    ''')
    for rg in range(4):
        a(f'''v_cmp_eq_u32 vcc, {2*rg}, v63
        v_cndmask_b32 v{SELR+rg}, 0, v65, vcc
        v_cmp_eq_u32 vcc, {2*rg+1}, v63
        v_cndmask_b32 v{SELR+rg}, v{SELR+rg}, v66, vcc
        v_mov_b32 v{ONES+rg}, 0x3f803f80''')

def team_main(a,name,P,EXIT,tail,diag=False):
    assert NRING==2 and NREP==1
    fused=P.get('fused')
    a("""s_load_dwordx4 s[84:87], s[0:1], 8
    s_load_dwordx4 s[88:91], s[0:1], 24
    s_load_dwordx2 s[92:93], s[0:1], 40
    s_waitcnt lgkmcnt(0)""")
    srd(a,S_W,'s84','s85',8192)
    if diag: a('s_memrealtime s[78:79]')
    team_setup(a)
    def extra():
        a('v_mov_b64 v[56:57], -1\nv_mov_b64 v[54:55], -1')
        for i in range(4):
            a(f's_mov_b32 s40, {WS_HOPB+i*HB_STEP}')
            a(f'buffer_store_dword v54, v{VBST}, {S_WS}, s40 offen sc1')
        for r in range(NRING):
            a(f's_mov_b32 s40, {WS_HOPA+r*262144}')
            for i in range(2): a(f'buffer_store_dwordx4 v[54:57], v{VALD}, {S_WS}, s40 offen offset:{i*1024} sc1')
        a(f'buffer_load_dword v58, v59, {S_W}, 0 offen')
        return 4+2*NRING+1
    loader.load_coop(a,[86,88,90,92],3,True,VWO,extra,mod=P.get('lmod',''))
    if P.get('tl'): P['tl'](1)
    L2=a.label('TB'); L3=a.label('TBd'); L4=a.label('TBs')
    a(f"""
    s_waitcnt vmcnt(0)
    s_barrier
    s_cmp_lg_u32 {sWv}, 0
    s_cbranch_scc1 {L4}
    s_cmp_eq_u32 s3, 0
    s_cselect_b32 s40, 1, 0x10001
    v_mov_b32 v61, s40
    s_mov_b64 exec, 1
    buffer_atomic_add v61, off, {S_DBG}, 0 offset:{D_TEAM}
    s_mov_b64 exec, -1
    {L4}:
    s_mov_b32 {sCnt}, 0
    {L2}:
    buffer_load_dword v61, off, {S_DBG}, 0 offset:{D_TEAM} sc1
    s_waitcnt vmcnt(0)
    v_readfirstlane_b32 s41, v61
    s_and_b32 s40, s41, 0xffff
    s_cmp_ge_u32 s40, 32
    s_cbranch_scc1 {L3}
    s_add_u32 {sCnt}, {sCnt}, 1
    s_cmp_lt_u32 {sCnt}, {SPIN}
    s_cbranch_scc1 {L2}
    s_branch {EXIT}
    {L3}:
    s_lshr_b32 s7, s41, 16
    s_lshl_b32 {sFrow}, {sH}, 8
    s_mov_b32 {sAll}, {0 if fused else 1}
    """)
    if fused:
        import roles
        roles.poll_ge(a,S_DBG,'0',D_INIT,64,EXIT)
        L5=a.label('TF'); L6=a.label('TFd')
        a(f"""v_lshrrev_b32 v62, 2, v{LANE16}
        s_mov_b32 {sCnt}, 0
        {L5}:
        buffer_load_dword v61, v62, {S_WS}, {sFrow} offen sc1
        s_waitcnt vmcnt(0)
        v_cmp_ne_u32 vcc, 0, v61
        s_nop 3
        s_and_b32 s40, vcc_lo, 3
        s_cmp_eq_u32 s40, 3
        s_cbranch_scc1 {L6}
        s_add_u32 {sCnt}, {sCnt}, 1
        s_cmp_lt_u32 {sCnt}, {SPIN}
        s_cbranch_scc1 {L5}
        s_branch {EXIT}
        {L6}:
        s_lshl_b32 s40, {sWv}, 8
        v_add_u32 v62, s40, v62
        ds_write_b32 v62, v61 offset:{L_FLG}
        s_waitcnt lgkmcnt(0)""")
    a(f"""
    s_mov_b32 {sHB}, {WS_HOPB}
    s_lshl_b32 {sHB2}, {sWv}, 11
    s_add_u32 {sHB2}, {sHB2}, {WS_HOPB}
    s_mov_b32 {sHA0}, {WS_HOPA}
    s_mov_b32 {sHA1}, {WS_HOPA+4096}
    s_mov_b32 {sKV}, {WS_KV}
    s_mov_b32 {sWarm}, {WS_KV+P.get('wah',1)*KV_SEG}
    s_mov_b32 {sCnst}, {f2u(SCALE_LOG2E):#x}
    s_mov_b32 {sStep}, 0
    s_lshl_b32 s40, {sH}, 1
    s_lshl_b64 {sPm}, 3, s40
    buffer_store_dword v58, v{VBST}, {S_WS}, {sHB} offen sc1
    v_lshl_add_u32 v{T21}, v{LANE16}, 2, {sWB}
    s_mov_b32 m0, {L_DUMP}
    s_nop 0
    buffer_load_dword v{T21}, {S_WS}, {sWarm} offen sc1 lds
    s_add_u32 {sWarm}, {sWarm}, {KV_SEG}
    """)
    for i in range(0,24,2): a(f'v_mov_b64 {vr(QA+i,2)}, 0')
    if P.get('tl'): P['tl'](2)
    if diag:
        for k in range(14): a(f's_mov_b32 s{64+k}, 0')
        a("""s_memrealtime s[40:41]
        s_waitcnt lgkmcnt(0)
        CAL:
        s_memrealtime s[42:43]
        s_memtime s[100:101]
        s_waitcnt lgkmcnt(0)
        s_cmp_eq_u32 s42, s40
        s_cbranch_scc1 CAL
        s_mov_b32 s101, s42""")
        a('s_memrealtime s[80:81]\ns_mem'+team2.RT+'time s[60:61]\ns_waitcnt lgkmcnt(0)')
        for k in range(NST): a(f's_mov_b32 s{38+2*k}, s60')
        a('s_mov_b32 s63, s60')
    modes=[False,True] if fused else [False]
    if fused: a(f's_cmp_lg_u32 s7, 0\ns_cbranch_scc1 {name}_xsel')
    DONE=name+'_done'
    for cross in modes:
        nm=name+('x' if cross else '')
        if cross: a(f'{name}_xsel:')
        for w in range(3): a(f's_cmp_eq_u32 {sWv}, {w}\ns_cbranch_scc1 {nm}_ent{w}')
        a(f's_branch {nm}_ent3')
    for cross in modes:
        nm=name+('x' if cross else '')
        for w in range(4):
            a('.p2align 5')
            n0=len(a.items)
            body(a,w,cross,EXIT,tail,P,diag,f'{nm}_loop{w}',f'{nm}_ent{w}',DONE)
            it=a.items[n0:]
            e=it.index(f'{nm}_ent{w}:')
            check_waits(it[e:]+it+it,f'{nm}{w}')
    a(f'{DONE}:')
    if diag:
        a(f"""s_memrealtime s[82:83]
        s_waitcnt lgkmcnt(0)
        s_sub_u32 s78, s80, s78
        s_sub_u32 s79, s82, s80
        s_lshl_b32 s40, {sH}, 2
        s_add_u32 s40, s40, {sWv}
        s_lshl_b32 s40, s40, 6
        s_add_u32 s40, s40, {WS_STAMP}""")
        for k in range(16): a(f'v_mov_b32 v61, s{64+k}\nbuffer_store_dword v61, off, {S_WS}, s40 offset:{4*k}')
        a(f"""s_add_u32 s40, s40, 8192
        v_mov_b32 v61, s100
        buffer_store_dword v61, off, {S_WS}, s40
        v_mov_b32 v61, s101
        buffer_store_dword v61, off, {S_WS}, s40 offset:4
        s_barrier
        s_lshl_b32 s40, {sWv}, 10
        v_add_u32 v62, s40, v{LANE16}
        ds_read_b128 v[64:67], v62 offset:28672
        s_lshl_b32 s41, {sH}, 12
        s_add_u32 s41, s41, {WS_LOG}
        s_waitcnt lgkmcnt(0)
        buffer_store_dwordx4 v[64:67], v62, {S_WS}, s41 offen""")
```

```python
from asmdsl import *
from layout import *
from team import srd, vr, Wpair, L_WO
sH='s20'; sWv='s21'
def perm_u(u): return 2*(2*(u&3)+(u>>3))+((u>>2)&1)

def load_coop(a,ptrs,nmat,with_wo,VWO=2,extra=None,UB=2,AH=28,mod=''):
    srds=['s[44:47]','s[48:51]','s[52:55]','s[56:59]']
    for i,p in enumerate(ptrs): srd(a,srds[i],f's{p}',f's{p+1}',4194304)
    a(f'''
    v_lshrrev_b32 v61, 4, v60            ; row&3
    v_lshlrev_b32 v62, 13, v61
    v_and_b32 v63, 15, v60
    v_lshlrev_b32 v63, 4, v63
    v_lshlrev_b32 v64, 5, v61
    v_xor_b32 v63, v63, v64
    s_and_b32 s40, {sWv}, 1
    s_lshl_b32 s40, s40, 7
    v_xor_b32 v63, s40, v63
    s_lshl_b32 s40, {sH}, 8
    s_lshl_b32 s41, {sWv}, 16
    s_add_u32 s40, s40, s41
    v_add3_u32 v62, v62, v63, s40
    s_lshl_b32 s42, {sWv}, 11
    s_add_u32 s42, s42, {L_WO}
    v_lshrrev_b32 v63, 4, v60            ; g
    v_bfe_u32 v64, v60, 2, 2             ; r
    v_and_b32 v65, 3, v60                ; cc
    v_lshlrev_b32 v66, 3, v63
    v_add_u32 v66, v66, v64
    v_lshlrev_b32 v66, 8, v66            ; (8g+r)*256
    v_and_b32 v67, 1, v63
    v_lshlrev_b32 v67, 2, v67
    v_or_b32 v67, v67, v64               ; f
    s_lshl_b32 s40, {sWv}, 1
    v_xor_b32 v67, s40, v67
    v_lshlrev_b32 v67, 5, v67
    v_lshlrev_b32 v68, 3, v65
    v_add3_u32 v66, v66, v67, v68
    v_add_u32 v66, {L_WO}, v66
    v_xor_b32 v67, 32, v66               ; t=1
    v_add_u32 v73, 0x10000, v66
    v_add_u32 v74, 0x10000, v67
    ''')
    if with_wo:
        a(f'''
    v_lshrrev_b32 v68, 4, v60
    v_lshlrev_b32 v69, 10, v68
    v_and_b32 v68, 1, v68
    v_lshlrev_b32 v68, 5, v68
    v_and_b32 v70, 15, v60
    v_lshlrev_b32 v70, 4, v70
    v_xor_b32 v70, v70, v68
    v_add_u32 v69, v69, v70
    s_lshl_b32 s40, {sH}, 17
    s_lshl_b32 s41, {sWv}, 8
    s_add_u32 s40, s40, s41
    v_add_u32 v69, s40, v69
    v_xor_b32 v70, 64, v69
    v_xor_b32 v71, 128, v69
    v_xor_b32 v72, 192, v69
    s_lshl_b32 s39, {sWv}, 15
    s_add_u32 s39, s39, {L_WO}
    ''')
    NU=nmat*16
    def issue(op):
        if op[0]=='u':
            _,u,j=op
            a(f's_add_u32 m0, s42, {(u%16)*8192+j*1024}\ns_mov_b32 s43, {(u%16)*262144+j*32768}\nbuffer_load_dwordx4 v62, {srds[u//16]}, s43 offen lds{mod}')
        else:
            sg=op[1]; v=['v69','v70','v71','v72'][(sg>>2)&3]
            a(f's_add_u32 m0, s39, {sg*1024}\ns_mov_b32 s43, {sg*4096}\nbuffer_load_dwordx4 {v}, {srds[nmat]}, s43 offen lds{mod}')
    todo=[('u',u,j) for u in range(NU) for j in range(2)]
    ops=[]
    def can(op,done):
        return op[1]-16<done
    while todo and len(ops)<AH and can(todo[0],0): op=todo.pop(0); issue(op); ops.append(op)
    if extra: ops+=['x']*extra()
    for u0 in range(0,NU,UB):
        last=('u',u0+UB-1,1)
        a(f's_waitcnt vmcnt({len(ops)-1-ops.index(last)}) lgkmcnt(0)\ns_barrier')
        k=0
        while todo and can(todo[0],u0) and k<2*UB: op=todo.pop(0); issue(op); ops.append(op); k+=1
        for u in range(u0,u0+UB):
            X=u//16; uu=perm_u(u%16); pos=u%16
            for t in range(2):
                for jh in range(2):
                    a(f'ds_read_b64_tr_b16 {Wpair(X,uu,t,jh)}, v{(66 if pos<8 else 73)+t} offset:{(pos%8)*8192+jh*1024}')
        if with_wo and u0>=NU-16+4 and (u0-(NU-16))%4==0:
            pass
    a('s_waitcnt lgkmcnt(0)\ns_barrier')
    if with_wo:
        for sg in range(32): issue(('o',sg)); ops.append(('o',sg))
        a(f'''
    v_lshrrev_b32 v63, 4, v60
    v_bfe_u32 v64, v60, 2, 2
    v_and_b32 v65, 3, v60
    v_and_b32 v73, 1, v63
    v_lshlrev_b32 v74, 4, v73
    v_lshrrev_b32 v75, 1, v63
    v_lshlrev_b32 v75, 2, v75
    v_add_u32 v74, v74, v75
    v_and_b32 v75, 1, v64
    v_add_u32 v74, v74, v75
    v_lshrrev_b32 v76, 1, v64
    v_lshlrev_b32 v77, 5, v76
    v_add_u32 v74, v74, v77
    v_lshlrev_b32 v74, 8, v74
    v_lshlrev_b32 v73, 1, v73
    v_lshlrev_b32 v76, 2, v76
    v_or3_b32 v75, v75, v73, v76
    v_lshlrev_b32 v75, 5, v75
    v_lshlrev_b32 v65, 3, v65
    v_add3_u32 v74, v74, v75, v65
    v_add_u32 v74, s39, v74
    v_bfe_u32 v76, v60, 1, 1
    v_lshlrev_b32 v76, 11, v76
    v_lshlrev_b32 v77, 8, v63
    v_bfe_u32 v73, v60, 2, 2
    v_lshlrev_b32 v73, 5, v73
    v_add3_u32 v76, v76, v77, v73
    v_and_b32 v77, 1, v60
    v_lshlrev_b32 v77, 4, v77
    v_add3_u32 v76, v76, v77, s39
    ''')
        for ks in range(2):
            a(f's_waitcnt vmcnt({16-16*ks})')
            dst=[80,88,96,104,112,120,24,32]
            for t in range(8):
                a(f'v_xor_b32 v75, {t*32}, v74')
                for P,ro in enumerate((0,2,8,10)):
                    a(f'ds_read_b64_tr_b16 {vr(dst[t]+2*P,2)}, v75 offset:{(64*ks+ro)*256}')
            a('s_waitcnt lgkmcnt(0)')
            for t in range(8):
                for hf in range(2):
                    a(f'ds_write_b128 v76, {vr(dst[t]+4*hf,4)} offset:{((ks*8+(t&6))*2+hf)*1024+(t&1)*128}')
            a('s_waitcnt lgkmcnt(0)')
```

```python
from asmdsl import *
from layout import *
import team as T1m
from team import srd, vr, Wreg, check8, crossmax, DPP, SPIN, S_WS, S_W, S_DBG, LDS_TOTAL, L_WO

L_S=0
L_O=16384
L_DUMP=18432
sH='s20'; sWv='s21'; sStep='s22'; sCnt='s23'; sCnst='s24'
sHB='s25'; sHB2='s26'; sHA0='s27'; sHA1='s28'; sRst='s29'; sKV='s31'; sPub='s32'; sWarm='s33'; sWB='s34'
IDX=0; LANE16=1; VWO=2; VAST=3; SELT=4; VALD=6; VBST=7; SELR=8; ONES=12; VKV=16; VSW=17; VSXR=18; VOW=19
T20=20; T21=21; MX=22; NM=23
KX0=24; KX1=28; VX0=32; VX1=36; KM=40; VM=44; M=48; QA=80; KA=88; VA=96; T0=104; T1=112; T2=120
NST=12
import os
RT=os.environ.get('RT','')
def stamp(a,k,diag):
    if diag: a(f's_mem{RT}time s[{40+2*k}:{41+2*k}]')
def stamp_acc(a,diag):
    if diag:
        a('s_waitcnt lgkmcnt(0)')
        for k in range(NST):
            prev='s99' if k==0 else f's{40+2*(k-1)}'
            a(f's_sub_u32 s98, s{40+2*k}, {prev}\ns_add_u32 s{64+k}, s{64+k}, s98')
        a(f's_mov_b32 s99, s{40+2*(NST-1)}')
        for k in range(NST): a(f'v_writelane_b32 v{T20}, s{40+2*k}, {k}')
        a(f"""s_lshl_b32 s98, {sStep}, 2
        s_add_u32 s98, s98, {sWv}
        s_and_b32 s98, s98, 63
        s_lshl_b32 s98, s98, 6
        s_add_u32 s98, s98, 28672
        v_lshrrev_b32 v{T21}, 2, v{LANE16}
        v_add_u32 v{T21}, s98, v{T21}
        s_mov_b64 exec, 0xffff
        ds_write_b32 v{T21}, v{T20}
        s_mov_b64 exec, -1""")
def chk(b,tmp=T20):
    return [f'v_max3_u32 v{tmp}, v{b}, v{b+1}, v{b+2}', f'v_max3_u32 v{tmp+1}, v{b+3}, v{b+4}, v{b+5}',
            f'v_max3_u32 v{tmp}, v{b+6}, v{b+7}, v{tmp}', f'v_max_u32 v{tmp}, v{tmp}, v{tmp+1}', f'v_cmp_eq_u32 vcc, -1, v{tmp}']
def cvt4(d,s): return [f'v_cvt_pk_bf16_f32 v{d+i}, v{s+2*i}, v{s+2*i+1}' for i in range(4)]
def pkadd(d,x,y): return f'v_pk_add_f32 {vr(d,2)}, {vr(x,2)}, {vr(y,2)}'

def step(a,full,cross,exit_label,tail,P,diag=False):
    sc=' sc1' if cross else ''
    def F(p):
        s=sHB if p<2 else sHB2
        return [f'buffer_load_dwordx4 {vr(M+8*p+4*i,4)}, v{LANE16}, {S_WS}, {s} offen offset:{(p&1)*2048+i*1024} sc1' for i in range(2)]
    def sm(acc,ks,X,t): return f'v_smfmac_f32_16x16x64_bf16 {vr(acc+4*t,4)}, {vr(M+4*ks,4)}, {Wreg(X,ks,t)}, v{IDX}'
    def retry(p):
        Lr=a.label('RT'); Lb=a.label('RB'); Ll=a.label('RL')
        t=[f'{Lr}:', f's_mov_b32 {sCnt}, 0', f'{Ll}:']+F(p)+(['s_add_u32 s76, s76, 1'] if diag else [])+['s_waitcnt vmcnt(0)']+chk(M+8*p)+[f's_cbranch_vccz {Lb}',
           f's_add_u32 {sCnt}, {sCnt}, 1', f's_cmp_lt_u32 {sCnt}, {SPIN}', f's_cbranch_scc1 {Ll}', f's_branch {exit_label}']
        tail.extend(t)
        return [f's_cbranch_vccnz {Lr}', f'{Lb}:']
    Q=lambda p:[sm(QA,2*p+k,0,t) for k in range(2) for t in range(2)]
    K=lambda p:[sm(KA,2*p+k,1,t) for k in range(2) for t in range(2)]
    Vl=[sm(VA,ks,2,t) for ks in range(8) for t in range(2)]
    V=list(Vl)
    def v(n=1):
        for _ in range(n):
            if V: a(V.pop(0))
    for _ in range(P.get('preB',0)): a('s_nop 7')
    for p in range(3):
        for x in F(p): a(x)
    a('s_waitcnt vmcnt(4)')
    stamp(a,0,diag)
    for x in chk(M): a(x)
    for x in retry(0): a(x)
    posF3=P.get('posF3',4)
    cnt=0; f3=False
    for p in range(3):
        mm=(Q(p)+K(p)) if full else (K(p)+V[:4])
        if not full: V=V[4:]
        c=chk(M+8*(p+1))
        wpos=P.get('wpos',1)
        for i,x in enumerate(mm):
            a(x)
            if cnt==posF3 and not f3:
                for y in F(3): a(y)
                f3=True
            cnt+=1
            if p<2:
                if i==wpos: a(f's_waitcnt vmcnt({(2 if p==0 else 0)+(2 if f3 else 0)})')
                if i>=wpos and c: a(c.pop(0))
        if p<2:
            for x in c: a(x)
            for x in retry(p+1): a(x)
    assert f3
    stamp(a,1,diag)
    f=1 if full else 0
    v(f*P.get('vpre',2))
    a('s_waitcnt vmcnt(0)')
    stamp(a,2,diag)
    c=chk(M+24)
    a(c[0]); a(c[1]); v(f); a(c[2]); a(c[3]); a(c[4]); v(f)
    for x in retry(3): a(x)
    QC=T2; KC=T2+4; QB=T2
    if full:
        q=Q(3); k=K(3)
        for x in q: a(x)
        a(f's_mov_b32 m0, {L_DUMP}')
        a(k[0]); a(f'v_lshl_add_u32 v{T21}, v{LANE16}, 2, {sWB}')
        a(k[1]); a(f'buffer_load_dword v{T21}, {S_WS}, {sWarm} offen sc1 lds')
        a(f's_add_u32 {sHB}, {sHB}, 8192\ns_add_u32 {sHB2}, {sHB2}, 8192')
        cq=cvt4(QC,QA)
        a(k[2]); a(cq[0]); a(k[3]); a(cq[1]); a(cq[2]); a(cq[3])
        for t in range(2): a(f'v_mfma_f32_16x16x16_bf16 {vr(T0+4*t,4)}, {vr(QC+2*t,2)}, {vr(SELT,2)}, 0')
        a(f's_add_u32 {sWarm}, {sWarm}, 524288\ns_min_u32 {sWarm}, {sWarm}, {WS_KV+63*524288}')
    else:
        for x in K(3): a(x)
        v(4)
    for x in cvt4(KC,KA): a(x)
    for t in range(2): a(f'v_mfma_f32_16x16x16_bf16 {vr(T1+4*t,4)}, {vr(KC+2*t,2)}, {vr(SELT,2)}, 0')
    order=[(ks,2*u+t) for u in range(4) for ks in range(2) for t in range(2)]
    def wo_read(i,g):
        ks,t=order[i]
        return [f'ds_read_b128 {vr(g+4*hf,4)}, v{VWO} offset:{((ks*8+t)*2+hf)*1024}' for hf in range(2)]
    if full:
        for x in cvt4(QB,T0): a(x)
        a(f'v_mfma_f32_16x16x32_bf16 {vr(T0,4)}, {vr(KX0,4)}, {vr(QB,4)}, 0')
        a(f'v_mfma_f32_16x16x32_bf16 {vr(T0+4,4)}, {vr(KX1,4)}, {vr(QB,4)}, 0')
    else: v(4)
    for x in cvt4(KM,T1): a(x)
    if not full:
        v(16)
        a(f'buffer_store_dwordx4 {vr(KM,4)}, v{VKV}, {S_WS}, {sPub} offen sc1')
        for x in cvt4(VM,VA): a(x)
        a(f'buffer_store_dwordx4 {vr(VM,4)}, v{VKV}, {S_WS}, {sPub} offen offset:1024 sc1')
        return
    a(f'v_mfma_f32_16x16x32_bf16 {vr(T1,4)}, {vr(KM,4)}, {vr(QB,4)}, 0')
    stamp(a,3,diag)
    a(f'ds_write_b128 v{VSW}, {vr(T0,4)}')
    v()
    a(f'ds_write_b128 v{VSW}, {vr(T0+4,4)} offset:1024')
    a(f'buffer_store_dwordx4 {vr(KM,4)}, v{VKV}, {S_WS}, {sPub} offen sc1')
    v()
    a(f'buffer_load_dwordx4 {vr(KX0,4)}, v{VKV}, {S_WS}, {sKV} offen sc1\nbuffer_load_dwordx4 {vr(KX1,4)}, v{VKV}, {S_WS}, {sKV} offen offset:1024 sc1')
    a(f'ds_write2st64_b64 v{VSW}, {vr(T1,2)}, {vr(T1+2,2)} offset0:4 offset1:6')
    v(4)
    a('s_waitcnt lgkmcnt(0)\ns_barrier')
    stamp(a,4,diag)
    XR=[QA,QA+4,T0,T0+4]
    for wv in range(4): a(f'ds_read_b128 {vr(XR[wv],4)}, v{VSXR} offset:{wv*4096}')
    v()
    for wv in range(4): a(f'ds_read_b64 {vr(T1+2*wv,2)}, v{VSXR} offset:{wv*4096+2048}')
    v()
    for x in wo_read(0,KA): a(x)
    v(16)
    a('s_waitcnt lgkmcnt(8)')
    a(pkadd(QA,QA,QA+4)); a(pkadd(QA+2,QA+2,QA+6))
    a('s_waitcnt lgkmcnt(6)')
    a(pkadd(T0,T0,T0+4)); a(pkadd(T0+2,T0+2,T0+6))
    a('s_waitcnt lgkmcnt(2)')
    a(pkadd(T1,T1,T1+2)); a(pkadd(T1+4,T1+4,T1+6))
    a(pkadd(QA,QA,T0)); a(pkadd(QA+2,QA+2,T0+2)); a(pkadd(T1,T1,T1+4))
    a(f'v_max3_f32 v{MX}, v{QA}, v{QA+1}, v{QA+2}\nv_max3_f32 v{MX}, v{MX}, v{QA+3}, v{T1}\nv_max_f32 v{MX}, v{MX}, v{T1+1}')
    cv=cvt4(VM,VA)
    z=[f'v_mov_b64 {vr(M+i,2)}, 0' for i in range(0,32,2)]
    a(cv[0]); a(cv[1])
    a(f'v_max_f32_dpp v{MX}, v{MX}, v{MX} {DPP}')
    c16=crossmax('v_max_f32',MX,T20,16); c32=crossmax('v_max_f32',MX,T20,32)
    a(c16[0]); a(cv[2]); a(cv[3]); a(c16[1]); a(c16[2])
    r1=wo_read(1,VA)
    a(c32[0]); a(r1[0]); a(r1[1]); a(c32[1]); a(c32[2])
    a(f'v_mul_f32 v{NM}, {sCnst}, v{MX}')
    for r in (QA,QA+1,QA+2,QA+3,T1,T1+1): a(f'v_fma_f32 v{r}, v{r}, {sCnst}, -v{NM}')
    for r in (QA,QA+1,QA+2,QA+3,T1,T1+1): a(f'v_exp_f32 v{r}, v{r}')
    PX=QA+4; PM=T1+2
    a(f'v_cvt_pk_bf16_f32 v{PX}, v{QA}, v{QA+1}\nv_cvt_pk_bf16_f32 v{PX+1}, v{QA+2}, v{QA+3}\nv_cvt_pk_bf16_f32 v{PM}, v{T1}, v{T1+1}')
    a(f'v_mov_b32_dpp v{PX+2}, v{PX} {DPP}\nv_mov_b32_dpp v{PX+3}, v{PX+1} {DPP}\nv_mov_b32_dpp v{PM+1}, v{PM} {DPP}')
    stamp(a,5,diag)
    LXa=T2; LMa=T2+4
    a(f'buffer_store_dwordx4 {vr(VM,4)}, v{VKV}, {S_WS}, {sPub} offen offset:1024 sc1')
    a(f'v_mfma_f32_16x16x32_bf16 {vr(LXa,4)}, {vr(ONES,4)}, {vr(PX,4)}, 0')
    a(f'v_mfma_f32_16x16x16_bf16 {vr(LMa,4)}, {vr(ONES,2)}, {vr(PM,2)}, 0')
    a(f'v_mfma_f32_16x16x32_bf16 {vr(T0,4)}, {vr(VX0,4)}, {vr(PX,4)}, 0'); a(z.pop()); a(z.pop())
    a(f'v_mfma_f32_16x16x32_bf16 {vr(T0+4,4)}, {vr(VX1,4)}, {vr(PX,4)}, 0'); a(z.pop()); a(z.pop())
    a(f'v_mfma_f32_16x16x16_bf16 {vr(T0,4)}, {vr(VM,2)}, {vr(PM,2)}, {vr(T0,4)}'); a(z.pop()); a(z.pop())
    a(f'v_mfma_f32_16x16x16_bf16 {vr(T0+4,4)}, {vr(VM+2,2)}, {vr(PM,2)}, {vr(T0+4,4)}')
    RL=T20
    a(f'v_fma_f32 v{RL}, v{LMa}, 0.5, v{LXa}')
    a(f'v_rcp_f32 v{RL}, v{RL}')
    for x in wo_read(2,QA): a(x)
    a(f'buffer_load_dwordx4 {vr(VX0,4)}, v{VKV}, {S_WS}, {sKV} offen offset:2048 sc1\nbuffer_load_dwordx4 {vr(VX1,4)}, v{VKV}, {S_WS}, {sKV} offen offset:3072 sc1')
    for x in wo_read(3,T2): a(x)
    for i in range(4): a(f'v_pk_mul_f32 {vr(T0+2*i,2)}, {vr(T0+2*i,2)}, {vr(RL,2)} op_sel_hi:[1,0]')
    OP=T1+4
    for x in cvt4(OP,T0): a(x)
    a(f'ds_write_b128 v{VOW}, {vr(OP,4)}')
    stamp(a,6,diag)
    for x in z: a(x)
    a(f'v_mov_b64 {vr(KM,2)}, -1\nv_mov_b64 {vr(KM+2,2)}, -1')
    a(f's_add_u32 {sPub}, {sPub}, 524288\ns_add_u32 {sKV}, {sKV}, 524288')
    a(f'buffer_store_dwordx4 {vr(KM,4)}, v{VALD}, {S_WS}, {sRst} offen{sc}\nbuffer_store_dwordx4 {vr(KM,4)}, v{VALD}, {S_WS}, {sRst} offen offset:1024{sc}')
    a('s_waitcnt lgkmcnt(0)\ns_barrier')
    stamp(a,7,diag)
    OA=T0
    a(f'ds_read_b128 {vr(OA,4)}, v{LANE16} offset:{L_O}\nds_read_b128 {vr(OA+4,4)}, v{LANE16} offset:{L_O+1024}')
    for x in wo_read(4,T1): a(x)
    slot={0:KA,1:VA,2:QA,3:T2,4:T1}
    pend=[('o',0),('o',1),(4,0),(4,1)]
    nxt=5
    def epilogue(u):
        b0=M+8*u; b1=b0+4
        l=[f'v_permlane32_swap_b32 v{b0+r}, v{b1+r}' for r in range(4)]
        l+=[pkadd(b0,b0,b1), pkadd(b0+2,b0+2,b1+2)]
        l+=[f'v_cvt_pk_bf16_f32 v{b0}, v{b0}, v{b0+1}', f'v_cvt_pk_bf16_f32 v{b0+1}, v{b0+2}, v{b0+3}']
        l+=[f'buffer_store_dwordx2 {vr(b0,2)}, v{VAST}, {S_WS}, {sHA0 if u<2 else sHA1} offen offset:{(u&1)*2048}{sc}']
        return l
    epi=[]; delay=0
    for i in range(16):
        ks,t=order[i]
        needs=[('o',ks),(i,1)]
        idx=max([pend.index(x) for x in needs if x in pend],default=-1)
        if idx>=0:
            a(f's_waitcnt lgkmcnt({len(pend)-1-idx})'); pend=pend[idx+1:]
        g=slot[i]
        a(f'v_smfmac_f32_16x16x64_bf16 {vr(M+4*t,4)}, {vr(OA+4*ks,4)}, {vr(g,8)}, v{IDX}')
        if nxt<16:
            for x in wo_read(nxt,g): a(x)
            slot[nxt]=g; pend+=[(nxt,0),(nxt,1)]; nxt+=1
        if delay>0: delay-=1
        else:
            k=0
            while epi and k<P.get('epr',4): a(epi.pop(0)); k+=1
        if i%4==3:
            epi+=epilogue(i//4); delay=P.get('edel',1)
        if i==7: stamp(a,8,diag)
    for x in epi: a(x)
    stamp(a,9,diag)
    RA=T0; RB=T1; R=T2
    def issueA(b): a(f'buffer_load_dwordx4 {vr(b,4)}, v{VALD}, {S_WS}, {sHA0} offen sc1\nbuffer_load_dwordx4 {vr(b+4,4)}, v{VALD}, {S_WS}, {sHA0} offen offset:1024 sc1')
    Lp=a.label('PA'); Ld=a.label('PAd')
    zz=[f'v_mov_b64 {vr(QA+i,2)}, 0' for i in range(0,24,2)]
    a(f's_mov_b32 {sCnt}, 0')
    issueA(RA)
    for x in zz: a(x)
    for _ in range(P.get('gapA',1)): a('s_nop 7')
    issueA(RB)
    a(f'{Lp}:')
    for b in (RA,RB):
        a('s_waitcnt vmcnt(2)')
        a(f'v_mfma_f32_16x16x32_bf16 {vr(R,4)}, {vr(b,4)}, {vr(SELR,4)}, 0\nv_mfma_f32_16x16x32_bf16 {vr(R,4)}, {vr(b+4,4)}, {vr(SELR,4)}, {vr(R,4)}')
        for x in chk(b): a(x)
        a(f's_cbranch_vccz {Ld}')
        if diag: a('s_add_u32 s77, s77, 1')
        issueA(b)
    a(f's_add_u32 {sCnt}, {sCnt}, 1\ns_cmp_lt_u32 {sCnt}, {SPIN}\ns_cbranch_scc1 {Lp}\ns_branch {exit_label}')
    a(f'{Ld}:')
    stamp(a,10,diag)
    a(pkadd(R,R,R+2))
    a(f'v_add_f32 v{R}, v{R}, v{R+1}')
    a(f'v_mov_b32 v{R+1}, v{R}')
    a(f's_mov_b32 {sRst}, {sHA0}')
    a(f's_add_u32 {sHA0}, {sHA0}, 262144')
    a(f'v_permlane16_swap_b32 v{R}, v{R+1}')
    a(f'v_cvt_pk_bf16_f32 v{R}, v{R}, v{R+1}')
    a(f'buffer_store_dword v{R}, v{VBST}, {S_WS}, {sHB} offen{sc}')
    stamp(a,11,diag)
    a(f's_and_b32 {sHA0}, {sHA0}, {NRING*262144-1}\ns_or_b32 {sHA0}, {sHA0}, {WS_HOPA}\ns_add_u32 {sHA1}, {sHA0}, 4096')
    stamp_acc(a,diag)

def team_setup(a):
    a(f'''
    v_and_b32 v61, 15, v60               ; c
    v_lshrrev_b32 v62, 4, v60            ; g
    v_mov_b32 v{IDX}, 0x4444
    v_mov_b32 v63, 0xeeee
    v_cmp_lt_u32 vcc, 7, v61
    v_cndmask_b32 v{IDX}, v{IDX}, v63, vcc
    v_lshlrev_b32 v{LANE16}, 4, v60
    s_lshl_b32 s40, {sWv}, 15
    s_add_u32 s40, s40, {L_WO}
    v_add_u32 v{VWO}, s40, v{LANE16}
    v_lshrrev_b32 v63, 1, v62
    v_lshlrev_b32 v63, 2, v63
    v_lshrrev_b32 v64, 2, v61
    v_add_u32 v63, v63, v64
    v_mul_u32_u24 v66, {256*SWZ}, v63
    s_lshl_b32 s41, {sH}, 6
    s_and_b32 s40, {sWv}, {SWZ}
    s_lshl_b32 s40, s40, 7
    s_xor_b32 s41, s41, s40
    v_xor_b32 v66, s41, v66
    v_lshlrev_b32 v63, 13, v63
    v_and_b32 v64, 3, v61
    v_lshlrev_b32 v64, 4, v64
    v_and_b32 v65, 1, v62
    v_lshlrev_b32 v65, 3, v65
    v_add3_u32 v63, v63, v64, v65
    s_lshl_b32 s40, {sWv}, 16
    v_add3_u32 v{VAST}, s40, v63, v66
    v_lshlrev_b32 v63, 8, v62
    v_and_b32 v64, 3, v61
    v_lshlrev_b32 v64, 6, v64
    v_lshrrev_b32 v65, 2, v61
    v_lshlrev_b32 v65, 4, v65
    v_add3_u32 v63, v63, v64, v65
    s_lshl_b32 s40, {sH}, 2
    s_add_u32 s40, s40, {sWv}
    s_lshl_b32 s40, s40, 11
    v_add_u32 v{VALD}, s40, v63
    v_and_b32 v63, 7, v61                ; i
    v_lshrrev_b32 v64, 1, v62            ; half
    v_lshlrev_b32 v65, 3, v64
    v_add_u32 v65, v65, v63
    v_lshlrev_b32 v65, 4, v65
    s_lshl_b32 s40, {sWv}, 11
    s_lshr_b32 s41, {sH}, 2
    s_lshl_b32 s41, s41, 8
    s_add_u32 s40, s40, s41
    s_and_b32 s41, {sH}, 3
    s_lshl_b32 s41, s41, 2
    s_add_u32 s40, s40, s41
    v_add_u32 v{VBST}, s40, v65
    v_lshrrev_b32 v65, 3, v61
    v_and_b32 v66, 1, v62
    v_lshl_add_u32 v65, v66, 1, v65      ; replica
    v_and_b32 v65, {NREP-1}, v65
    v_mul_u32_u24 v65, {HB_REP}, v65
    v_add_u32 v{VBST}, v{VBST}, v65
    v_lshlrev_b32 v59, 10, v63
    v_lshlrev_b32 v65, 2, v64
    v_add_u32 v59, v59, v65
    s_lshr_b32 s40, {sH}, 3
    s_lshl_b32 s40, s40, 8
    s_lshl_b32 s41, {sWv}, 6
    s_add_u32 s40, s40, s41
    s_and_b32 s41, {sH}, 7
    s_lshl_b32 s41, s41, 3
    s_add_u32 s40, s40, s41
    v_add_u32 v59, s40, v59
    s_mul_i32 s40, {sWv}, {KV_W}
    s_mul_i32 s41, {sH}, {KV_H}
    s_add_u32 {sWB}, s41, s40
    v_add_u32 v{VKV}, {sWB}, v{LANE16}
    s_lshl_b32 s40, {sWv}, 12
    s_add_u32 s40, s40, {L_S}
    v_add_u32 v{VSW}, s40, v{LANE16}
    v_lshlrev_b32 v65, 4, v62
    v_add_u32 v65, v65, v63              ; lane' = i + 16g
    v_lshlrev_b32 v65, 4, v65
    v_lshrrev_b32 v66, 3, v61
    v_lshlrev_b32 v67, 10, v66
    v_add_u32 v67, v67, v65
    v_add_u32 v{VSXR}, {L_S}, v67
    s_lshr_b32 s40, {sWv}, 1
    s_lshl_b32 s40, s40, 10
    s_and_b32 s41, {sWv}, 1
    s_lshl_b32 s41, s41, 7
    s_add_u32 s40, s40, s41
    s_add_u32 s40, s40, {L_O}
    v_add_u32 v{VOW}, s40, v65
    v_add_u32 v67, {L_DUMP}, v{LANE16}
    v_cmp_lt_u32 vcc, 7, v61
    v_cndmask_b32 v{VOW}, v{VOW}, v67, vcc
    v_and_b32 v64, 1, v62
    v_lshlrev_b32 v64, 2, v64
    v_sub_u32 v64, v63, v64
    v_mov_b32 v65, 0x3f80
    v_mov_b32 v66, 0x3f800000
    ''')
    for rg in range(2):
        a(f'''v_cmp_eq_u32 vcc, {2*rg}, v64
        v_cndmask_b32 v{SELT+rg}, 0, v65, vcc
        v_cmp_eq_u32 vcc, {2*rg+1}, v64
        v_cndmask_b32 v{SELT+rg}, v{SELT+rg}, v66, vcc''')
    for rg in range(4):
        a(f'''v_cmp_eq_u32 vcc, {2*rg}, v63
        v_cndmask_b32 v{SELR+rg}, 0, v65, vcc
        v_cmp_eq_u32 vcc, {2*rg+1}, v63
        v_cndmask_b32 v{SELR+rg}, v{SELR+rg}, v66, vcc
        v_mov_b32 v{ONES+rg}, 0x3f803f80''')

def team_kernel(name,P,diag=False,cross=False):
    a=Asm()
    sc=' sc1' if cross else ''
    EXIT=name+'_exit'
    a(f'''
    s_cmp_ge_u32 s2, 256
    s_cbranch_scc1 {EXIT}
    s_getreg_b32 s3, hwreg(HW_REG_XCC_ID)
    s_and_b32 s3, s3, 15
    s_cmp_lg_u32 s3, 0
    s_cbranch_scc1 {EXIT}
    s_load_dwordx4 s[84:87], s[0:1], 8
    s_load_dwordx4 s[88:91], s[0:1], 24
    s_load_dwordx2 s[92:93], s[0:1], 40
    s_load_dwordx4 s[96:99], s[0:1], 112
    v_and_b32 v60, 63, v0
    v_lshrrev_b32 v61, 6, v0
    v_readfirstlane_b32 {sWv}, v61
    s_waitcnt lgkmcnt(0)
    ''')
    srd(a,S_WS,'s98','s99',WS_SIZE); srd(a,S_DBG,'s96','s97',256); srd(a,S_W,'s84','s85',8192)
    L1=a.label('EL')
    a(f'''
    s_cmp_lg_u32 {sWv}, 0
    s_cbranch_scc1 {L1}
    v_mov_b32 v61, 1
    v_mov_b32 v62, 0
    s_mov_b64 exec, 1
    buffer_atomic_add v61, off, {S_DBG}, 0 sc0
    s_waitcnt vmcnt(0)
    ds_write_b32 v62, v61
    s_mov_b64 exec, -1
    s_waitcnt lgkmcnt(0)
    {L1}:
    s_barrier
    v_mov_b32 v62, 0
    ds_read_b32 v61, v62
    s_waitcnt lgkmcnt(0)
    v_readfirstlane_b32 {sH}, v61
    s_barrier
    s_cmp_ge_u32 {sH}, 32
    s_cbranch_scc1 {EXIT}
    ''')
    if diag: a('s_memrealtime s[78:79]')
    team_setup(a)
    def extra():
        a(f'''v_mov_b64 v[56:57], -1
        v_mov_b64 v[54:55], -1
        s_lshl_b32 s40, {sH}, 14
        s_lshl_b32 s41, {sWv}, 12
        s_add_u32 s40, s40, s41
        s_add_u32 s40, s40, {WS_HOPB}''')
        for i in range(4): a(f'buffer_store_dwordx4 v[54:57], v{LANE16}, {S_WS}, s40 offen offset:{i*1024}{sc}')
        for r in range(NRING):
            a(f's_mov_b32 s40, {WS_HOPA+r*262144}')
            for i in range(2): a(f'buffer_store_dwordx4 v[54:57], v{VALD}, {S_WS}, s40 offen offset:{i*1024}{sc}')
        a(f'buffer_load_dword v58, v59, {S_W}, 0 offen')
        return 4+2*NRING+1
    T1m.load_weights(a,[86,88,90,92],3,True,extra,perm=True)
    L2=a.label('TB'); L3=a.label('TBd'); L4=a.label('TBs')
    a(f'''
    s_waitcnt vmcnt(0)
    s_barrier
    s_cmp_lg_u32 {sWv}, 0
    s_cbranch_scc1 {L4}
    v_mov_b32 v61, 1
    s_mov_b64 exec, 1
    buffer_atomic_add v61, off, {S_DBG}, 0 offset:4
    s_mov_b64 exec, -1
    {L4}:
    s_mov_b32 {sCnt}, 0
    {L2}:
    buffer_load_dword v61, off, {S_DBG}, 0 offset:4 sc1
    s_waitcnt vmcnt(0)
    v_readfirstlane_b32 s40, v61
    s_cmp_ge_u32 s40, 32
    s_cbranch_scc1 {L3}
    s_add_u32 {sCnt}, {sCnt}, 1
    s_cmp_lt_u32 {sCnt}, {SPIN}
    s_cbranch_scc1 {L2}
    s_branch {EXIT}
    {L3}:
    s_mov_b32 {sHB}, {WS_HOPB}
    s_mov_b32 {sHB2}, {WS_HOPB+4096}
    s_mov_b32 {sHA0}, {WS_HOPA}
    s_mov_b32 {sHA1}, {WS_HOPA+4096}
    s_mov_b32 {sRst}, {WS_HOPA+(NRING-1)*262144}
    s_mov_b32 {sKV}, {WS_KV}
    s_mov_b32 {sWarm}, {WS_KV+2*524288}
    s_mov_b32 {sPub}, {WS_KM}
    s_mov_b32 {sCnst}, {f2u(SCALE_LOG2E):#x}
    s_mov_b32 {sStep}, 0
    buffer_store_dword v58, v{VBST}, {S_WS}, {sHB} offen{sc}
    ''')
    for i,b in enumerate((KX0,KX1,VX0,VX1)): a(f'buffer_load_dwordx4 {vr(b,4)}, v{VKV}, {S_WS}, {sKV} offen offset:{i*1024} sc1')
    a(f's_add_u32 {sKV}, {sKV}, 524288')
    for i in range(0,24,2): a(f'v_mov_b64 {vr(QA+i,2)}, 0')
    if diag:
        for k in range(14): a(f's_mov_b32 s{64+k}, 0')
        a('s_memrealtime s[80:81]\ns_memtime s[60:61]\ns_waitcnt lgkmcnt(0)\ns_mov_b32 s63, s60')
    LOOP=name+'_loop'
    tail=[]
    a('.p2align 5')
    a(f'{LOOP}:')
    n0=len(a.items)
    step(a,True,cross,EXIT,tail,P,diag)
    a(f's_add_u32 {sStep}, {sStep}, 1\ns_cmp_lt_u32 {sStep}, 63\ns_cbranch_scc1 {LOOP}')
    n1=len(a.items)
    step(a,False,cross,EXIT,tail,P,False)
    if diag:
        a(f'''s_memrealtime s[82:83]
        s_waitcnt lgkmcnt(0)
        s_sub_u32 s78, s80, s78
        s_sub_u32 s79, s82, s80
        s_lshl_b32 s40, {sH}, 2
        s_add_u32 s40, s40, {sWv}
        s_lshl_b32 s40, s40, 6
        s_add_u32 s40, s40, {WS_STAMP}''')
        for k in range(16): a(f'v_mov_b32 v61, s{64+k}\nbuffer_store_dword v61, off, {S_WS}, s40 offset:{4*k}')
    a(f's_waitcnt vmcnt(0)')
    a(f'{EXIT}:')
    a('s_endpgm')
    n2=len(a.items)
    check_waits(a.items[:n1]+a.items[n0:n1]+a.items[n1:n2],name)
    for x in tail: a(x)
    a.fix()
    return a
```

```python
from asmdsl import *
from layout import *
import team2, loader
from team import srd, vr, Wreg, crossmax, SPIN, S_WS, S_W, S_DBG, LDS_TOTAL, L_WO
from team2 import chk, cvt4, pkadd, stamp_acc, NST
L_S=0; L_O=16384; L_DUMP=18432; L_MEM=19456; L_FLG=27648
sH='s20'; sWv='s21'; sStep='s22'; sCnt='s23'; sCnst='s24'; sHB='s25'; sHB2='s26'; sHA0='s27'; sHA1='s28'; sT='s29'
sAll='s30'; sKV='s31'; sFrow='s32'; sWarm='s33'; sWB='s34'; sRep='s35'; sPm='s[36:37]'; sXm='s[38:39]'
IDX=0; LANE16=1; VWO=2; VAST=3; SELT=4; VALD=6; VBST=7; SELR=8; ONES=12; VSC=17; VSXR=18; VOW=19; VKV=16
T20=20; T21=21; MX=22; NM=23
KX0=24; KX1=28; VX0=32; VX1=36; KM=40; VM=44; M=48; QA=80; KA=88; VA=96; T0=104; T1=112; T2=120
QP='quad_perm:[2,3,0,1] row_mask:0xf bank_mask:0xf'

def body(a,w,cross,exit_label,tail,P,diag,LOOP,ENTRY,DONE):
    sc=' sc1' if cross else ''
    SM_=P.get('smap',{k:k for k in range(12)})
    def stamp(k):
        if k in SM_: team2.stamp(a,SM_[k],diag)
    def sm(acc,ks,X,t): return f'v_smfmac_f32_16x16x64_bf16 {vr(acc+4*t,4)}, {vr(M+4*ks,4)}, {Wreg(X,ks,t)}, v{IDX}'
    Q=lambda p:[sm(QA,2*p+k,0,t) for k in range(2) for t in range(2)]
    K=lambda p:[sm(KA,2*p+k,1,t) for k in range(2) for t in range(2)]
    V=[sm(VA,ks,2,t) for ks in range(8) for t in range(2)]
    nv0=P.get('nv0',0) if w<2 else 0
    nv3=nv0+(P.get('nv3',3) if w<2 else 0)
    Vpost=V[nv3:]
    def v(n=1):
        for _ in range(n):
            if Vpost: a(Vpost.pop(0))
    order=[(ks,2*u+t) for u in range(4) for ks in range(2) for t in range(2)]
    def wo_read(i,g):
        ks,t=order[i]
        return [f'ds_read_b128 {vr(g+4*hf,4)}, v{VWO} offset:{((ks*8+t)*2+hf)*1024}' for hf in range(2)]
    QC=T2; KC=T2+4; QB=T2
    a(f'{LOOP}:')
    k=K(3 if w<2 else 5-w)
    a(k[0]); a(f'v_lshl_add_u32 v{T21}, v{LANE16}, 2, {sWB}'); a(k[1])
    cq=cvt4(QC,QA)
    a(k[2]); a(cq[0]); a(k[3]); a(cq[1]); a(cq[2]); a(cq[3])
    a('s_waitcnt vmcnt(4)')
    for t in range(2): a(f'v_mfma_f32_16x16x16_bf16 {vr(T0+4*t,4)}, {vr(QC+2*t,2)}, {vr(SELT,2)}, 0')
    v(P.get('v1',1))
    for x in cvt4(KC,KA): a(x)
    for t in range(2): a(f'v_mfma_f32_16x16x16_bf16 {vr(T1+4*t,4)}, {vr(KC+2*t,2)}, {vr(SELT,2)}, 0')
    for x in cvt4(QB,T0): a(x)
    a('s_waitcnt vmcnt(0)')
    a(f'v_mfma_f32_16x16x32_bf16 {vr(T0,4)}, {vr(KX0,4)}, {vr(QB,4)}, 0')
    a(f'v_mfma_f32_16x16x32_bf16 {vr(T0+4,4)}, {vr(KX1,4)}, {vr(QB,4)}, 0')
    for x in cvt4(KM,T1): a(x)
    a(f's_mov_b32 m0, {L_DUMP}')
    a(f'v_mfma_f32_16x16x32_bf16 {vr(T1,4)}, {vr(KM,4)}, {vr(QB,4)}, 0')
    stamp(0)
    for r in range(4): a(f'v_cndmask_b32 v{T0+r}, v{T0+r}, v{T0+4+r}, {sXm}')
    a(f'ds_write_b128 v{LANE16}, {vr(T0,4)} offset:{L_S+w*4096}')
    if P.get('rst','S')=='S': a(f'v_mov_b64 {vr(KM,2)}, -1\nv_mov_b64 {vr(KM+2,2)}, -1\ns_xor_b32 {sT}, {sHA0}, {HA_SLOT}')
    else: v()
    a(f'ds_write_b64 v{LANE16}, {vr(T1,2)} offset:{L_S+w*4096+2048}')
    v()
    warm=f'buffer_load_dword v{T21}, {S_WS}, {sWarm} offen sc1 lds'
    Lsl=a.label('SL'); Lbk=a.label('SB')
    if P.get('rst','S')=='S':
        a(f'buffer_store_dwordx4 {vr(KM,4)}, v{VALD}, {S_WS}, {sT} offen{sc}')
        v()
        a(f'buffer_store_dwordx4 {vr(KM,4)}, v{VALD}, {S_WS}, {sT} offen offset:1024{sc}')
    a(f's_lshl_b32 {sT}, {sStep}, 13\ns_add_u32 {sT}, {sT}, {WS_MPUB}')
    a(f'buffer_store_dword v{NM}, v{VBST}, {S_WS}, {sT} offen sc1')
    a(f's_cmp_eq_u32 {sAll}, 0')
    v()
    a(f's_cbranch_scc1 {Lsl}\n{Lbk}:')
    if P.get('warm','S')=='S': a(warm)
    nvm=1
    t=[f'{Lsl}:']
    Ls=a.label('FS'); Lo=a.label('FO')
    t+=[f'v_lshrrev_b32 v{T20}, 2, v{LANE16}', f'ds_read_b32 v{MX}, v{T20} offset:{L_FLG+w*256}',
        f's_add_u32 s40, {sStep}, 2', 's_min_u32 s40, s40, 63', 's_mov_b32 s41, 0', 's_waitcnt lgkmcnt(0)', f'{Ls}:',
        f'v_cmp_ne_u32 vcc, 0, v{MX}', 's_nop 3', 's_bitcmp1_b64 vcc, s40', f's_cbranch_scc1 {Lo}',
        f'buffer_load_dword v{MX}, v{T20}, {S_WS}, {sFrow} offen sc1', 's_add_u32 s41, s41, 1', f's_cmp_ge_u32 s41, {SPIN}', f's_cbranch_scc1 {exit_label}',
        's_waitcnt vmcnt(0)', f's_branch {Ls}', f'{Lo}:',
        's_cmp_eq_u64 vcc, -1', f's_cselect_b32 {sAll}, 1, 0', f's_mov_b32 m0, {L_FLG+w*256}', 's_nop 0',
        f'buffer_load_dword v{T20}, {S_WS}, {sFrow} offen sc1 lds', f's_mov_b32 m0, {L_DUMP}', f's_branch {Lbk}']
    tail.extend(t)
    v(P.get('vw',2))
    a('s_waitcnt lgkmcnt(0)\ns_barrier')
    stamp(1)
    XR=[QA,QA+4,T0+4]
    oth=[x for x in range(4) if x!=w]
    for j,wv in enumerate(oth):
        a(f'ds_read_b128 {vr(XR[j],4)}, v{LANE16} offset:{L_S+wv*4096}')
    v()
    for j,wv in enumerate(oth):
        a(f'ds_read_b64 {vr(T1+2+2*j,2)}, v{LANE16} offset:{L_S+wv*4096+2048}')
    pre=wo_read(2,KA)+wo_read(3,KX0)+wo_read(4,T2)
    nvs=P.get('nvs',3); npre=0
    for _ in range(nvs):
        v()
        if P.get('prs',1) and pre: a(pre.pop(0)); npre+=1
    a(f's_add_u32 {sWarm}, {sWarm}, {KV_SEG}')
    def vp():
        if Vpost:
            v()
            if pre: a(pre.pop(0))
    a(f's_waitcnt lgkmcnt({4+npre})')
    if P.get('sc1',0):
        for r in range(4): a(f'v_add_f32 v{QA+r}, v{QA+r}, v{QA+4+r}')
    else:
        a(pkadd(QA,QA,QA+4)); a(pkadd(QA+2,QA+2,QA+6))
    a(f's_waitcnt lgkmcnt({3+npre})')
    a(pkadd(T0,T0,T0+4)); a(pkadd(T0+2,T0+2,T0+6))
    a(pkadd(QA,QA,T0)); a(pkadd(QA+2,QA+2,T0+2))
    a(f's_waitcnt lgkmcnt({npre})')
    a(pkadd(T1,T1,T1+2)); a(pkadd(T1+4,T1+4,T1+6))
    a(f'v_max3_f32 v{MX}, v{QA}, v{QA+1}, v{QA+2}')
    a(pkadd(T1,T1,T1+4))
    a(f'v_max3_f32 v{MX}, v{MX}, v{QA+3}, v{T1}\nv_max_f32 v{MX}, v{MX}, v{T1+1}')
    cv=cvt4(VM,VA)
    z=[f'v_mov_b64 {vr(M+i,2)}, 0' for i in range(0,16,2)]
    z2=[f'v_mov_b64 {vr(M+i,2)}, 0' for i in range(16,32,2)]
    r0=wo_read(0,M+16); r1=wo_read(1,M+24); r5=wo_read(5,VA)
    def fill2():
        if Vpost: vp()
        else:
            for _ in range(2):
                if pre: a(pre.pop(0))
    fill2()
    a(f'v_max_f32_dpp v{MX}, v{MX}, v{MX} {QP}')
    c16=crossmax('v_max_f32',MX,T20,16); c32=crossmax('v_max_f32',MX,T20,32)
    a(c16[0]); fill2(); a(c16[1]); a(c16[2])
    a(c32[0]); fill2(); a(c32[1]); a(c32[2])
    a(f'v_mul_f32 v{NM}, {sCnst}, v{MX}')
    while Vpost: vp()
    if P.get('sc2',1):
        for r in (QA,QA+1,QA+2,QA+3,T1,T1+1): a(f'v_fma_f32 v{r}, v{r}, {sCnst}, -v{NM}')
    else:
      for r in (QA,QA+2,T1): a(f'v_pk_fma_f32 {vr(r,2)}, {vr(r,2)}, s[24:25], {vr(MX,2)} op_sel:[0,0,1] op_sel_hi:[1,0,1] neg_lo:[0,0,1] neg_hi:[0,0,1]')
    ex=cv+pre+r0+r1+r5
    for i,r in enumerate((QA,QA+1,QA+2,QA+3,T1,T1+1)): a(f'v_exp_f32 v{r}, v{r}')
    PX=QA+4; PM=T1+2
    a(f'v_cvt_pk_bf16_f32 v{PX}, v{QA}, v{QA+1}\nv_cvt_pk_bf16_f32 v{PX+1}, v{QA+2}, v{QA+3}\nv_cvt_pk_bf16_f32 v{PM}, v{T1}, v{T1+1}')
    a(f'v_mov_b32_dpp v{PX+2}, v{PX} {QP}\nv_mov_b32_dpp v{PX+3}, v{PX+1} {QP}\nv_cvt_pk_bf16_f32 v{PM+1}, v{T1}, v{T1+1}')
    stamp(2)
    LA=KM
    a(f'v_cvt_pk_bf16_f32 v{PM+2}, v{T1}, v{T1+1}')
    def zf(n):
        for _ in range(n):
            if ex: a(ex.pop(0))
            elif z: a(z.pop())
    a(f'v_mfma_f32_16x16x32_bf16 {vr(LA,4)}, {vr(ONES,4)}, {vr(PX,4)}, 0'); a(f'v_mov_b32 v{PM+3}, 0'); zf(1)
    a(f'v_mfma_f32_16x16x32_bf16 {vr(T0,4)}, {vr(VX0,4)}, {vr(PX,4)}, 0'); zf(2)
    a(f'v_mfma_f32_16x16x16_bf16 {vr(LA,4)}, {vr(ONES,2)}, {vr(PM+2,2)}, {vr(LA,4)}'); zf(2)
    a(f'v_mfma_f32_16x16x32_bf16 {vr(T0+4,4)}, {vr(VX1,4)}, {vr(PX,4)}, 0'); zf(2)
    while any(x in ex for x in cv): a(ex.pop(0))
    a(f'v_mfma_f32_16x16x16_bf16 {vr(T0,4)}, {vr(VM,2)}, {vr(PM,2)}, {vr(T0,4)}'); zf(2)
    a(f'v_mfma_f32_16x16x16_bf16 {vr(T0+4,4)}, {vr(VM+2,2)}, {vr(PM,2)}, {vr(T0+4,4)}')
    RL=T20
    a(f'v_rcp_f32 v{RL}, v{LA}')
    zf(16)
    a(f'v_mov_b64 {vr(KM,2)}, -1\nv_mov_b64 {vr(KM+2,2)}, -1' if P.get('rst','S')!='S' else f'v_mov_b32 v{KM}, -1')
    for i in range(4): a(f'v_pk_mul_f32 {vr(T0+2*i,2)}, {vr(T0+2*i,2)}, {vr(RL,2)} op_sel_hi:[1,0]')
    OP=T1+4
    for x in cvt4(OP,T0): a(x)
    a(f'ds_write_b128 v{VOW}, {vr(OP,4)}')
    stamp(3)
    for x in wo_read(6,QA)+wo_read(7,VX0): a(x)
    if P.get('rst','S')=='O':
        a(f's_xor_b32 {sT}, {sHA0}, {HA_SLOT}')
        a(f'buffer_store_dwordx4 {vr(KM,4)}, v{VALD}, {S_WS}, {sT} offen{sc}\nbuffer_store_dwordx4 {vr(KM,4)}, v{VALD}, {S_WS}, {sT} offen offset:1024{sc}')
    if P.get('rst','O')!='W':
        a(f's_add_u32 {sT}, {sHB}, {3*HB_STEP}\ns_and_b32 {sT}, {sT}, {WS_HOPB+3*HB_STEP}')
        a(f'buffer_store_dword v{KM}, v{VBST}, {S_WS}, {sT} offen{sc}')
    a(f's_min_u32 {sWarm}, {sWarm}, {WS_KV+63*KV_SEG}\ns_add_u32 {sKV}, {sKV}, {0 if P.get("samekv") else KV_SEG}')
    if P.get('align'):
        La=a.label('AL')
        a(f'''s_add_u32 s83, s83, {P['align']}
        {La}:
        s_memtime s[96:97]
        s_waitcnt lgkmcnt(0)
        s_sub_u32 s96, s96, s83
        s_cmp_lt_i32 s96, 0
        s_cbranch_scc1 {La}''')
    a('s_waitcnt lgkmcnt(4)\ns_barrier')
    stamp(4)
    OA=T0
    a(f'ds_read_b128 {vr(OA,4)}, v{LANE16} offset:{L_O}\nds_read_b128 {vr(OA+4,4)}, v{LANE16} offset:{L_O+1024}')
    for x in wo_read(8,T1): a(x)
    slot={0:M+16,1:M+24,2:KA,3:KX0,4:T2,5:VA,6:QA,7:VX0,8:T1}
    pend=[(6,0),(6,1),(7,0),(7,1),('o',0),('o',1),(8,0),(8,1)]
    nxt=9
    posA=P.get('posA',[99,99,99,99])[w]
    RA=KA if posA<99 else T0; R=T2
    def issueA(b): a(f'buffer_load_dwordx4 {vr(b,4)}, v{VALD}, {S_WS}, {sHA0} offen sc1 ;poll\nbuffer_load_dwordx4 {vr(b+4,4)}, v{VALD}, {S_WS}, {sHA0} offen offset:1024 sc1 ;poll')
    def prefill(b): return [f'v_mov_b64 {vr(b+i,2)}, -1' for i in range(0,8,2)]
    def epilogue(u):
        b0=M+8*u; b1=b0+4
        return [f'v_add_f32 v{b0}, v{b0}, v{b0+2}', f'v_add_f32 v{b0+1}, v{b0+1}, v{b0+3}', f'v_cvt_pk_bf16_f32 v{b0}, v{b0}, v{b0+1}',
                f'v_add_f32 v{b1}, v{b1}, v{b1+2}', f'v_add_f32 v{b1+1}, v{b1+1}, v{b1+3}', f'v_cvt_pk_bf16_f32 v{b0+1}, v{b1}, v{b1+1}',
                f'buffer_store_dwordx2 {vr(b0,2)}, v{VAST}, {S_WS}, {sHA0 if u<2 else sHA1} offen offset:{(u&1)*HA_BLK}{sc}']
    epi=[]; delay=0; nst=0; issuedA=False
    def emit_epi(x):
        nonlocal nst
        a(x)
        if x.startswith('buffer_store'):
            nst+=1
            if nst==1: stamp(5)
    rq=[]
    RPS=P.get('rps',[0,0,2,2,1,1,1,1,1,1,1,1,1,1,0,0])
    X_=P.get('xg','')
    a_=a
    def ag(x):
        if 'r' in X_ and x.startswith('ds_read'): return
        if 'v' in X_ and x.startswith(('v_pk_add','v_mov')): return
        a_(x)
    for i in range(16):
        ks,t=order[i]
        while any(f==i for f,h,x in rq):
            f,h,x=rq.pop(0); ag(x); pend.append((f,h))
        needs=[('o',ks),(i,1),(i,0)]
        idx=max([pend.index(x) for x in needs if x in pend],default=-1)
        if idx>=0:
            if not ('r' in X_ and i>8): a(f's_waitcnt lgkmcnt({len(pend)-1-idx if "r" not in X_ else 0})')
            pend=pend[idx+1:]
        g=slot[i]
        a(f'v_smfmac_f32_16x16x64_bf16 {vr(M+4*t,4)}, {vr(OA+4*ks,4)}, {vr(g,8)}, v{IDX}')
        if nxt<16 and i>=2:
            rq+=[(nxt,h,x) for h,x in enumerate(wo_read(nxt,g))]
            slot[nxt]=g; nxt+=1
        for _ in range(RPS[i]):
            if rq: f,h,x=rq.pop(0); ag(x); pend.append((f,h))
        if i==posA:
            assert i>=11
            issueA(RA); issuedA=True; nst0=nst
        if i<=1 or (not epi) or delay>0:
            lim=2 if i<2 else 1
            for _ in range(lim):
                if z2 and i>=1 and (len(z2)>4 or i>=2): ag(z2.pop(0))
        if delay>0: delay-=1
        else:
            kk=0
            while epi and kk<P.get('epr',3):
                x=epi.pop(0); kk+=1
                if not ('v' in X_ and x.startswith('v_pk')): emit_epi(x)
        if i==7:
            for x in z2: ag(x)
            z2=[]
        if i%4==3:
            epi+=epilogue(i//4); delay=P.get('edel',1)
        if i in P.get('gst',[]): stamp(30+P['gst'].index(i))
    if posA==16:
        issueA(RA); issuedA=True; nst0=nst
    for x in epi: emit_epi(x)
    stamp(6)
    if P.get('ackA'): a('s_waitcnt vmcnt(0)'); stamp(26)

    Lp=a.label('PA'); Ld=a.label('PAd')
    zq=[f'v_mov_b64 {vr(QA+i,2)}, 0' for i in range(0,24,2) if not (RA<=QA+i<RA+8)]
    zk=[f'v_mov_b64 {vr(QA+i,2)}, 0' for i in range(0,24,2) if (RA<=QA+i<RA+8)]
    a(f's_mov_b32 {sCnt}, 0')
    pre=P.get('preA',[4,5,7,8])[w]
    NA=P.get('NA',[2,2,2,2])[w]
    mf=f'v_mfma_f32_16x16x32_bf16 {vr(R,4)}, {vr(RA,4)}, {vr(SELR,4)}, 0\nv_mfma_f32_16x16x32_bf16 {vr(R,4)}, {vr(RA+4,4)}, {vr(SELR,4)}, {vr(R,4)}'
    gA=P.get('gapA',[4,4,4,4])[w]
    if not issuedA:
        if pre>=2:
            for x in zq: a(x)
            zq=[]
        for _ in range(max(0,pre-2)): a('s_nop 7')
        issueA(RA)
    wl=P.get('wlA',[0,0,0,0])[w]
    if wl:
        for x in zq: a(x)
        zq=[]
        for _ in range(P.get('wlA0',[2,2,2,2])[w]): a('s_nop 7')
        stamp(23)
        for j in range(wl):
            for x in chk(RA): a(x)
            a(mf)
            a(f's_cbranch_vccz {Ld}')
        a('s_mov_b64 exec, vcc'); issueA(RA); a('s_mov_b64 exec, -1')
    else:
        if zq:
            for x in zq: a(x)
            gA=max(0,gA-1)
        for j in range(NA-1):
            for _ in range(gA if j==0 else P.get('gapA',[4,4,4,4])[w]): a('s_nop 7')
            issueA(RA)
        stamp(23)
    if issuedA and not wl:
        a(f's_waitcnt vmcnt({2*(NA-1)+4-nst0})')
        for x in chk(RA): a(x)
        a(mf)
        a(f's_cbranch_vccz {Ld}')
        a('s_mov_b64 exec, vcc'); issueA(RA); a('s_mov_b64 exec, -1')
    a(f'{Lp}:')
    for j in range(2):
        a(f's_waitcnt vmcnt({2*(NA-1)})')
        for x in chk(RA): a(x)
        a(mf)
        a(f's_cbranch_vccz {Ld}')
        if diag: a('s_add_u32 s77, s77, 1')
        a('s_mov_b64 exec, vcc'); issueA(RA); a('s_mov_b64 exec, -1')
    a(f's_add_u32 {sCnt}, {sCnt}, 1\ns_cmp_lt_u32 {sCnt}, {SPIN}\ns_cbranch_scc1 {Lp}\ns_branch {exit_label}')
    a(f'{Ld}:')
    stamp(7)
    Lfin=a.label('FN')
    a(f's_add_u32 {sHB}, {sHB}, {HB_STEP}\ns_and_b32 {sHB}, {sHB}, {WS_HOPB+3*HB_STEP}\ns_cmp_eq_u32 {sStep}, 62')
    red=[f'v_permlane32_swap_b32 v{R}, v{R+1}', f'v_permlane32_swap_b32 v{R+2}, v{R+3}', f'v_add_f32 v{R}, v{R}, v{R+1}', f'v_add_f32 v{R+2}, v{R+2}, v{R+3}',
         f's_add_u32 {sHB2}, {sHB}, {w*2048}', f'v_permlane16_swap_b32 v{R}, v{R+2}', f'v_add_f32 v{R}, v{R}, v{R+2}',
         f'v_mov_b32_dpp v{R+1}, v{R} row_shl:4 row_mask:0xf bank_mask:0xf', f'v_cvt_pk_bf16_f32 v{R}, v{R}, v{R+1}']
    a(f's_cselect_b32 {sT}, {WS_MPUB+63*8192}, {sHB}')
    for x in red[:4]: a(x)
    a(f's_cbranch_scc1 {Lfin}')
    for x in red[4:]: a(x)
    a(f'buffer_store_dword v{R}, v{VBST}, {S_WS}, {sHB} offen{sc}')
    tail.extend([f'{Lfin}:']+red[4:]+[f'buffer_store_dword v{R}, v{VBST}, {S_WS}, {sT} offen sc1', f's_branch {DONE}'])
    stamp(25)
    if P.get('ackB'): a('s_waitcnt vmcnt(0)'); stamp(27)
    if P.get('rst')=='W':
        a(f'buffer_store_dwordx4 {vr(KM,4)}, v{VALD}, {S_WS}, {sHA0} offen{sc}\nbuffer_store_dwordx4 {vr(KM,4)}, v{VALD}, {S_WS}, {sHA0} offen offset:1024{sc}')
        a(f's_add_u32 {sT}, {sHB}, {3*HB_STEP}\ns_and_b32 {sT}, {sT}, {WS_HOPB+3*HB_STEP}')
        a(f'buffer_store_dword v{KM}, v{VBST}, {S_WS}, {sT} offen{sc}')
    a(f's_xor_b32 {sHA0}, {sHA0}, {HA_SLOT}\ns_add_u32 {sHA1}, {sHA0}, {2*HA_BLK}\ns_add_u32 {sStep}, {sStep}, 1')
    a(f'{ENTRY}:')
    kxl=[f'buffer_load_dwordx4 {vr(KX0+4*i,4)}, v{VKV}, {S_WS}, {sKV} offen offset:{i*1024} sc1' for i in range(4)]
    if P.get('kvW'):
        for x in kxl: a(x)
        kxl=[]
    PB=M+8*w
    Fw=[f'buffer_load_dwordx4 {vr(PB+4*i,4)}, v{LANE16}, {S_WS}, {sHB2} offen offset:{i*1024} sc1 ;poll' for i in range(2)]
    Ww=[f'ds_write_b128 v{LANE16}, {vr(PB+4*i,4)} offset:{L_MEM+w*2048+i*1024}' for i in range(2)]
    late=P.get('lateB',[None,None,None,None])[w]
    if late is None:
        for _ in range(P.get('preB',[6,6,6,5])[w]): a('s_nop 7')
        for x in Fw: a(x)
    gB=P.get('gapB',4)
    if zk:
        a('s_waitcnt vmcnt(2)')
        for x in zk: a(x)
        gB-=1
    NB=P.get('NB',[2,2,2,2])[w]
    if late is None:
        for j in range(NB-1):
            for _ in range(gB if j==0 else P.get('gapB',4)): a('s_nop 7')
            for x in Fw: a(x)
    elif late[0]<0:
        for _ in range(P.get('preB',[6,6,6,5])[w]): a('s_nop 7')
        for x in Fw: a(x)
    stamp(8)
    def loop(Lok):
        Ll=a.label('RL'); t=[f's_mov_b32 {sCnt}, 0', f'{Ll}:']
        for j in range(2):
            t+=[f's_waitcnt vmcnt({2*(NB-1)})']+chk(PB)+Ww+[f's_cbranch_vccz {Lok}','s_mov_b64 exec, vcc']+Fw+['s_mov_b64 exec, -1']+(['s_add_u32 s76, s76, 1'] if diag else [])
        t+=[f's_add_u32 {sCnt}, {sCnt}, 1', f's_cmp_lt_u32 {sCnt}, {SPIN}', f's_cbranch_scc1 {Ll}', f's_branch {exit_label}']
        return t
    def own_check(fill,inter=False):
        Lr=a.label('RT'); Lb=a.label('RB'); Lw=a.label('RW')
        if not inter:
            stamp(20)
            for x in loop(Lb): a(x)
            a(f'{Lb}:')
            return
        tail.extend([f'{Lr}:','s_mov_b64 exec, vcc']+Fw+['s_mov_b64 exec, -1']+loop(Lb))
        a(f's_waitcnt vmcnt({P.get("wB",[0,0,0,2])[w]})')
        c=chk(PB)+Ww; fill=list(fill)
        while c or fill:
            if c: a(c.pop(0))
            if fill: a(fill.pop(0))
        a(f's_cbranch_vccnz {Lr}\n{Lb}:')
    def MM(p): return [Q(p)[0],Q(p)[1],K(p)[0],K(p)[1],Q(p)[2],Q(p)[3],K(p)[2],K(p)[3]]
    def rds(p): return [f'ds_read_b128 {vr(M+8*p+4*i,4)}, v{LANE16} offset:{L_MEM+p*2048+i*1024}' for i in range(2)]
    early=(w<2 or (w==2 and P.get('e2',0)))
    if early:
        own_check([]); stamp(21); a('s_waitcnt lgkmcnt(0)'); stamp(22)
    else:
        stamp(20); stamp(21); stamp(22)
    a('s_barrier')
    stamp(9)
    if w<2:
        o=1-w
        for x in rds(o): a(x)
        for x in MM(w): a(x)
        a('s_waitcnt lgkmcnt(0)')
        for x in MM(o): a(x)
        for x in V[:nv0]: a(x)
    elif early:
        for x in rds(0)+rds(1): a(x)
        mm=MM(0)+MM(1)
        for i,x in enumerate(mm):
            if i%4==0: a(f's_waitcnt lgkmcnt({3-i//4})')
            a(x)
    else:
        for x in rds(0)+rds(1): a(x)
        mm=MM(0)+MM(1)
        if late is not None:
            for p_ in late:
                if p_==0:
                    for x in Fw: a(x)
                elif p_>0: mm[p_-1]=mm[p_-1]+'\n'+'\n'.join(Fw)
        a('s_waitcnt lgkmcnt(3)')
        for x in mm[:4]: a(x)
        a('s_waitcnt lgkmcnt(2)')
        cp=P.get('cpos',[0,0,4,4])[w]
        for i in range(4,cp):
            if i==8: a('s_waitcnt lgkmcnt(0)')
            a(mm[i])
        if cp<=8: a('s_waitcnt lgkmcnt(0)')
        own_check(mm[cp:cp+6],True)
        for x in mm[cp+6:]: a(x)
        a('s_waitcnt lgkmcnt(0)')
    a('s_barrier')
    stamp(10)
    if w<2:
        for x in rds(2)+rds(3): a(x)
        for x in V[nv0:nv3]: a(x)
        a('s_waitcnt lgkmcnt(2)')
        first,second=2,3
    else:
        first,second=w,5-w
        for x in rds(second): a(x)
    if P.get('rst')=='Y':
        a(f'v_mov_b64 {vr(T1,2)}, -1\nv_mov_b64 {vr(T1+2,2)}, -1\ns_xor_b32 {sT}, {sHA0}, {HA_SLOT}')
    for i,x in enumerate(Q(first)+K(first)):
        a(x)
        if i in (0,2,4,6) and kxl: a(kxl.pop(0))
        if i==7: a(f'v_mov_b32 v{NM}, v{T2}')
        if P.get('rst')=='Y' and i in (1,3): a(f'buffer_store_dwordx4 {vr(T1,4)}, v{VALD}, {S_WS}, {sT} offen offset:{512*(i-1)}{sc}{P.get("rmod","")}')
        if P.get('warm')=='Y' and i==5: a(f'v_lshl_add_u32 v{T21}, v{LANE16}, 2, {sWB}\ns_mov_b32 m0, {L_DUMP}')
        if P.get('warm')=='Y' and i==7: a(warm)
    a('s_waitcnt lgkmcnt(0)')
    for x in Q(second): a(x)
    stamp(11)
    stamp_acc(a,diag)
    a(f's_branch {LOOP}')

def sel_consts(a,IDXr,SELTr):
    a(f'''v_mov_b32 v{IDXr}, 0x4444
    v_mov_b32 v63, 0xeeee
    v_and_b32 v64, 2, v61
    v_cmp_ne_u32 vcc, 0, v64
    v_cndmask_b32 v{IDXr}, v{IDXr}, v63, vcc
    v_lshrrev_b32 v63, 2, v61
    v_cmp_eq_u32 vcc, v63, v62           ; (c>>2)==g
    v_and_b32 v64, 1, v61
    v_lshlrev_b32 v64, 4, v64
    v_mov_b32 v65, 0x3f80
    v_lshlrev_b32 v64, v64, v65
    v_cndmask_b32 v{SELTr}, 0, v64, vcc
    v_mov_b32 v{SELTr+1}, v{SELTr}''')

def team_setup(a):
    a(f'''
    v_and_b32 v61, 15, v60               ; c
    v_lshrrev_b32 v62, 4, v60            ; g
    ''')
    sel_consts(a,IDX,SELT)
    a(f'''
    v_lshlrev_b32 v{LANE16}, 4, v60
    s_lshl_b32 s40, {sWv}, 15
    s_add_u32 s40, s40, {L_WO}
    v_add_u32 v{VWO}, s40, v{LANE16}
    v_lshrrev_b32 v63, 3, v60
    v_lshlrev_b32 v66, 8, v63
    s_lshl_b32 s41, {sH}, 6
    s_and_b32 s40, {sWv}, 1
    s_lshl_b32 s40, s40, 7
    s_xor_b32 s41, s41, s40
    v_xor_b32 v66, s41, v66
    v_mul_u32_u24 v63, {4*HA_BLK}, v63
    v_and_b32 v64, 7, v60
    v_lshlrev_b32 v64, 3, v64
    s_mul_i32 s40, {sWv}, {32*HA_BLK}
    v_add3_u32 v63, v63, v64, v66
    v_add_u32 v{VAST}, s40, v63
    s_lshl_b32 s40, {sH}, 2
    s_add_u32 s40, s40, {sWv}
    s_mul_i32 s40, s40, {HA_BLK}
    v_add_u32 v{VALD}, s40, v{LANE16}
    v_and_b32 v63, 1, v61
    v_bfe_u32 v64, v61, 1, 1
    v_lshrrev_b32 v65, 1, v62
    v_and_b32 v66, 1, v62
    v_lshlrev_b32 v67, 4, v63
    v_lshlrev_b32 v68, 5, v64
    v_lshlrev_b32 v69, 2, v65
    v_add3_u32 v67, v67, v68, v69
    v_lshlrev_b32 v68, 3, v66
    s_lshl_b32 s40, {sWv}, 11
    s_lshr_b32 s41, {sH}, 3
    s_lshl_b32 s41, s41, 9
    s_add_u32 s40, s40, s41
    s_and_b32 s41, {sH}, 6
    s_lshl_b32 s41, s41, 5
    s_add_u32 s40, s40, s41
    s_and_b32 s41, {sH}, 1
    s_lshl_b32 s41, s41, 8
    s_add_u32 s40, s40, s41
    v_add3_u32 v{VBST}, v67, v68, s40
    v_and_b32 v67, 4, v61
    v_cmp_ne_u32 vcc, 0, v67
    v_mov_b32 v67, 0x7ff00000
    v_cndmask_b32 v{VBST}, v{VBST}, v67, vcc
    v_lshlrev_b32 v67, 10, v63
    v_lshlrev_b32 v68, 2, v64
    v_lshlrev_b32 v69, 3, v65
    v_add3_u32 v59, v67, v68, v69
    v_lshlrev_b32 v68, 4, v66
    s_lshr_b32 s40, {sH}, 3
    s_lshl_b32 s40, s40, 8
    s_lshl_b32 s41, {sWv}, 6
    s_add_u32 s40, s40, s41
    s_and_b32 s41, {sH}, 1
    s_lshl_b32 s41, s41, 5
    s_add_u32 s40, s40, s41
    s_and_b32 s41, {sH}, 6
    s_lshl_b32 s41, s41, 10
    s_add_u32 s40, s40, s41
    v_add3_u32 v59, v59, v68, s40
    s_mul_i32 s40, {sWv}, {KV_W}
    s_mul_i32 s41, {sH}, {KV_H}
    s_add_u32 {sWB}, s41, s40
    v_add_u32 v{VKV}, {sWB}, v{LANE16}
    v_bfe_u32 v65, v61, 1, 1
    v_lshlrev_b32 v66, 10, v65
    v_add_u32 v{VSXR}, v66, v{LANE16}
    s_lshr_b32 s40, {sWv}, 1
    s_lshl_b32 s40, s40, 10
    s_and_b32 s41, {sWv}, 1
    s_lshl_b32 s41, s41, 5
    s_add_u32 s40, s40, s41
    s_add_u32 s40, s40, {L_O}
    v_add_u32 v{VOW}, s40, v{LANE16}
    v_add_u32 v67, {L_DUMP}, v{LANE16}
    v_cmp_ne_u32 vcc, 0, v65
    v_cndmask_b32 v{VOW}, v{VOW}, v67, vcc
    v_and_b32 v63, 7, v61
    v_mov_b32 v65, 0x3f80
    v_mov_b32 v66, 0x3f800000
    ''')
    for rg in range(4):
        a(f'''v_cmp_eq_u32 vcc, {2*rg}, v63
        v_cndmask_b32 v{SELR+rg}, 0, v65, vcc
        v_cmp_eq_u32 vcc, {2*rg+1}, v63
        v_cndmask_b32 v{SELR+rg}, v{SELR+rg}, v66, vcc
        v_mov_b32 v{ONES+rg}, 0x3f803f80''')

def team_main(a,name,P,EXIT,tail,diag=False):
    assert NRING==2 and NREP==1
    fused=P.get('fused')
    a("""s_load_dwordx4 s[84:87], s[0:1], 8
    s_load_dwordx4 s[88:91], s[0:1], 24
    s_load_dwordx2 s[92:93], s[0:1], 40
    s_waitcnt lgkmcnt(0)""")
    srd(a,S_W,'s84','s85',8192)
    if diag: a('s_memrealtime s[78:79]')
    team_setup(a)
    def extra():
        a('v_mov_b64 v[56:57], -1\nv_mov_b64 v[54:55], -1')
        for i in range(4):
            a(f's_mov_b32 s40, {WS_HOPB+i*HB_STEP}')
            a(f'buffer_store_dword v54, v{VBST}, {S_WS}, s40 offen sc1')
        for r in range(NRING):
            a(f's_mov_b32 s40, {WS_HOPA+r*HA_SLOT}')
            for i in range(2): a(f'buffer_store_dwordx4 v[54:57], v{VALD}, {S_WS}, s40 offen offset:{i*1024} sc1')
        a(f'buffer_load_dword v58, v59, {S_W}, 0 offen')
        return 4+2*NRING+1
    loader.load_coop(a,[86,88,90,92],3,True,VWO,extra,mod=P.get('lmod',''))
    if P.get('tl'): P['tl'](1)
    L2=a.label('TB'); L3=a.label('TBd'); L4=a.label('TBs')
    a(f"""
    s_waitcnt vmcnt(0)
    s_barrier
    s_cmp_lg_u32 {sWv}, 0
    s_cbranch_scc1 {L4}
    s_cmp_eq_u32 s3, 0
    s_cselect_b32 s40, 1, 0x10001
    v_mov_b32 v61, s40
    s_mov_b64 exec, 1
    buffer_atomic_add v61, off, {S_DBG}, 0 offset:{D_TEAM}
    s_mov_b64 exec, -1
    {L4}:
    s_mov_b32 {sCnt}, 0
    {L2}:
    buffer_load_dword v61, off, {S_DBG}, 0 offset:{D_TEAM} sc1
    s_waitcnt vmcnt(0)
    v_readfirstlane_b32 s41, v61
    s_and_b32 s40, s41, 0xffff
    s_cmp_ge_u32 s40, 32
    s_cbranch_scc1 {L3}
    s_add_u32 {sCnt}, {sCnt}, 1
    s_cmp_lt_u32 {sCnt}, {SPIN}
    s_cbranch_scc1 {L2}
    s_branch {EXIT}
    {L3}:
    s_lshr_b32 s7, s41, 16
    s_lshl_b32 {sFrow}, {sH}, 8
    s_mov_b32 {sAll}, {0 if fused else 1}
    """)
    if fused:
        import roles
        roles.poll_ge(a,S_DBG,'0',D_INIT,64,EXIT)
        L5=a.label('TF'); L6=a.label('TFd')
        a(f"""v_lshrrev_b32 v62, 2, v{LANE16}
        s_mov_b32 {sCnt}, 0
        {L5}:
        buffer_load_dword v61, v62, {S_WS}, {sFrow} offen sc1
        s_waitcnt vmcnt(0)
        v_cmp_ne_u32 vcc, 0, v61
        s_nop 3
        s_and_b32 s40, vcc_lo, 3
        s_cmp_eq_u32 s40, 3
        s_cbranch_scc1 {L6}
        s_add_u32 {sCnt}, {sCnt}, 1
        s_cmp_lt_u32 {sCnt}, {SPIN}
        s_cbranch_scc1 {L5}
        s_branch {EXIT}
        {L6}:
        s_lshl_b32 s40, {sWv}, 8
        v_add_u32 v62, s40, v62
        ds_write_b32 v62, v61 offset:{L_FLG}
        s_waitcnt lgkmcnt(0)""")
    a(f"""
    s_mov_b32 {sHB}, {WS_HOPB}
    s_lshl_b32 {sHB2}, {sWv}, 11
    s_add_u32 {sHB2}, {sHB2}, {WS_HOPB}
    s_mov_b32 {sHA0}, {WS_HOPA}
    s_mov_b32 {sHA1}, {WS_HOPA+2*HA_BLK}
    s_mov_b32 {sKV}, {WS_KV}
    s_mov_b32 {sWarm}, {WS_KV+P.get('wah',1)*KV_SEG}
    s_mov_b32 {sCnst}, {f2u(SCALE_LOG2E):#x}
    s_mov_b32 {sStep}, 0
    s_lshl_b32 s40, {sH}, 1
    s_lshl_b64 {sPm}, 3, s40
    s_mov_b32 s38, 0xcccccccc
    s_mov_b32 s39, 0xcccccccc
    buffer_store_dword v58, v{VBST}, {S_WS}, {sHB} offen sc1
    v_mov_b32 v{T2}, v58
    v_lshl_add_u32 v{T21}, v{LANE16}, 2, {sWB}
    s_mov_b32 m0, {L_DUMP}
    s_nop 0
    buffer_load_dword v{T21}, {S_WS}, {sWarm} offen sc1 lds
    s_add_u32 {sWarm}, {sWarm}, {KV_SEG}
    """)
    for i in range(0,24,2): a(f'v_mov_b64 {vr(QA+i,2)}, 0')
    if P.get('tl'): P['tl'](2)
    if diag:
        for k in range(14): a(f's_mov_b32 s{64+k}, 0')
        a("""s_memrealtime s[40:41]
        s_waitcnt lgkmcnt(0)
        CAL:
        s_memrealtime s[42:43]
        s_memtime s[100:101]
        s_waitcnt lgkmcnt(0)
        s_cmp_eq_u32 s42, s40
        s_cbranch_scc1 CAL
        s_mov_b32 s101, s42""")
        a('''s_and_b32 s82, s101, 1023
        s_mul_i32 s82, s82, 22
        s_sub_u32 s83, s100, s82
        s_add_u32 s83, s83, 30000''')
        a('s_memrealtime s[80:81]\ns_mem'+team2.RT+'time s[94:95]\ns_waitcnt lgkmcnt(0)')
        for k in range(NST): a(f's_mov_b32 s{40+2*k}, s94')
        a('s_mov_b32 s99, s94')
    modes=[False,True] if fused else [False]
    if fused: a(f's_cmp_lg_u32 s7, 0\ns_cbranch_scc1 {name}_xsel')
    DONE=name+'_done'
    for cross in modes:
        nm=name+('x' if cross else '')
        if cross: a(f'{name}_xsel:')
        for w in range(3): a(f's_cmp_eq_u32 {sWv}, {w}\ns_cbranch_scc1 {nm}_ent{w}')
        a(f's_branch {nm}_ent3')
    for cross in modes:
        nm=name+('x' if cross else '')
        for w in range(4):
            a('.p2align 5')
            n0=len(a.items)
            body(a,w,cross,EXIT,tail,P,diag,f'{nm}_loop{w}',f'{nm}_ent{w}',DONE)
            it=a.items[n0:]
            e=it.index(f'{nm}_ent{w}:')
            check_waits(it[e:]+it+it,f'{nm}{w}')
    a(f'{DONE}:')
    if diag:
        a(f"""s_memrealtime s[82:83]
        s_waitcnt lgkmcnt(0)
        s_sub_u32 s78, s80, s78
        s_sub_u32 s79, s82, s80
        s_lshl_b32 s40, {sH}, 2
        s_add_u32 s40, s40, {sWv}
        s_lshl_b32 s40, s40, 6
        s_add_u32 s40, s40, {WS_STAMP}""")
        for k in range(16): a(f'v_mov_b32 v61, s{64+k}\nbuffer_store_dword v61, off, {S_WS}, s40 offset:{4*k}')
        a(f"""s_add_u32 s40, s40, 8192
        v_mov_b32 v61, s100
        buffer_store_dword v61, off, {S_WS}, s40
        v_mov_b32 v61, s101
        buffer_store_dword v61, off, {S_WS}, s40 offset:4
        s_barrier
        s_lshl_b32 s40, {sWv}, 10
        v_add_u32 v62, s40, v{LANE16}
        ds_read_b128 v[64:67], v62 offset:28672
        s_lshl_b32 s41, {sH}, 12
        s_add_u32 s41, s41, {WS_LOG}
        s_waitcnt lgkmcnt(0)
        buffer_store_dwordx4 v[64:67], v62, {S_WS}, s41 offen""")
```

```python
WS_FLAGS=0x0
WS_MOD  =0x10000
WS_STAMP=0x18000
WS_HOPB =0x100000
import os
NREP=int(os.environ.get('NREP','1'))
HB_REP=8192+256
HB_STEP=65536
WS_HOPA =0x200000
import os
NRING=int(os.environ.get('NRING','2'))
SWZ=int(os.environ.get('SWZ','1'))
WS_H    =0x400000
WS_X1   =0x600000
WS_H2   =0x800000
WS_G    =0xA00000
WS_Q    =0x2000000
WS_KV   =0x3000000
KV_H=16384
KV_SEG=32*KV_H
KV_W=4096
WS_MPUB =0x20000
WS_P1   =0x6000000
WS_SIZE =0x10000000
SCALE_LOG2E = (128 ** -0.5) * 1.4426950408889634
import struct
def f2u(f): return struct.unpack('<I', struct.pack('<f', f))[0]

F_KV=0
C_P1=8192
C_H2=16384
C_G =24576
D_SLOT=0
D_TEAM=4
D_INIT=20
D_MOD=36
D_LN=52
D_FLAG=128
G_SEG=2*43*1024
WS_LOG=0xF000000
WS_TL=0xF100000
HA_BLK=int(os.environ.get('HABLK','2176'))
HA_SLOT=524288
```

```python
from asmdsl import *
from layout import *
from team import srd, vr, Wpair, L_WO
sH='s20'; sWv='s21'
def perm_u(u): return 2*(2*(u&3)+(u>>3))+((u>>2)&1)

def load_coop(a,ptrs,nmat,with_wo,VWO=2,extra=None,UB=2,AH=28,mod='',hooks={}):
    srds=['s[44:47]','s[48:51]','s[52:55]','s[56:59]']
    for i,p in enumerate(ptrs): srd(a,srds[i],f's{p}',f's{p+1}',4194304)
    a(f'''
    v_lshrrev_b32 v61, 4, v60            ; row&3
    v_lshlrev_b32 v62, 13, v61
    v_and_b32 v63, 15, v60
    v_lshlrev_b32 v63, 4, v63
    v_lshlrev_b32 v64, 5, v61
    v_xor_b32 v63, v63, v64
    s_and_b32 s40, {sWv}, 1
    s_lshl_b32 s40, s40, 7
    v_xor_b32 v63, s40, v63
    s_lshl_b32 s40, {sH}, 8
    s_lshl_b32 s41, {sWv}, 16
    s_add_u32 s40, s40, s41
    v_add3_u32 v62, v62, v63, s40
    s_lshl_b32 s42, {sWv}, 11
    s_add_u32 s42, s42, {L_WO}
    v_lshrrev_b32 v63, 4, v60            ; g
    v_bfe_u32 v64, v60, 2, 2             ; r
    v_and_b32 v65, 3, v60                ; cc
    v_lshlrev_b32 v66, 3, v63
    v_add_u32 v66, v66, v64
    v_lshlrev_b32 v66, 8, v66            ; (8g+r)*256
    v_and_b32 v67, 1, v63
    v_lshlrev_b32 v67, 2, v67
    v_or_b32 v67, v67, v64               ; f
    s_lshl_b32 s40, {sWv}, 1
    v_xor_b32 v67, s40, v67
    v_lshlrev_b32 v67, 5, v67
    v_lshlrev_b32 v68, 3, v65
    v_add3_u32 v66, v66, v67, v68
    v_add_u32 v66, {L_WO}, v66
    v_xor_b32 v67, 32, v66               ; t=1
    v_add_u32 v73, 0x10000, v66
    v_add_u32 v74, 0x10000, v67
    ''')
    if with_wo:
        a(f'''
    v_lshrrev_b32 v68, 4, v60
    v_lshlrev_b32 v69, 10, v68
    v_and_b32 v68, 1, v68
    v_lshlrev_b32 v68, 5, v68
    v_and_b32 v70, 15, v60
    v_lshlrev_b32 v70, 4, v70
    v_xor_b32 v70, v70, v68
    v_add_u32 v69, v69, v70
    s_lshl_b32 s40, {sH}, 17
    s_lshl_b32 s41, {sWv}, 8
    s_add_u32 s40, s40, s41
    v_add_u32 v69, s40, v69
    v_xor_b32 v70, 64, v69
    v_xor_b32 v71, 128, v69
    v_xor_b32 v72, 192, v69
    ''')
    NU=nmat*16
    def issue(op):
        _,u,j=op
        if u<NU:
            a(f's_add_u32 m0, s42, {(u%16)*8192+j*1024}\ns_mov_b32 s43, {(u%16)*262144+j*32768}\nbuffer_load_dwordx4 v62, {srds[u//16]}, s43 offen lds')
        else:
            sg=2*(u-NU)+j; v=['v69','v70','v71','v72'][(sg>>2)&3]
            a(f's_add_u32 m0, s42, {(u%16)*8192+j*1024}\ns_mov_b32 s43, {sg*4096}\nbuffer_load_dwordx4 {v}, {srds[nmat]}, s43 offen lds')
    todo=[('u',u,j) for u in range(NU+(16 if with_wo else 0)) for j in range(2)]
    ops=[]
    def can(op,done):
        return op[1]-16<done
    while todo and len(ops)<AH and can(todo[0],0): op=todo.pop(0); issue(op); ops.append(op)
    if extra: ops+=['x']*extra()
    for u0 in range(0,NU,UB):
        last=('u',u0+UB-1,1)
        a(f's_waitcnt vmcnt({len(ops)-1-ops.index(last)}) lgkmcnt(0)\ns_barrier')
        k=0
        while todo and can(todo[0],u0) and k<2*UB: op=todo.pop(0); issue(op); ops.append(op); k+=1
        for u in range(u0,u0+UB):
            X=u//16; uu=perm_u(u%16); pos=u%16
            for t in range(2):
                for jh in range(2):
                    a(f'ds_read_b64_tr_b16 {Wpair(X,uu,t,jh)}, v{(66 if pos<8 else 73)+t} offset:{(pos%8)*8192+jh*1024}')
        if u0 in hooks: hooks[u0]()
    a('s_waitcnt lgkmcnt(0)\ns_barrier')
    if with_wo:
        while todo: op=todo.pop(0); issue(op); ops.append(op)
        if 'end' in hooks: ops+=['x']*hooks['end']()
        a(f'''
    v_lshrrev_b32 v63, 4, v60
    v_bfe_u32 v64, v60, 2, 2
    v_and_b32 v65, 3, v60
    v_and_b32 v73, 1, v63                ; g&1
    v_lshlrev_b32 v74, 14, v73
    v_lshrrev_b32 v75, 1, v63
    v_lshlrev_b32 v75, 10, v75
    v_add_u32 v74, v74, v75
    v_and_b32 v75, 1, v64                ; r&1
    v_lshlrev_b32 v77, 8, v75
    v_add_u32 v74, v74, v77
    v_lshrrev_b32 v76, 1, v64            ; r>>1
    v_lshlrev_b32 v77, 15, v76
    v_add_u32 v74, v74, v77
    v_lshlrev_b32 v73, 1, v73
    v_lshlrev_b32 v76, 2, v76
    v_or3_b32 v75, v75, v73, v76
    v_lshlrev_b32 v75, 5, v75
    v_lshlrev_b32 v65, 3, v65
    v_add3_u32 v74, v74, v75, v65
    v_add_u32 v74, s42, v74
    v_bfe_u32 v76, v60, 1, 1
    v_lshlrev_b32 v76, 13, v76
    v_lshlrev_b32 v77, 8, v63
    v_bfe_u32 v73, v60, 2, 2
    v_lshlrev_b32 v73, 5, v73
    v_add3_u32 v76, v76, v77, v73
    v_and_b32 v77, 1, v60
    v_lshlrev_b32 v77, 4, v77
    v_add3_u32 v76, v76, v77, s42
    ''')
        for ks in range(2):
            last=('u',NU+8*ks+7,1)
            a(f's_waitcnt vmcnt({len(ops)-1-ops.index(last)})')
            if ks: a('v_add_u32 v74, 0x10000, v74\nv_add_u32 v76, 0x10000, v76')
            dst=[80,88,96,104,112,120,24,32]
            for t in range(8):
                a(f'v_xor_b32 v75, {t*32}, v74')
                for P,off in enumerate((0,512,8192,8704)):
                    a(f'ds_read_b64_tr_b16 {vr(dst[t]+2*P,2)}, v75 offset:{off}')
            a('s_waitcnt lgkmcnt(0)')
            for t in range(8):
                for hf in range(2):
                    a(f'ds_write_b128 v76, {vr(dst[t]+4*hf,4)} offset:{(t&6)*8192+hf*1024+(t&1)*128}')
            a('s_waitcnt lgkmcnt(0)')
```

```python
from asmdsl import *
from layout import *
from team import srd, vr, S_WS, S_DBG, SPIN, LDS_TOTAL
import team4 as team3, roles
from roles import sH, sWv, sRep, sE
NAB=3; NR1=53

def tl(a,k,diag):
    if diag:
        a(f'''s_memrealtime s[82:83]
        s_lshl_b32 s81, s4, 5
        s_add_u32 s81, s81, s19x
        '''.replace('s19x','s99'))
        a(f'''s_lshl_b32 s81, s81, 6
        s_add_u32 s81, s81, {WS_TL}
        s_waitcnt lgkmcnt(0)
        v_mov_b32 v59, s82
        buffer_store_dword v59, off, {S_WS}, s81 offset:{4*k}
        s_waitcnt vmcnt(0)''')

def mega(name,P,diag=False,upto=99,standalone_team=False):
    a=Asm(); tail=[]
    roles.DIAG=diag
    EXIT=name+'_exit'
    C1=a.label('CL'); C2=a.label('CD'); C3=a.label('CW')
    a(f'''
    s_cmp_ge_u32 s2, 256
    s_cbranch_scc1 {EXIT}
    s_load_dwordx4 s[96:99], s[0:1], 112
    s_getreg_b32 s3, hwreg(HW_REG_XCC_ID)
    s_and_b32 s3, s3, 7
    v_and_b32 v60, 63, v0
    v_lshrrev_b32 v61, 6, v0
    v_readfirstlane_b32 {sWv}, v61
    s_waitcnt lgkmcnt(0)
    ''')
    srd(a,S_WS,'s98','s99',WS_SIZE); srd(a,S_DBG,'s96','s97',256)
    a(f'''
    s_cmp_lg_u32 {sWv}, 0
    s_cbranch_scc1 {C3}
    s_mov_b32 s4, s3
    s_mov_b32 s5, 0
    s_mov_b64 exec, 1
    {C1}:
    v_mov_b32 v61, 1
    s_lshl_b32 s6, s4, 4
    s_cmp_eq_u32 s4, 0
    s_cselect_b32 s6, 224, s6
    buffer_atomic_add v61, off, {S_DBG}, s6 offset:{D_SLOT} sc0
    s_waitcnt vmcnt(0)
    v_readfirstlane_b32 s6, v61
    s_cmp_lt_u32 s6, 32
    s_cbranch_scc1 {C2}
    s_add_u32 s4, s4, 1
    s_and_b32 s4, s4, 7
    s_add_u32 s5, s5, 1
    s_cmp_lt_u32 s5, 8
    s_cbranch_scc1 {C1}
    s_mov_b32 s4, 8
    {C2}:
    s_lshl_b32 s4, s4, 5
    s_add_u32 s4, s4, s6
    v_mov_b32 v61, s4
    v_mov_b32 v62, 0
    ds_write_b32 v62, v61
    s_mov_b64 exec, -1
    s_waitcnt lgkmcnt(0)
    {C3}:
    s_barrier
    v_mov_b32 v62, 0
    ds_read_b32 v61, v62
    s_waitcnt lgkmcnt(0)
    v_readfirstlane_b32 s5, v61
    s_barrier
    s_cmp_ge_u32 s5, 256
    s_cbranch_scc1 {EXIT}
    s_lshr_b32 s4, s5, 5
    s_and_b32 s99, s5, 31
    s_cmp_lt_u32 s5, 32
    s_cbranch_scc1 {name}_team
    ''')
    if standalone_team:
        a(f's_branch {EXIT}')
    else:
        tl(a,0,diag)
        a(f'''s_sub_u32 s5, s5, 32
        s_mul_i32 {sH}, s5, 9363
        s_lshr_b32 {sH}, {sH}, 16
        s_mul_i32 s40, {sH}, 7
        s_sub_u32 {sRep}, s5, s40
        s_cmp_lt_u32 {sRep}, {roles.NEARLY}
        s_cbranch_scc1 {name}_qkv
        s_cmp_lt_u32 {sRep}, 3
        s_cbranch_scc1 {name}_pf
        s_cmp_ge_u32 {sRep}, 5
        s_cbranch_scc1 {name}_ln''')
        roles.role_init_mod(a,EXIT,1)
        a(f'{name}_ln:')
        roles.role_ln1(a,EXIT)
        a(f's_cmp_ge_u32 {sRep}, 5\ns_cbranch_scc1 {name}_gate')
        roles.role_init_mod(a,EXIT,2)
        a(f's_branch {name}_gate\n{name}_pf:')
        roles.role_prefetch(a); a('s_waitcnt vmcnt(0)')
        if P.get('pfgo',1): a(f's_branch {name}_qkv')
        a(f'{name}_gate:')
        roles.poll_wg(a,S_DBG,'0',D_FLAG+D_TEAM+4,1,EXIT,slp=8)
        a(f'{name}_qkv:')
        tl(a,1,diag)
        if upto>=2:
            roles.role_qkv(a,EXIT,(lambda: tl(a,4,True)) if diag else None,P.get('coop',1))
        tl(a,2,diag)
        if upto>=4:
            roles.poll_wg(a,S_DBG,'0',D_FLAG+D_INIT,1,EXIT)
            a(f'''s_cmp_lt_u32 {sRep}, {NAB}
            s_cbranch_scc1 {name}_ab
            s_mul_i32 {sE}, {sH}, {7-NAB}
            s_add_u32 {sE}, {sE}, {sRep}
            s_sub_u32 {sE}, {sE}, {NAB}
            s_cmp_lt_u32 {sE}, {NR1}
            s_cbranch_scc1 {name}_r1
            s_sub_u32 {sE}, {sE}, {NR1}
            s_cmp_lt_u32 {sE}, 43
            s_cbranch_scc1 {name}_c
            s_sub_u32 {sE}, {sE}, 43
            s_cmp_lt_u32 {sE}, 32
            s_cbranch_scc0 {EXIT}''')
            if upto>=7: roles.role_d(a,EXIT,sE)
            a(f's_branch {name}_fin\n{name}_c:')
            if upto>=6: roles.role_c(a,EXIT,sE)
            a(f's_branch {name}_fin\n{name}_r1:')
            if upto>=5: roles.role_r1(a,EXIT,sE,NR1)
            a(f's_branch {name}_fin\n{name}_ab:')
            roles.role_ab(a,EXIT,NAB)
            a(f'{name}_fin:')
            tl(a,3,diag)
            if diag:
                for k in range(7): a(f'v_mov_b32 v59, s{60+2*k}\nbuffer_store_dword v59, off, {S_WS}, s81 offset:{32+4*k}')
        a(f's_branch {EXIT}')
    a(f'{name}_team:')
    a(f's_mov_b32 {sH}, s5')
    tl(a,0,diag and not standalone_team)
    if upto>=3:
        if diag and not standalone_team: P['tl']=lambda k: tl(a,k,True)
        team3.team_main(a,name+'_t',P,EXIT,tail,diag=P.get('tdiag',False))
    tl(a,3,diag and not standalone_team)
    a(f's_waitcnt vmcnt(0)\n{EXIT}:\ns_endpgm')
    for x in tail: a(x)
    check_waits([x for x in a.items][:a.items.index(f'{name}_team:')],'workers')
    a.fix()
    return a
```

```python
from asmdsl import *
from layout import *
from team import srd, vr, Wpair, S_WS, S_DBG, L_WO, DPP, SPIN
import team as T1m
sH='s20'; sWv='s21'; sRep='s6'; sE='s5'; sCnt='s23'
import os
TEAMGATE=int(os.environ.get('TG','16'))
NEARLY=int(os.environ.get('NE','1')); NRND=int(os.environ.get('NR','3'))
LOG2E=1.4426950408889634
def dpp(c): return f'{c} row_mask:0xf bank_mask:0xf'
def cvt2(d,s): return [f'v_cvt_pk_bf16_f32 v{d}, v{s}, v{s+1}', f'v_cvt_pk_bf16_f32 v{d+1}, v{s+2}, v{s+3}']
def perm_u(u): return 2*(2*(u&3)+(u>>3))+((u>>2)&1)
def Wd4(X,u,t):
    uu=perm_u(u); b=((uu>>1)*2+t)*8+(uu&1)*4
    return [f'a[{b}:{b+3}]',f'a[{128+b}:{128+b+3}]',f'v[{128+b}:{128+b+3}]'][X]

DIAG=False
def mark(a,k):
    if DIAG: a(f's_memrealtime s[{60+2*k}:{61+2*k}]')

def poll_ge(a,srdn,off_expr,imm,target,exit_label,vt=61,st='s40'):
    L=a.label('PL'); D=a.label('PD')
    a(f'''s_mov_b32 {sCnt}, 0
    {L}:
    buffer_load_dword v{vt}, off, {srdn}, {off_expr} offset:{imm} sc1
    s_waitcnt vmcnt(0)
    v_readfirstlane_b32 {st}, v{vt}
    s_cmp_ge_u32 {st}, {target}
    s_cbranch_scc1 {D}
    s_sleep 2
    s_add_u32 {sCnt}, {sCnt}, 1
    s_cmp_lt_u32 {sCnt}, {SPIN}
    s_cbranch_scc1 {L}
    s_branch {exit_label}
    {D}:''')

def poll_wg(a,srdn,off_expr,imm,target,exit_label,vt=61,st='s40',mask=None,slp=2):
    L=a.label('PL'); D=a.label('PD')
    a(f"""s_cmp_lg_u32 {sWv}, 0
    s_cbranch_scc1 {D}
    s_mov_b32 {sCnt}, 0
    {L}:
    buffer_load_dword v{vt}, off, {srdn}, {off_expr} offset:{imm} sc1
    s_waitcnt vmcnt(0)
    v_readfirstlane_b32 {st}, v{vt}""")
    if mask: a(f's_and_b32 {st}, {st}, {mask}')
    a(f"""s_cmp_ge_u32 {st}, {target}
    s_cbranch_scc1 {D}
    s_sleep {slp}
    s_add_u32 {sCnt}, {sCnt}, 1
    s_cmp_lt_u32 {sCnt}, {SPIN}
    s_cbranch_scc1 {L}
    s_branch {exit_label}
    {D}:
    s_barrier""")

def signal_add(a,srdn,off_expr,imm,vt=61):
    L=a.label('SG')
    a(f'''s_waitcnt vmcnt(0)
    s_barrier
    s_cmp_lg_u32 {sWv}, 0
    s_cbranch_scc1 {L}
    v_mov_b32 v{vt}, 1
    s_mov_b64 exec, 1
    buffer_atomic_add v{vt}, off, {srdn}, {off_expr} offset:{imm}
    s_mov_b64 exec, -1
    {L}:''')

def signal_last(a,cnt,target,vt=61):
    L=a.label('SG')
    a(f"""s_waitcnt vmcnt(0)
    s_barrier
    s_cmp_lg_u32 {sWv}, 0
    s_cbranch_scc1 {L}
    v_mov_b32 v{vt}, 1
    s_mov_b64 exec, 1
    buffer_atomic_add v{vt}, off, {S_DBG}, 0 offset:{cnt} sc0
    s_waitcnt vmcnt(0)
    v_readfirstlane_b32 s40, v{vt}
    s_mov_b64 exec, -1
    s_cmp_lg_u32 s40, {target-1}
    s_cbranch_scc1 {L}
    buffer_store_dword v{vt}, off, {S_DBG}, 0 offset:{D_FLAG+cnt} sc1
    {L}:""")

def wave_sum(a,regs,t):
    for sh in (1,2,4,8):
        for r in regs: a(dpp(f'v_add_f32_dpp v{r}, v{r}, v{r} row_ror:{sh}'))
    for sw in ('v_permlane16_swap_b32','v_permlane32_swap_b32'):
        for i,r in enumerate(regs): a(f'v_mov_b32 v{t+i}, v{r}')
        for i,r in enumerate(regs): a(f'{sw} v{r}, v{t+i}')
        for i,r in enumerate(regs): a(f'v_add_f32 v{r}, v{r}, v{t+i}')

def unpack(a,d,s,n):
    for i in range(n):
        a(f'v_and_b32 v{d+2*i+1}, 0xffff0000, v{s+i}\nv_lshlrev_b32 v{d+2*i}, 16, v{s+i}')

def mod_piece(a,ncol,sCol):
    ng=ncol//8; nsl=256//ng; kper=512//nsl
    lg=ng.bit_length()-1
    L=a.label('NM')
    a(f"""v_lshrrev_b32 v2, {lg}, v0
    v_mul_u32_u24 v3, {2*kper}, v2""")
    if kper==4: a('buffer_load_dwordx2 v[8:9], v3, s[44:47], 0 offen')
    else: a('buffer_load_dwordx4 v[8:11], v3, s[44:47], 0 offen')
    a(f"""s_mov_b32 s37, {kper*6144}
    v_mul_lo_u32 v3, s37, v2
    v_and_b32 v4, {ng-1}, v0
    v_lshlrev_b32 v4, 4, v4
    v_add_u32 v3, v3, v4
    s_lshl_b32 s37, {sCol}, 1""")
    for k in range(kper):
        a(f'buffer_load_dwordx4 {vr(64+4*k,4)}, v3, s[48:51], s37 offen\ns_add_u32 s37, s37, 6144')
    a(f's_waitcnt vmcnt({kper})')
    unpack(a,16,8,kper//2)
    a(f's_mov_b32 s38, {f2u(-LOG2E):#x}')
    for k in range(kper): a(f'v_mul_f32 v{32+k}, s38, v{16+k}')
    for k in range(kper): a(f'v_exp_f32 v{32+k}, v{32+k}')
    for k in range(kper): a(f'v_add_f32 v{32+k}, 1.0, v{32+k}')
    for k in range(kper): a(f'v_rcp_f32 v{32+k}, v{32+k}')
    a('s_nop 0')
    for k in range(kper): a(f'v_mul_f32 v{16+k}, v{16+k}, v{32+k}')
    for k in range(kper//2): a(f'v_cvt_pk_bf16_f32 v{8+k}, v{16+2*k}, v{17+2*k}')
    unpack(a,16,8,kper//2)
    for k in range(kper):
        a(f's_waitcnt vmcnt({kper-1-k})')
        unpack(a,40,64+4*k,4)
        for i in range(8): a(f'v_mul_f32 v{32+i}, v{16+k}, v{40+i}' if k==0 else f'v_fmac_f32 v{32+i}, v{16+k}, v{40+i}')
    npart=64//ncol; per=nsl//npart
    a(f"""v_lshlrev_b32 v2, 5, v0
    ds_write_b128 v2, v[32:35]
    ds_write_b128 v2, v[36:39] offset:16
    s_waitcnt lgkmcnt(0)
    s_barrier
    s_cmp_lg_u32 {sWv}, 0
    s_cbranch_scc1 {L}
    v_lshlrev_b32 v2, 2, v0""")
    for k in range(per): a(f'ds_read_b32 v{64+k}, v2 offset:{k*256}')
    a('s_waitcnt lgkmcnt(0)')
    st=per//2
    while st>=1:
        for k in range(st): a(f'v_add_f32 v{64+k}, v{64+k}, v{64+k+st}')
        st//=2
    sw=['v_permlane32_swap_b32']+(['v_permlane16_swap_b32'] if npart==4 else [])
    for x in sw: a(f'v_mov_b32 v65, v64\n{x} v64, v65\nv_add_f32 v64, v64, v65')
    a(f"""v_cvt_pk_bf16_f32 v64, v64, v64
    v_lshlrev_b32 v64, 16, v64
    s_lshr_b32 s37, {sCol}, 9
    s_cmp_eq_u32 s37, 1
    s_cselect_b32 s38, 1.0, 0
    s_cmp_eq_u32 s37, 4
    s_cselect_b32 s38, 1.0, s38
    v_add_f32 v64, s38, v64
    v_cvt_pk_bf16_f32 v64, v64, v64
    v_lshlrev_b32 v64, 16, v64
    v_and_b32 v2, {4*ncol-1}, v2
    s_lshl_b32 s37, {sCol}, 2
    s_add_u32 s37, s37, {WS_MOD}
    buffer_store_dword v64, v2, {S_WS}, s37 offen sc1
    {L}:""")

def role_init_mod(a,EXIT,part):
    a(f"""s_sub_u32 s36, {sRep}, 3
    s_lshl_b32 s36, s36, 5
    s_add_u32 s36, s36, {sH}
    s_load_dwordx4 s[84:87], s[0:1], 88      ; c, w_mod
    s_lshl_b32 s39, s36, 4
    s_waitcnt lgkmcnt(0)""")
    srd(a,'s[44:47]','s84','s85',1024); srd(a,'s[48:51]','s86','s87',512*6144)
    if part==1:
        a(f"""v_mov_b32 v7, 0
        v_and_b32 v6, 127, v0
        v_lshlrev_b32 v6, 2, v6
        s_lshl_b32 s37, s36, 9
        buffer_store_dword v7, v6, {S_WS}, s37 offen sc1""")
        mod_piece(a,16,'s39')
        signal_last(a,D_MOD,64)
        return
    a(f"""v_lshlrev_b32 v1, 4, v0
    v_mov_b64 v[4:5], -1
    v_mov_b64 v[6:7], -1
    s_lshl_b32 s37, s36, 13
    s_add_u32 s37, s37, {WS_MPUB}
    buffer_store_dwordx4 v[4:7], v1, {S_WS}, s37 offen sc1
    s_add_u32 s37, s37, 4096
    buffer_store_dwordx4 v[4:7], v1, {S_WS}, s37 offen sc1
    s_lshl_b32 s39, s36, 5
    s_add_u32 s39, s39, 1024""")
    mod_piece(a,32,'s39')
    signal_last(a,D_INIT,64)

def role_prefetch(a):
    a(f"""s_load_dwordx8 s[88:95], s[0:1], 16
    s_cmp_lt_u32 {sRep}, 3
    s_cselect_b32 s56, 1, 3
    s_sub_u32 s56, {sRep}, s56
    s_lshl_b32 s56, s56, 5
    s_add_u32 s56, s56, {sH}
    s_lshl_b32 s56, s56, 15
    v_lshlrev_b32 v59, 4, v0
    s_waitcnt lgkmcnt(0)""")
    k=0
    for m in range(4):
        srd(a,'s[52:55]',f's{88+2*m}',f's{89+2*m}',4194304)
        a('s_mov_b32 s57, s56')
        for i in range(8):
            a(f'buffer_load_dwordx4 a[{4*k}:{4*k+3}], v59, s[52:55], s57 offen\ns_add_u32 s57, s57, 4096'); k+=1

def role_ln1(a,EXIT):
    a(f'''s_load_dwordx2 s[84:85], s[0:1], 0
    s_lshl_b32 s36, {sH}, 2
    s_add_u32 s36, s36, {sRep}
    s_sub_u32 s36, s36, 3
    v_lshlrev_b32 v1, 4, v60
    s_lshl_b32 s37, s36, 14
    s_lshl_b32 s38, {sWv}, 12
    s_add_u32 s37, s37, s38
    s_waitcnt lgkmcnt(0)''')
    srd(a,'s[44:47]','s84','s85',2048*1024)
    for r in range(4): a(f'buffer_load_dwordx4 {vr(8+4*r,4)}, v1, s[44:47], s37 offen offset:{r*1024}')
    Ln=a.label('NPF'); Lj=a.label('JPF')
    a(f's_cmp_lt_u32 {sRep}, 5\ns_cbranch_scc1 {Ln}')
    role_prefetch(a)
    a(f's_waitcnt vmcnt(32)\ns_branch {Lj}\n{Ln}:\ns_waitcnt vmcnt(0)\n{Lj}:')
    X=64
    for r in range(4): unpack(a,X+8*r,8+4*r,4)
    S=[24,25,26,27]
    for r in range(4):
        b=X+8*r
        a(f'v_add_f32 v{S[r]}, v{b}, v{b+1}')
        for i in range(2,8): a(f'v_add_f32 v{S[r]}, v{S[r]}, v{b+i}')
    wave_sum(a,S,28)
    a(f's_mov_b32 s38, {f2u(1/512):#x}')
    for r in range(4): a(f'v_mul_f32 v{S[r]}, s38, v{S[r]}')
    for r in range(4):
        for i in range(8): a(f'v_sub_f32 v{X+8*r+i}, v{X+8*r+i}, v{S[r]}')
    for r in range(4):
        b=X+8*r
        a(f'v_mul_f32 v{S[r]}, v{b}, v{b}')
        for i in range(1,8): a(f'v_fmac_f32 v{S[r]}, v{b+i}, v{b+i}')
    wave_sum(a,S,28)
    a(f'v_mov_b32 v28, {f2u(1e-5):#x}')
    for r in range(4): a(f'v_fma_f32 v{S[r]}, v{S[r]}, s38, v28')
    for r in range(4): a(f'v_rsq_f32 v{S[r]}, v{S[r]}')
    for r in range(4):
        for i in range(8): a(f'v_mul_f32 v{X+8*r+i}, v{X+8*r+i}, v{S[r]}')
    poll_wg(a,S_DBG,'0',D_FLAG+D_MOD,1,EXIT)
    a(f'''v_lshlrev_b32 v2, 5, v60
    s_mov_b32 s38, {WS_MOD}
    buffer_load_dwordx4 v[32:35], v2, {S_WS}, s38 offen sc1
    buffer_load_dwordx4 v[36:39], v2, {S_WS}, s38 offen offset:16 sc1
    buffer_load_dwordx4 v[40:43], v2, {S_WS}, s38 offen offset:2048 sc1
    buffer_load_dwordx4 v[44:47], v2, {S_WS}, s38 offen offset:2064 sc1
    v_lshrrev_b32 v3, 2, v60
    v_lshlrev_b32 v3, 10, v3
    v_and_b32 v4, 3, v60
    v_lshlrev_b32 v4, 8, v4
    v_add_u32 v3, v3, v4
    s_lshl_b32 s37, s36, 14
    s_lshl_b32 s38, {sWv}, 6
    s_add_u32 s37, s37, s38
    s_add_u32 s37, s37, {WS_H}
    s_waitcnt vmcnt(0)''')
    for r in range(4):
        for i in range(8): a(f'v_fma_f32 v{X+8*r+i}, v{X+8*r+i}, v{40+i}, v{32+i}')
        for i in range(4): a(f'v_cvt_pk_bf16_f32 v{8+4*r+i}, v{X+8*r+2*i}, v{X+8*r+2*i+1}')
        a(f'buffer_store_dwordx4 {vr(8+4*r,4)}, v3, {S_WS}, s37 offen offset:{r*16} sc1')
    signal_last(a,D_LN,128)

def role_qkv(a,EXIT,hook=None,coop=1):
    a('s_load_dwordx4 s[84:87], s[0:1], 16\ns_load_dwordx2 s[88:89], s[0:1], 32\ns_waitcnt lgkmcnt(0)')
    if coop:
        import loader
        loader.load_coop(a,[84,86,88],3,False)
    else: T1m.load_weights(a,[84,86,88],3,False,None,perm=True)
    if hook: hook()
    poll_wg(a,S_DBG,'0',D_FLAG+D_LN,1,EXIT)
    sSeg='s36'; sBuf='s37'; sPrev='s38'; sNext='s42'
    LOOP=a.label('QL'); END=a.label('QE')
    a(f"""v_lshlrev_b32 v1, 4, v60
    s_lshl_b32 s39, {sWv}, 13
    v_add_u32 v2, s39, v1
    s_lshl_b32 s40, {sH}, 14
    s_lshl_b32 s41, {sWv}, 12
    s_add_u32 s40, s40, s41
    v_add_u32 v3, s40, v1
    s_lshr_b32 s40, s40, 1
    v_add_u32 v4, s40, v1
    v_mov_b32 v5, 1
    v_mov_b32 v7, 2
    s_add_u32 s40, {sRep}, {NEARLY*(NRND-1)}
    s_cmp_lt_u32 {sRep}, {NEARLY}
    s_cselect_b32 {sSeg}, {sRep}, s40
    s_mov_b32 {sBuf}, 0
    s_mov_b32 {sPrev}, -1""")
    def dma(seg,buf):
        a(f's_lshl_b32 s40, {seg}, 15\ns_add_u32 s40, s40, {WS_H}\ns_add_u32 s41, {buf}, s39')
        for i in range(8):
            if i%4==0: a(f's_add_u32 m0, s41, {(i//4)*4096}')
            if i==4: a('s_add_u32 s40, s40, 4096')
            a(f'buffer_load_dwordx4 v2, {S_WS}, s40 offen offset:{(i%4)*1024} sc1 lds')
    dma(sSeg,sBuf)
    a('s_waitcnt vmcnt(0)')
    a(f'{LOOP}:')
    a('s_waitcnt vmcnt(2)\ns_barrier')
    a(f"""s_cmp_lt_u32 {sSeg}, {NEARLY*(NRND-1)}
    s_cselect_b32 {sNext}, {NEARLY}, 7
    s_add_u32 {sNext}, {sNext}, {sSeg}
    s_min_u32 s44, {sNext}, 63
    s_xor_b32 s43, {sBuf}, 32768
    v_add_u32 v6, {sBuf}, v1""")
    dma('s44','s43')
    HB=[8,16]
    AQ=64; AK=80; AV=96
    def rd(ks):
        b=HB[ks&1]
        a(f'ds_read_b128 {vr(b,4)}, v6 offset:{ks*1024}\nds_read_b128 {vr(b+4,4)}, v6 offset:{16384+ks*1024}')
    def gemm(mats):
        rd(0)
        for ks in range(16):
            b=HB[ks&1]
            if ks<15: rd(ks+1); a('s_waitcnt lgkmcnt(2)')
            else: a('s_waitcnt lgkmcnt(0)')
            for X,A in mats:
                for t in range(2):
                    for x in range(2):
                        d=vr(A+8*x+4*t,4) if X!=2 else vr(A+8*t+4*x,4)
                        c='0' if ks==0 else d
                        if X!=2: a(f'v_mfma_f32_16x16x32_bf16 {d}, {Wd4(X,ks,t)}, {vr(b+4*x,4)}, {c}')
                        else: a(f'v_mfma_f32_16x16x32_bf16 {d}, {vr(b+4*x,4)}, {Wd4(X,ks,t)}, {c}')
    def out(lst,o0):
        for i,(A,vo,so,off) in enumerate(lst):
            o=o0+4*i
            for x in cvt2(o,A)+cvt2(o+2,A+4): a(x)
            a(f'buffer_store_dwordx4 {vr(o,4)}, v{vo}, {S_WS}, {so} offen offset:{off} sc1')
    gemm(((1,AK),(2,AV)))
    a(f's_lshl_b32 s40, {sSeg}, 19\ns_add_u32 s40, s40, {WS_KV}\ns_lshl_b32 s41, {sSeg}, 18\ns_add_u32 s41, s41, {WS_Q}')
    out([(AK,3,'s40',0),(AK+8,3,'s40',1024),(AV,3,'s40',2048),(AV+8,3,'s40',3072)],24)
    gemm(((0,AQ),))
    L=a.label('QF'); L2=a.label('QG')
    a(f"""s_lshl_b32 s45, {sH}, 8
    s_lshl_b32 s40, {sSeg}, 2
    s_add_u32 s45, s45, s40
    s_waitcnt vmcnt(0)
    s_barrier
    s_cmp_lg_u32 {sWv}, 0
    s_cbranch_scc1 {L}
    s_mov_b64 exec, 1
    buffer_store_dword v5, off, {S_WS}, s45 sc1
    s_cmp_eq_u32 {sPrev}, -1
    s_cbranch_scc1 {L2}
    buffer_store_dword v7, off, {S_WS}, {sPrev} sc1
    {L2}:
    s_mov_b64 exec, -1
    {L}:""")
    out([(AQ,4,'s41',0),(AQ+8,4,'s41',1024)],40)
    a(f"""s_mov_b32 {sPrev}, s45
    s_mov_b32 {sSeg}, {sNext}
    s_xor_b32 {sBuf}, {sBuf}, 32768
    s_cmp_lt_u32 {sSeg}, 64
    s_cbranch_scc1 {LOOP}
    s_waitcnt vmcnt(0)
    s_barrier
    s_cmp_lg_u32 {sWv}, 0
    s_cbranch_scc1 {END}
    s_mov_b64 exec, 1
    buffer_store_dword v7, off, {S_WS}, {sPrev} sc1
    s_mov_b64 exec, -1
    {END}:""")

def lane_consts(a):
    a(f"""v_and_b32 v61, 15, v60
    v_lshrrev_b32 v62, 4, v60
    v_bfe_u32 v63, v60, 2, 2
    v_and_b32 v64, 3, v60
    s_lshl_b32 s42, {sWv}, 15
    s_add_u32 s42, s42, {L_WO}""")

def role_ab(a,EXIT,NREPL):
    from team import Wreg
    a('s_load_dwordx2 s[84:85], s[0:1], 40\ns_waitcnt lgkmcnt(0)\ns_barrier')
    srd(a,'s[44:47]','s84','s85',4194304)
    lane_consts(a)
    a(f"""v_lshlrev_b32 v65, 10, v62
    v_lshlrev_b32 v66, 4, v61
    v_lshlrev_b32 v67, 5, v62
    v_xor_b32 v66, v66, v67
    s_lshl_b32 s40, {sH}, 17
    s_lshl_b32 s41, {sWv}, 8
    s_add_u32 s40, s40, s41
    v_add3_u32 v65, v65, v66, s40
    v_xor_b32 v66, 128, v65""")
    for d in range(32):
        a(f's_add_u32 m0, s42, {d*1024}\ns_mov_b32 s43, {d*4096}\nbuffer_load_dwordx4 v{65+(d&1)}, s[44:47], s43 offen lds')
    a(f"""v_lshlrev_b32 v67, 2, v62
    v_add_u32 v67, v67, v63              ; row = 4g+r
    v_and_b32 v68, 7, v67
    v_lshlrev_b32 v68, 5, v68
    v_lshlrev_b32 v67, 8, v67
    v_lshlrev_b32 v69, 3, v64
    v_add3_u32 v67, v67, v68, v69
    v_add_u32 v67, s42, v67""")
    for ks in range(4):
        a(f's_waitcnt vmcnt({24-8*ks})')
        for t in range(8):
            a(f'v_xor_b32 v68, {t*32}, v67')
            for jh in range(2):
                b=(ks*8+t)*4+2*jh
                a(f'ds_read_b64_tr_b16 a[{b}:{b+1}], v68 offset:{ks*8192+jh*4096}')
    IDX=0; L16=1; SELT=2; VD=4; VT=5; VP=6; VB=7
    Qf=8; K0=24; K1=40; ONES=56; MEM=64; Vf=64; KMf=80; KA=96; VA=104; VMf=96; SM=112; S0=116; S1=120; TT=124; PX=104; PM=108
    LK=0; LV=4096; LO=8192; LM_=16384; LT=24576; LQ=65536
    sSeg='s36'; sQt='s37'; sEh='s38'; sC='s39'; sBuf='s43'
    import team4
    team4.sel_consts(a,IDX,SELT)
    a(f"""
    v_lshlrev_b32 v{L16}, 4, v60
    s_and_b32 {sQt}, {sWv}, 1
    s_lshr_b32 {sEh}, {sWv}, 1
    s_lshl_b32 s40, {sWv}, 11
    v_add_u32 v{VD}, s40, v{L16}            ; w*2048 + lane*16
    v_mul_u32_u24 v65, 272, v61
    v_lshlrev_b32 v66, 4, v62
    s_mul_i32 s40, {sWv}, 8704
    s_add_u32 s40, s40, {LT}
    v_add3_u32 v{VT}, v65, v66, s40
    v_lshlrev_b32 v65, 10, v62
    v_lshlrev_b32 v66, 4, v61
    s_lshl_b32 s41, {sH}, 15
    s_lshl_b32 s42, {sWv}, 8
    s_add_u32 s41, s41, s42
    v_add3_u32 v{VP}, v65, v66, s41
    v_mul_u32_u24 v65, 272, v62
    v_add3_u32 v63, v65, v66, s40
    s_mov_b32 {sC}, {f2u(SCALE_LOG2E):#x}
    s_mov_b32 {sSeg}, {sRep}
    s_mov_b32 {sBuf}, {LQ}""")
    for rg in range(4): a(f'v_mov_b32 v{ONES+rg}, 0x3f803f80')
    a('v_lshlrev_b32 v65, 2, v62')
    for r in range(4):
        a(f'v_add_u32 v66, {r}, v65\nv_cmp_le_u32 s[{48+2*r}:{49+2*r}], v66, v61')
    L5=a.label('AF'); L6=a.label('AFd')
    a(f"""v_lshrrev_b32 v65, 2, v{L16}
    s_lshl_b32 s41, {sH}, 8
    s_mov_b32 {sCnt}, 0
    {L5}:
    buffer_load_dword v66, v65, {S_WS}, s41 offen sc1
    s_waitcnt vmcnt(0)
    v_cmp_gt_u32 vcc, 2, v66
    s_cbranch_vccz {L6}
    s_sleep 8
    s_add_u32 {sCnt}, {sCnt}, 1
    s_cmp_lt_u32 {sCnt}, {SPIN}
    s_cbranch_scc1 {L5}
    s_branch {EXIT}
    {L6}:
    s_waitcnt lgkmcnt(0)
    s_barrier""")
    def dma(seg,buf):
        a(f"""s_lshl_b32 s56, {seg}, 5
        s_add_u32 s56, s56, {sH}
        s_lshl_b32 s57, s56, 14
        s_lshl_b32 s56, s56, 13
        s_add_u32 s56, s56, {WS_Q}
        s_add_u32 s57, s57, {WS_KV}
        s_lshl_b32 s58, {sWv}, 11
        s_add_u32 s57, s57, s58
        s_add_u32 m0, {buf}, s58
        s_add_u32 s58, s58, s58""")
        for i in range(2): a(f'buffer_load_dwordx4 v{VD}, {S_WS}, s56 offen offset:{i*1024} sc1 lds')
        a(f's_add_u32 s58, s58, {buf}\ns_add_u32 m0, s58, 8192')
        for i in range(4): a(f'buffer_load_dwordx4 v{VD}, {S_WS}, s57 offen offset:{i*1024} sc1 lds')
    dma(sSeg,sBuf)
    LOOP=a.label('AL')
    a(f'{LOOP}:')
    mark(a,0)
    for i in range(0,16,2): a(f'v_mov_b64 {vr(KA+i,2)}, 0')
    L=a.label('MP'); D=a.label('MD')
    a(f"""v_add_u32 v{VB}, {sBuf}, v{L16}
    s_lshl_b32 s58, {sSeg}, 13
    s_add_u32 s58, s58, {WS_MPUB}
    s_mov_b32 {sCnt}, 0
    {L}:
    buffer_load_dwordx4 {vr(MEM,4)}, v{VD}, {S_WS}, s58 offen sc1
    buffer_load_dwordx4 {vr(MEM+4,4)}, v{VD}, {S_WS}, s58 offen offset:1024 sc1
    s_add_u32 {sCnt}, {sCnt}, 1
    s_cmp_ge_u32 {sCnt}, {SPIN}
    s_cbranch_scc1 {EXIT}
    s_waitcnt vmcnt(0)""")
    for x in team4.chk(MEM,TT): a(x)
    a(f"""ds_write_b128 v{VD}, {vr(MEM,4)} offset:{LM_}
    ds_write_b128 v{VD}, {vr(MEM+4,4)} offset:{LM_+1024}
    s_cbranch_vccz {D}
    s_sleep 3
    s_branch {L}
    {D}:
    s_waitcnt lgkmcnt(0)
    s_barrier""")
    mark(a,1)
    for k in range(8): a(f'ds_read_b128 {vr(MEM+4*k,4)}, v{L16} offset:{LM_+k*1024}')
    a(f's_add_u32 s59, {sSeg}, {NREPL}\ns_min_u32 s59, s59, 63\ns_xor_b32 {sBuf}, {sBuf}, 32768')
    dma('s59',sBuf)
    a(f's_lshl_b32 s40, {sQt}, 10\nv_add_u32 v{TT}, s40, v{VB}')
    rd=[f'ds_read_b128 {vr(Qf+4*w2,4)}, v{TT} offset:{w2*2048}' for w2 in range(4)]
    rd+=[f'ds_read_b128 {vr(K+4*w2,4)}, v{VB} offset:{8192+w2*4096+o}' for w2 in range(4) for K,o in ((K0,0),(K1,1024))]
    mark(a,2)
    for X,A in ((1,KA),(2,VA)):
        for ks in range(8):
            if X==1: a(f's_waitcnt lgkmcnt({7-ks if ks<7 else 0})')
            for t in range(2):
                a(f'v_smfmac_f32_16x16x64_bf16 {vr(A+4*t,4)}, {vr(MEM+4*ks,4)}, {Wreg(X,ks,t)}, v{IDX}')
                if X==2 and rd: a(rd.pop(0))
    a(f's_lshl_b32 s40, {sEh}, 13\nv_add_u32 v{S1}, s40, v{VB}')
    for x in cvt2(TT,KA)+cvt2(TT+2,KA+4): a(x)
    for t in range(2): a(f'v_mfma_f32_16x16x16_bf16 {vr(SM+4*t,4)}, {vr(TT+2*t,2)}, {vr(SELT,2)}, 0')
    for i in range(4): a(f'ds_read_b128 {vr(Vf+4*i,4)}, v{S1} offset:{8192+(i>>1)*4096+2048+(i&1)*1024}')
    for x in cvt2(KA,VA)+cvt2(KA+2,VA+4): a(x)
    a(f's_lshl_b32 s40, {sWv}, 10\nv_add_u32 v{KA+4}, s40, v{L16}')
    a(f'ds_write_b128 v{KA+4}, {vr(KA,4)} offset:{LV}')
    for x in cvt2(TT,SM)+cvt2(TT+2,SM+4): a(x)
    a(f'ds_write_b128 v{KA+4}, {vr(TT,4)} offset:{LK}')
    a('s_waitcnt lgkmcnt(2)')
    for w2 in range(4):
        for S,K in ((S0,K0),(S1,K1)):
            a(f'v_mfma_f32_16x16x32_bf16 {vr(S,4)}, {vr(K+4*w2,4)}, {vr(Qf+4*w2,4)}, {"0" if w2==0 else vr(S,4)}')
    a('s_waitcnt lgkmcnt(0)\ns_barrier')
    for w2 in range(4): a(f'ds_read_b128 {vr(KMf+4*w2,4)}, v{L16} offset:{LK+w2*1024}')
    a(f's_lshl_b32 s40, {sEh}, 11\nv_add_u32 v{TT}, s40, v{L16}')
    for i in range(2): a(f'ds_read_b128 {vr(VMf+4*i,4)}, v{TT} offset:{LV+i*1024}')
    Lq=a.label('Q1'); Lm=a.label('QM')
    a(f'v_mov_b32 v{TT}, 0xff800000\ns_cmp_lg_u32 {sQt}, 0\ns_cbranch_scc1 {Lq}')
    for r in range(4): a(f'v_cndmask_b32 v{S0+r}, v{TT}, v{S0+r}, s[{48+2*r}:{49+2*r}]\nv_mov_b32 v{S1+r}, v{TT}')
    a(f's_branch {Lm}\n{Lq}:')
    for r in range(4): a(f'v_cndmask_b32 v{S1+r}, v{TT}, v{S1+r}, s[{48+2*r}:{49+2*r}]')
    a(f'{Lm}:')
    for w2 in range(4):
        a(f's_waitcnt lgkmcnt({5-w2})')
        a(f'v_mfma_f32_16x16x32_bf16 {vr(SM,4)}, {vr(KMf+4*w2,4)}, {vr(Qf+4*w2,4)}, {"0" if w2==0 else vr(SM,4)}')
    MX=TT+1
    a(f'v_max3_f32 v{MX}, v{S0}, v{S0+1}, v{S0+2}')
    for k in range(S0+3,S1+3,2): a(f'v_max3_f32 v{MX}, v{MX}, v{k}, v{k+1}')
    a(f'v_max3_f32 v{MX}, v{MX}, v{S1+3}, v{SM}\nv_max_f32 v{MX}, v{MX}, v{SM+1}')
    for sw in ('v_permlane16_swap_b32','v_permlane32_swap_b32'):
        a(f'v_mov_b32 v{TT+2}, v{MX}\n{sw} v{MX}, v{TT+2}\nv_max_f32 v{MX}, v{MX}, v{TT+2}')
    a(f'v_mul_f32 v{MX}, {sC}, v{MX}')
    E=[SM,SM+1]+list(range(S0,S0+8))
    for k in E: a(f'v_fma_f32 v{k}, v{k}, {sC}, -v{MX}')
    for k in E: a(f'v_exp_f32 v{k}, v{k}')
    for x in cvt2(PX,S0)+cvt2(PX+2,S1)+[f'v_cvt_pk_bf16_f32 v{PM}, v{SM}, v{SM+1}',f'v_cvt_pk_bf16_f32 v{PM+1}, v{SM}, v{SM+1}']: a(x)
    a('s_waitcnt lgkmcnt(0)')
    LX=SM; LM=S0; OA=Qf
    a(f'v_mfma_f32_16x16x32_bf16 {vr(LX,4)}, {vr(ONES,4)}, {vr(PX,4)}, 0')
    a(f'v_mfma_f32_16x16x16_bf16 {vr(LM,4)}, {vr(ONES,2)}, {vr(PM,2)}, 0')
    for i in range(4): a(f'v_mfma_f32_16x16x32_bf16 {vr(OA+4*i,4)}, {vr(Vf+4*i,4)}, {vr(PX,4)}, 0')
    for i in range(4): a(f'v_mfma_f32_16x16x16_bf16 {vr(OA+4*i,4)}, {vr(VMf+2*i,2)}, {vr(PM,2)}, {vr(OA+4*i,4)}')
    a(f'v_fma_f32 v{TT}, v{LM}, 0.5, v{LX}\nv_rcp_f32 v{TT}, v{TT}')
    a(f's_lshl_b32 s40, {sQt}, 12\ns_lshl_b32 s41, {sEh}, 11\ns_add_u32 s40, s40, s41\nv_add_u32 v{TT+2}, s40, v{L16}')
    for i in range(8): a(f'v_pk_mul_f32 {vr(OA+2*i,2)}, {vr(OA+2*i,2)}, {vr(TT,2)} op_sel_hi:[1,0]')
    for i in range(2):
        for x in cvt2(24+4*i,OA+8*i)+cvt2(26+4*i,OA+8*i+4): a(x)
        a(f'ds_write_b128 v{TT+2}, {vr(24+4*i,4)} offset:{LO+i*1024}')
    a('s_waitcnt lgkmcnt(0)\ns_barrier')
    mark(a,3)
    OF=24
    for q in range(2):
        for ks in range(4): a(f'ds_read_b128 {vr(OF+8*ks+4*q,4)}, v{L16} offset:{LO+q*4096+ks*1024}')
    a(f's_lshl_b32 s56, {sSeg}, 20\ns_add_u32 s56, s56, {WS_P1}')
    def epi(q):
        l=[]
        for p in range(4):
            o=8+4*p; b=64+32*q+8*p
            l+=cvt2(o,b)+cvt2(o+2,b+4)+[f'ds_write_b128 v{VT}, {vr(o,4)} offset:{q*4352+p*64}']
        l+=['s_waitcnt lgkmcnt(0)']
        l+=[f'ds_read_b128 {vr(64+32*q+4*i,4)}, v63 offset:{q*4352+i*1088}' for i in range(4)]
        for i in range(4):
            l+=[f's_waitcnt lgkmcnt({3-i})', f's_add_u32 s57, s56, {q*16384+i*4096}', f'buffer_store_dwordx4 {vr(64+32*q+4*i,4)}, v{VP}, {S_WS}, s57 offen sc1']
        return l
    fill=[]
    for q in range(2):
        n=0
        for ks in range(4):
            if q==0: a(f's_waitcnt lgkmcnt({7-ks})')
            elif ks==0: a('s_waitcnt lgkmcnt(0)')
            for t in range(8):
                d=vr(64+32*q+4*t,4); b=(ks*8+t)*4
                a(f'v_mfma_f32_16x16x32_bf16 {d}, a[{b}:{b+3}], {vr(OF+8*ks+4*q,4)}, {"0" if ks==0 else d}')
                n+=1
                if n>3:
                    for _ in range(2):
                        if fill: a(fill.pop(0))
        for x in fill: a(x)
        fill=epi(q)
    mark(a,4)
    for x in fill: a(x)
    mark(a,5)
    a(f's_lshl_b32 s40, {sSeg}, 7\ns_add_u32 s40, s40, {C_P1}')
    signal_add(a,S_WS,'s40',0,vt=TT)
    mark(a,6)
    a(f's_add_u32 {sSeg}, {sSeg}, {NREPL}\ns_cmp_lt_u32 {sSeg}, 64\ns_cbranch_scc1 {LOOP}')

def role_r1(a,EXIT,sIdx,NCU):
    a('s_load_dwordx2 s[84:85], s[0:1], 0\ns_waitcnt lgkmcnt(0)')
    srd(a,'s[44:47]','s84','s85',2048*1024)
    lane_consts(a)
    SA=8; SB=12; VL=1; VX=2; VH=3; GA=16; CB=24; SBv=32
    sT='s36'
    a(f"""v_mov_b32 v65, 0x3f80
    v_mov_b32 v66, 0x3f800000
    v_subrev_u32 v67, 8, v61""")
    for base,src in ((SA,61),(SB,67)):
        for rg in range(4):
            a(f"""v_cmp_eq_u32 vcc, {2*rg}, v{src}
            v_cndmask_b32 v{base+rg}, 0, v65, vcc
            v_cmp_eq_u32 vcc, {2*rg+1}, v{src}
            v_cndmask_b32 v{base+rg}, v{base+rg}, v66, vcc""")
    a(f"""v_lshlrev_b32 v65, 15, v62
    v_lshlrev_b32 v66, 4, v61
    s_lshl_b32 s40, {sWv}, 8
    v_add3_u32 v{VL}, v65, v66, s40
    v_lshrrev_b32 v66, 2, v61
    v_lshlrev_b32 v66, 5, v66
    v_and_b32 v67, 1, v62
    v_lshlrev_b32 v67, 4, v67
    v_lshlrev_b32 v68, 2, v64
    v_add3_u32 v65, v66, v67, v68
    v_and_b32 v66, 2, v62
    s_lshl_b32 s40, {sWv}, 7
    v_add3_u32 v65, v65, v66, s40        ; col
    v_lshlrev_b32 v{VX}, 1, v65
    v_lshlrev_b32 v65, 2, v65
    s_lshl_b32 s40, {sWv}, 3
    v_mov_b32 v4, s40
    v_mov_b32 v5, 0
    s_mov_b32 s40, {WS_MOD+2*2048}
    s_mov_b32 s41, {WS_MOD+4*2048}
    s_mov_b32 s43, {WS_MOD+3*2048}""")
    for reg,so in ((GA,'s40'),(CB,'s41'),(SBv,'s43')): a(f'buffer_load_dwordx2 {vr(reg,2)}, v65, {S_WS}, {so} offen sc1')
    a(f's_mov_b32 {sT}, {sIdx}\ns_mov_b32 s54, {f2u(1/512):#x}\nv_mov_b32 v6, {f2u(1e-5):#x}')
    LOOP=a.label('RL')
    a(f'{LOOP}:')
    a(f"""s_lshl_b32 s48, {sT}, 10
    buffer_load_dword v40, v{VX}, s[44:47], s48 offen
    s_lshr_b32 s49, {sT}, 5
    s_lshl_b32 s50, s49, 7
    s_add_u32 s50, s50, {C_P1}
    s_lshl_b32 s51, s49, 20
    s_and_b32 s52, {sT}, 31
    s_lshl_b32 s52, s52, 10
    s_add_u32 s51, s51, s52
    s_add_u32 s51, s51, {WS_P1}""")
    mark(a,0)
    poll_ge(a,S_WS,'s50',0,32,EXIT,vt=44)
    mark(a,1)
    D=64
    for l in range(8):
        a(f'buffer_load_dwordx4 {vr(D+4*l,4)}, v{VL}, {S_WS}, s51 offen sc1')
        if l<7: a(f's_add_u32 s51, s51, {4*32768}')
    a('v_and_b32 v43, 0xffff0000, v40\nv_lshlrev_b32 v42, 16, v40')
    for l in range(8):
        a(f's_waitcnt vmcnt({7-l})')
        a(f'v_mfma_f32_16x16x32_bf16 v[48:51], {vr(SB if l&1 else SA,4)}, {vr(D+4*l,4)}, {"0" if l==0 else "v[48:51]"}')
    mark(a,2)
    a(f"""s_add_u32 s48, s48, {WS_X1}
    v_permlane32_swap_b32 v48, v50
    v_permlane32_swap_b32 v49, v51
    v_add_f32 v48, v48, v50
    v_add_f32 v49, v49, v51
    v_fma_f32 v42, v48, v{GA}, v42
    v_fma_f32 v43, v49, v{GA+1}, v43
    v_cvt_pk_bf16_f32 v40, v42, v43
    buffer_store_dword v40, v{VX}, {S_WS}, s48 offen sc1
    v_and_b32 v43, 0xffff0000, v40
    v_lshlrev_b32 v42, 16, v40
    v_add_f32 v44, v42, v43
    v_mul_f32 v45, v42, v42
    v_fmac_f32 v45, v43, v43""")
    wave_sum(a,[44,45],46)
    a(f"""ds_write_b64 v4, v[44:45]
    s_add_u32 s52, s48, {WS_H2-WS_X1}
    s_add_u32 s50, s50, {C_H2-C_P1}
    s_waitcnt lgkmcnt(0)
    s_barrier
    ds_read_b128 v[52:55], v5
    ds_read_b128 v[56:59], v5 offset:16
    s_waitcnt lgkmcnt(0)
    v_pk_add_f32 v[52:53], v[52:53], v[54:55]
    v_pk_add_f32 v[56:57], v[56:57], v[58:59]
    v_pk_add_f32 v[52:53], v[52:53], v[56:57]
    v_mul_f32 v52, s54, v52
    v_fma_f32 v53, v53, s54, v6
    v_fma_f32 v53, -v52, v52, v53
    v_max_f32 v53, v53, v6
    v_rsq_f32 v53, v53
    v_sub_f32 v42, v42, v52
    v_sub_f32 v43, v43, v52
    v_mul_f32 v42, v42, v53
    v_mul_f32 v43, v43, v53
    v_fma_f32 v42, v42, v{CB}, v{SBv}
    v_fma_f32 v43, v43, v{CB+1}, v{SBv+1}
    v_cvt_pk_bf16_f32 v44, v42, v43
    buffer_store_dword v44, v{VX}, {S_WS}, s52 offen sc1""")
    mark(a,5)
    signal_add(a,S_WS,'s50',0,vt=48)
    mark(a,6)
    a(f's_add_u32 {sT}, {sT}, {NCU}\ns_cmp_lt_u32 {sT}, 2048\ns_cbranch_scc1 {LOOP}')

def role_c(a,EXIT,sIdx):
    a('s_load_dwordx4 s[84:87], s[0:1], 64\ns_waitcnt lgkmcnt(0)\ns_barrier')
    srd(a,'s[44:47]','s84','s85',512*2752); srd(a,'s[48:51]','s86','s87',512*2752)
    lane_consts(a)
    a(f"""v_lshrrev_b32 v65, 1, v60
    v_mul_u32_u24 v65, 2752, v65
    v_and_b32 v66, 1, v60
    v_lshlrev_b32 v66, 4, v66
    s_lshl_b32 s40, {sIdx}, 6
    s_lshr_b32 s41, {sWv}, 1
    s_lshl_b32 s41, s41, 5
    s_add_u32 s40, s40, s41
    v_add3_u32 v65, v65, v66, s40""")
    for d in range(32):
        a(f's_add_u32 m0, s42, {d*1024}\ns_mov_b32 s43, {(d%16)*32*2752}\nbuffer_load_dwordx4 v65, {"s[44:47]" if d<16 else "s[48:51]"}, s43 offen lds')
    a(f"""v_lshlrev_b32 v66, 3, v62
    v_add_u32 v66, v66, v63
    v_lshlrev_b32 v66, 5, v66
    v_lshlrev_b32 v67, 3, v64
    v_add3_u32 v66, v66, v67, s42""")
    for d in range(32):
        if d%4==0: a(f's_waitcnt vmcnt({28-d})')
        for jh in range(2): a(f'ds_read_b64_tr_b16 a[{4*d+2*jh}:{4*d+2*jh+1}], v66 offset:{d*1024+jh*128}')
    sSeg='s36'
    a(f"""v_lshlrev_b32 v1, 4, v60
    s_lshl_b32 s39, {sWv}, 13
    v_add_u32 v2, s39, v1
    s_and_b32 s40, {sWv}, 1
    s_lshl_b32 s41, s40, 14
    v_xor_b32 v65, v62, v61
    v_lshlrev_b32 v65, 4, v65
    v_lshlrev_b32 v66, 10, v61
    v_add3_u32 v24, v65, v66, s41
    v_xor_b32 v25, 64, v24
    v_xor_b32 v26, 128, v24
    v_xor_b32 v27, 192, v24
    s_lshl_b32 s41, s40, 7
    v_xor_b32 v32, s41, v2
    v_xor_b32 v33, 16, v32
    v_xor_b32 v34, 32, v32
    v_xor_b32 v35, 48, v32
    v_xor_b32 v36, 64, v32
    v_xor_b32 v37, 80, v32
    v_xor_b32 v38, 96, v32
    v_xor_b32 v39, 112, v32
    s_mul_i32 s40, s40, {43*1024}
    s_lshl_b32 s41, {sIdx}, 10
    s_add_u32 s40, s40, s41
    s_lshr_b32 s41, {sWv}, 1
    s_lshl_b32 s41, s41, 3
    s_add_u32 s40, s40, s41
    v_add_u32 v4, s40, v1
    s_mov_b32 s52, {f2u(-2*0.7978845608028654*LOG2E):#x}
    v_mov_b32 v5, {f2u(-2*0.7978845608028654*0.044715*LOG2E):#x}
    s_mov_b32 {sSeg}, 0
    s_waitcnt lgkmcnt(0)""")
    LOOP=a.label('CL'); HAVE=a.label('CH'); NOPF=a.label('CN')
    sBuf='s37'; sPre='s38'
    def dma(seg,buf):
        a(f's_lshl_b32 s40, {seg}, 15\ns_add_u32 s40, s40, {WS_H2}\ns_add_u32 s41, {buf}, s39')
        for i in range(8):
            if i%4==0: a(f's_add_u32 m0, s41, {(i//4)*4096}')
            if i==4: a('s_add_u32 s40, s40, 4096')
            a(f'buffer_load_dwordx4 v{32+i}, {S_WS}, s40 offen offset:{(i%4)*1024} sc1 lds')
    a(f's_mov_b32 {sBuf}, 0\ns_mov_b32 {sPre}, 0\nv_mov_b32 v7, 65536')
    a(f'{LOOP}:')
    a(f's_lshl_b32 s50, {sSeg}, 7\ns_add_u32 s50, s50, {C_H2}\ns_cmp_lg_u32 {sPre}, 0\ns_cbranch_scc1 {HAVE}')
    mark(a,0)
    poll_ge(a,S_WS,'s50',0,32,EXIT,vt=6)
    mark(a,1)
    dma(sSeg,sBuf)
    def peek(off):
        N=a.label('CN')
        a(f"""buffer_load_dword v6, off, {S_WS}, s50 offset:{off} sc1
        s_waitcnt vmcnt(0)
        s_cmp_lg_u32 {sWv}, 0
        s_cbranch_scc1 {N}
        ds_write_b32 v7, v6
        s_waitcnt lgkmcnt(0)
        {N}:""")
    peek(128)
    a(f"""s_barrier
    {HAVE}:
    ds_read_b32 v6, v7
    v_add_u32 v20, {sBuf}, v24
    v_add_u32 v21, {sBuf}, v25
    v_add_u32 v22, {sBuf}, v26
    v_add_u32 v23, {sBuf}, v27""")
    for ks in range(14): a(f'ds_read_b128 {vr(64+4*ks,4)}, v{20+(ks&3)} offset:{(ks>>2)*256}')
    mark(a,2)
    L=a.label('CP')
    a(f"""s_waitcnt lgkmcnt(14)
    v_readfirstlane_b32 s51, v6
    s_xor_b32 {sBuf}, {sBuf}, 32768
    s_add_u32 s53, {sSeg}, 1
    s_cmp_lt_u32 s53, 64
    s_cselect_b32 s51, s51, 0
    s_cmp_ge_u32 s51, 32
    s_cselect_b32 {sPre}, 1, 0
    s_cbranch_scc0 {L}""")
    dma('s53',sBuf)
    a(f'{L}:')
    for ks in range(16):
        if ks in (1,2): a(f'ds_read_b128 {vr(64+4*(13+ks),4)}, v{20+((13+ks)&3)} offset:{((13+ks)>>2)*256}')
        a(f's_waitcnt lgkmcnt({13 if ks<3 else 15-ks})')
        for m,d in ((0,8),(1,12)):
            a(f'v_mfma_f32_16x16x32_bf16 {vr(d,4)}, a[{64*m+4*ks}:{64*m+4*ks+3}], {vr(64+4*ks,4)}, {"0" if ks==0 else vr(d,4)}')
    for r in range(4): a(f'v_mul_f32 v{16+r}, v{8+r}, v{8+r}')
    for r in range(4): a(f'v_fma_f32 v{16+r}, v{16+r}, v5, s52')
    for r in range(4): a(f'v_mul_f32 v{16+r}, v{16+r}, v{8+r}')
    for r in range(4): a(f'v_exp_f32 v{16+r}, v{16+r}')
    for r in range(4): a(f'v_mul_f32 v{8+r}, v{8+r}, v{12+r}')
    for r in range(4): a(f'v_add_f32 v{16+r}, 1.0, v{16+r}')
    for r in range(4): a(f'v_rcp_f32 v{16+r}, v{16+r}')
    a('s_nop 0')
    for r in range(4): a(f'v_mul_f32 v{8+r}, v{8+r}, v{16+r}')
    for x in cvt2(12,8): a(x)
    a(f's_mul_i32 s40, {sSeg}, {G_SEG}\ns_add_u32 s40, s40, {WS_G}\nbuffer_store_dwordx2 v[12:13], v4, {S_WS}, s40 offen sc1')
    mark(a,5)
    a('s_barrier')
    peek(256)
    a(f's_add_u32 s50, s50, {C_G-C_H2}')
    signal_add(a,S_WS,'s50',0,vt=6)
    mark(a,6)
    a(f's_add_u32 {sSeg}, {sSeg}, 1\ns_cmp_lt_u32 {sSeg}, 64\ns_cbranch_scc1 {LOOP}')

def role_d(a,EXIT,sIdx):
    a('s_load_dwordx2 s[84:85], s[0:1], 80\ns_load_dwordx2 s[86:87], s[0:1], 104\ns_waitcnt lgkmcnt(0)\ns_barrier')
    srd(a,'s[44:47]','s84','s85',1376*1024); srd(a,'s[48:51]','s86','s87',2048*1024)
    lane_consts(a)
    sDu='s37'; sSeg='s36'
    a(f"""s_and_b32 {sDu}, {sIdx}, 15
    s_lshr_b32 {sSeg}, {sIdx}, 4
    v_lshrrev_b32 v65, 2, v60
    v_lshlrev_b32 v65, 10, v65
    v_lshlrev_b32 v66, 4, v64
    s_mul_i32 s40, {sWv}, {11*32*1024}
    s_lshl_b32 s41, {sDu}, 6
    s_add_u32 s40, s40, s41
    v_add3_u32 v65, v65, v66, s40""")
    for d in range(22):
        a(f's_add_u32 m0, s42, {d*1024}\ns_mov_b32 s43, {d*16384}\nbuffer_load_dwordx4 v65, s[44:47], s43 offen lds')
    a(f"""v_lshlrev_b32 v66, 2, v62
    v_add_u32 v66, v66, v63
    v_lshlrev_b32 v66, 6, v66
    v_lshlrev_b32 v67, 3, v64
    v_add3_u32 v66, v66, v67, s42""")
    for u in range(11):
        a(f's_waitcnt vmcnt({20-2*u})')
        for t in range(2):
            for jh in range(2):
                b=(u*2+t)*4+2*jh
                a(f'ds_read_b64_tr_b16 a[{b}:{b+1}], v66 offset:{u*2048+jh*1024+t*32}')
    a(f"""v_lshlrev_b32 v1, 4, v60
    s_mul_i32 s40, {sWv}, {11*1024}
    v_add_u32 v2, s40, v1
    s_lshl_b32 s40, {sWv}, 12
    v_add_u32 v3, s40, v1
    s_lshl_b32 s40, {sWv}, 10
    v_add_u32 v4, s40, v1
    s_lshr_b32 s40, {sWv}, 1
    s_lshl_b32 s40, s40, 4
    s_lshl_b32 s41, {sDu}, 5
    s_add_u32 s40, s40, s41
    v_lshlrev_b32 v65, 2, v62
    v_add_u32 v65, s40, v65              ; column
    v_lshlrev_b32 v66, 2, v65
    s_mov_b32 s43, {WS_MOD+5*2048}
    buffer_load_dwordx4 v[8:11], v66, {S_WS}, s43 offen sc1
    v_lshlrev_b32 v65, 1, v65
    v_lshlrev_b32 v66, 10, v61
    s_and_b32 s40, {sWv}, 1
    s_lshl_b32 s40, s40, 14
    v_add3_u32 v5, v65, v66, s40
    s_waitcnt lgkmcnt(0)""")
    LOOP=a.label('DL'); SK=a.label('DS'); SK2=a.label('DT')
    a(f'{LOOP}:')
    a(f's_lshl_b32 s52, {sSeg}, 7\ns_add_u32 s52, s52, {C_G}')
    mark(a,0)
    poll_ge(a,S_WS,'s52',0,43,EXIT,vt=6)
    mark(a,1)
    a(f"""s_mul_i32 s40, {sSeg}, {G_SEG}
    s_add_u32 s40, s40, {WS_G}
    s_lshl_b32 s53, {sSeg}, 15
    s_add_u32 s54, s53, {WS_X1}
    buffer_load_dwordx2 v[6:7], v5, {S_WS}, s54 offen sc1""")
    GB=32
    def gl(u,x): return f'buffer_load_dwordx4 {vr(GB+8*u+4*x,4)}, v2, {S_WS}, s{56+x} offen offset:{(u%4)*1024} sc1'
    a(f's_mov_b32 s56, s40\ns_add_u32 s57, s40, {43*1024}')
    for u in range(10):
        if u%4==0 and u: a('s_add_u32 s56, s56, 4096\ns_add_u32 s57, s57, 4096')
        a(gl(u,0)); a(gl(u,1))
    a(f's_cmp_eq_u32 {sWv}, 3\ns_cbranch_scc1 {SK}')
    a(gl(10,0)); a(gl(10,1))
    a(f'{SK}:')
    AC=12
    def mm(u):
        for t in range(2):
            for x in range(2):
                d=vr(AC+8*t+4*x,4); b=(u*2+t)*4
                a(f'v_mfma_f32_16x16x32_bf16 {d}, a[{b}:{b+3}], {vr(GB+8*u+4*x,4)}, {"0" if u==0 else d}')
    for u in range(10):
        a(f's_waitcnt vmcnt({18-2*u})')
        mm(u)
    a(f's_waitcnt vmcnt(0)\ns_cmp_eq_u32 {sWv}, 3\ns_cbranch_scc1 {SK2}')
    mm(10)
    a(f'{SK2}:')
    mark(a,2)
    for i in range(4): a(f'ds_write_b128 v3, {vr(AC+4*i,4)} offset:{i*1024}')
    a('s_waitcnt lgkmcnt(0)\ns_barrier')
    for i in range(4): a(f'ds_read_b128 {vr(32+4*i,4)}, v4 offset:{i*4096}')
    unpack(a,28,6,2)
    a('s_waitcnt lgkmcnt(0)')
    for r in range(4): a(f'v_add_f32 v{32+r}, v{32+r}, v{36+r}\nv_add_f32 v{40+r}, v{40+r}, v{44+r}')
    for r in range(4): a(f'v_add_f32 v{32+r}, v{32+r}, v{40+r}')
    for r in range(4): a(f'v_fma_f32 v{32+r}, v{32+r}, v{8+r}, v{28+r}')
    for x in cvt2(6,32): a(x)
    a(f'buffer_store_dwordx2 v[6:7], v5, s[48:51], s53 offen')
    mark(a,5)
    mark(a,6)
    a(f's_barrier\ns_add_u32 {sSeg}, {sSeg}, 2\ns_cmp_lt_u32 {sSeg}, 64\ns_cbranch_scc1 {LOOP}')
```

```python
from asmdsl import *
from layout import *
import team2, loader
from team import srd, vr, Wreg, crossmax, SPIN, S_WS, S_W, S_DBG, LDS_TOTAL, L_WO
from team2 import chk, cvt4, pkadd, stamp_acc, NST
L_S=0; L_O=16384; L_DUMP=18432; L_MEM=19456; L_FLG=27648
sH='s20'; sWv='s21'; sStep='s22'; sCnt='s23'; sCnst='s24'; sHB='s25'; sHB2='s26'; sHA0='s27'; sHA1='s28'; sT='s29'
sAll='s30'; sKV='s31'; sFrow='s32'; sWarm='s33'; sWB='s34'; sRep='s35'; sPm='s[36:37]'; sXm='s[38:39]'
IDX=0; LANE16=1; VWO=2; VAST=3; SELT=4; VALD=6; VBST=7; SELR=8; ONES=12; VSC=17; VWO2=18; VOW=19; VKV=16
T20=20; T21=21; MX=22; NM=23
KX0=24; KX1=28; VX0=32; VX1=36; KM=40; VM=44; M=48; QA=80; KA=88; VA=96; T0=104; T1=112; T2=120
QP='quad_perm:[2,3,0,1] row_mask:0xf bank_mask:0xf'

def body(a,w,cross,exit_label,tail,P,diag,LOOP,ENTRY,DONE):
    sc=' sc1' if cross else ''
    SM_=P.get('smap',{k:k for k in range(12)})
    def stamp(k):
        if k in SM_: team2.stamp(a,SM_[k],diag)
    def sm(acc,ks,X,t): return f'v_smfmac_f32_16x16x64_bf16 {vr(acc+4*t,4)}, {vr(M+4*ks,4)}, {Wreg(X,ks,t)}, v{IDX}'
    Q=lambda p:[sm(QA,2*p+k,0,t) for k in range(2) for t in range(2)]
    K=lambda p:[sm(KA,2*p+k,1,t) for k in range(2) for t in range(2)]
    V=[sm(VA,ks,2,t) for ks in range(8) for t in range(2)]
    nv0=P.get('nv0',0) if w<2 else 0
    nv3=nv0+(P.get('nv3',3) if w<2 else 0)
    Vpost=V[nv3:]
    def v(n=1):
        for _ in range(n):
            if Vpost: a(Vpost.pop(0))
    order=[(ks,2*u+t) for u in range(4) for ks in range(2) for t in range(2)]
    def wo_read(i,g):
        ks,t=order[i]
        return [f'ds_read_b128 {vr(g+4*hf,4)}, v{VWO2 if ks else VWO} offset:{t*8192+hf*1024}' for hf in range(2)]
    QC=T2; KC=T2+4; QB=T2
    a(f'{LOOP}:')
    k=K(3 if w<2 else 5-w)
    a(k[0]); a(f'v_lshl_add_u32 v{T21}, v{LANE16}, {3 if P.get("hw",1) else 2}, {sWB}'); a(k[1])
    cq=cvt4(QC,QA)
    a(k[2]); a(cq[0]); a(k[3]); a(cq[1]); a(cq[2]); a(cq[3])
    a('s_waitcnt vmcnt(4)')
    for t in range(2): a(f'v_mfma_f32_16x16x16_bf16 {vr(T0+4*t,4)}, {vr(QC+2*t,2)}, {vr(SELT,2)}, 0')
    v(P.get('v1',1))
    for x in cvt4(KC,KA): a(x)
    for t in range(2): a(f'v_mfma_f32_16x16x16_bf16 {vr(T1+4*t,4)}, {vr(KC+2*t,2)}, {vr(SELT,2)}, 0')
    for x in cvt4(QB,T0): a(x)
    a('s_waitcnt vmcnt(0)')
    a(f'v_mfma_f32_16x16x32_bf16 {vr(T0,4)}, {vr(KX0,4)}, {vr(QB,4)}, 0')
    a(f'v_mfma_f32_16x16x32_bf16 {vr(T0+4,4)}, {vr(KX1,4)}, {vr(QB,4)}, 0')
    for x in cvt4(KM,T1): a(x)
    a(f's_mov_b32 m0, {L_DUMP}')
    a(f'v_mfma_f32_16x16x32_bf16 {vr(T1,4)}, {vr(KM,4)}, {vr(QB,4)}, 0')
    stamp(0)
    for r in range(4): a(f'v_cndmask_b32 v{T0+r}, v{T0+r}, v{T0+4+r}, {sXm}')
    a(f'ds_write_b128 v{LANE16}, {vr(T0,4)} offset:{L_S+w*4096}')
    if P.get('rst','S')=='S': a(f'v_mov_b64 {vr(KM,2)}, -1\nv_mov_b64 {vr(KM+2,2)}, -1\ns_xor_b32 {sT}, {sHA0}, {HA_SLOT}')
    else: v()
    a(f'ds_write_b64 v{LANE16}, {vr(T1,2)} offset:{L_S+w*4096+2048}')
    v()
    warm=f'buffer_load_dword v{T21}, {S_WS}, {sWarm} offen sc1 lds'
    Lsl=a.label('SL'); Lbk=a.label('SB')
    if P.get('rst','S')=='S':
        a(f'buffer_store_dwordx4 {vr(KM,4)}, v{VALD}, {S_WS}, {sT} offen{sc}')
        v()
        a(f'buffer_store_dwordx4 {vr(KM,4)}, v{VALD}, {S_WS}, {sT} offen offset:1024{sc}')
    a(f's_lshl_b32 {sT}, {sStep}, 13\ns_add_u32 {sT}, {sT}, {WS_MPUB}')
    a(f'buffer_store_dword v{NM}, v{VBST}, {S_WS}, {sT} offen sc1')
    a(f's_cmp_eq_u32 {sAll}, 0')
    v()
    a(f's_cbranch_scc1 {Lsl}\n{Lbk}:')
    if P.get('hw',1): a('s_mov_b32 exec_hi, 0'); a(warm); a('s_mov_b32 exec_hi, -1')
    else: a(warm)
    nvm=1
    t=[f'{Lsl}:']
    Ls=a.label('FS'); Lo=a.label('FO')
    t+=[f'v_lshrrev_b32 v{T20}, 2, v{LANE16}', f'ds_read_b32 v{MX}, v{T20} offset:{L_FLG+w*256}',
        f's_add_u32 s40, {sStep}, 1', 's_min_u32 s40, s40, 62', 's_lshl_b64 s[42:43], 3, s40', 's_mov_b32 s41, 0', 's_waitcnt lgkmcnt(0)', f'{Ls}:',
        f'v_cmp_ne_u32 vcc, 0, v{MX}', 's_nop 3', 's_andn2_b64 s[44:45], s[42:43], vcc', f's_cbranch_scc0 {Lo}',
        f'buffer_load_dword v{MX}, v{T20}, {S_WS}, {sFrow} offen sc1', 's_add_u32 s41, s41, 1', f's_cmp_ge_u32 s41, {SPIN}', f's_cbranch_scc1 {exit_label}',
        's_waitcnt vmcnt(0)', f's_branch {Ls}', f'{Lo}:',
        's_cmp_eq_u64 vcc, -1', f's_cselect_b32 {sAll}, 1, 0', f's_mov_b32 m0, {L_FLG+w*256}', 's_nop 0',
        f'buffer_load_dword v{T20}, {S_WS}, {sFrow} offen sc1 lds', f's_mov_b32 m0, {L_DUMP}', f's_branch {Lbk}']
    tail.extend(t)
    v(P.get('vw',2))
    a('s_waitcnt lgkmcnt(0)\ns_barrier')
    stamp(1)
    XR=[QA,QA+4,T0+4]
    oth=[x for x in range(4) if x!=w]
    for j,wv in enumerate(oth):
        a(f'ds_read_b128 {vr(XR[j],4)}, v{LANE16} offset:{L_S+wv*4096}')
    v()
    for j,wv in enumerate(oth):
        a(f'ds_read_b64 {vr(T1+2+2*j,2)}, v{LANE16} offset:{L_S+wv*4096+2048}')
    pre=wo_read(2,KA)+wo_read(3,KX0)+wo_read(4,T2)
    nvs=P.get('nvs',3); npre=0
    for _ in range(nvs):
        v()
        if P.get('prs',1) and pre: a(pre.pop(0)); npre+=1
    a(f's_add_u32 {sWarm}, {sWarm}, {KV_SEG}')
    def vp():
        if Vpost:
            v()
            if pre: a(pre.pop(0))
    a(f's_waitcnt lgkmcnt({4+npre})')
    if P.get('sc1',0):
        for r in range(4): a(f'v_add_f32 v{QA+r}, v{QA+r}, v{QA+4+r}')
    else:
        a(pkadd(QA,QA,QA+4)); a(pkadd(QA+2,QA+2,QA+6))
    a(f's_waitcnt lgkmcnt({3+npre})')
    a(pkadd(T0,T0,T0+4)); a(pkadd(T0+2,T0+2,T0+6))
    a(pkadd(QA,QA,T0)); a(pkadd(QA+2,QA+2,T0+2))
    a(f's_waitcnt lgkmcnt({npre})')
    a(pkadd(T1,T1,T1+2)); a(pkadd(T1+4,T1+4,T1+6))
    a(f'v_max3_f32 v{MX}, v{QA}, v{QA+1}, v{QA+2}')
    a(pkadd(T1,T1,T1+4))
    a(f'v_max3_f32 v{MX}, v{MX}, v{QA+3}, v{T1}\nv_max_f32 v{MX}, v{MX}, v{T1+1}')
    cv=cvt4(VM,VA)
    z=[f'v_mov_b64 {vr(M+i,2)}, 0' for i in range(0,16,2)]
    z2=[f'v_mov_b64 {vr(M+i,2)}, 0' for i in range(16,32,2)]
    r0=wo_read(0,M+16); r1=wo_read(1,M+24); r5=wo_read(5,VA)
    def fill2():
        if Vpost: vp()
        else:
            for _ in range(2):
                if pre: a(pre.pop(0))
    fill2()
    a(f'v_max_f32_dpp v{MX}, v{MX}, v{MX} {QP}')
    c16=crossmax('v_max_f32',MX,T20,16); c32=crossmax('v_max_f32',MX,T20,32)
    a(c16[0]); fill2(); a(c16[1]); a(c16[2])
    a(c32[0]); fill2(); a(c32[1]); a(c32[2])
    a(f'v_mul_f32 v{NM}, {sCnst}, v{MX}')
    while Vpost: vp()
    if P.get('sc2',1):
        for r in (QA,QA+1,QA+2,QA+3,T1,T1+1): a(f'v_fma_f32 v{r}, v{r}, {sCnst}, -v{NM}')
    else:
      for r in (QA,QA+2,T1): a(f'v_pk_fma_f32 {vr(r,2)}, {vr(r,2)}, s[24:25], {vr(MX,2)} op_sel:[0,0,1] op_sel_hi:[1,0,1] neg_lo:[0,0,1] neg_hi:[0,0,1]')
    ex=cv+pre+r0+r1+r5
    for i,r in enumerate((QA,QA+1,QA+2,QA+3,T1,T1+1)): a(f'v_exp_f32 v{r}, v{r}')
    PX=QA+4; PM=T1+2
    a(f'v_cvt_pk_bf16_f32 v{PX}, v{QA}, v{QA+1}\nv_cvt_pk_bf16_f32 v{PX+1}, v{QA+2}, v{QA+3}\nv_cvt_pk_bf16_f32 v{PM}, v{T1}, v{T1+1}')
    a(f'v_mov_b32_dpp v{PX+2}, v{PX} {QP}\nv_mov_b32_dpp v{PX+3}, v{PX+1} {QP}\nv_cvt_pk_bf16_f32 v{PM+1}, v{T1}, v{T1+1}')
    stamp(2)
    LA=KM
    a(f'v_cvt_pk_bf16_f32 v{PM+2}, v{T1}, v{T1+1}')
    def zf(n):
        for _ in range(n):
            if ex: a(ex.pop(0))
            elif z: a(z.pop())
    a(f'v_mfma_f32_16x16x32_bf16 {vr(LA,4)}, {vr(ONES,4)}, {vr(PX,4)}, 0'); a(f'v_mov_b32 v{PM+3}, 0'); zf(1)
    a(f'v_mfma_f32_16x16x32_bf16 {vr(T0,4)}, {vr(VX0,4)}, {vr(PX,4)}, 0'); zf(2)
    a(f'v_mfma_f32_16x16x16_bf16 {vr(LA,4)}, {vr(ONES,2)}, {vr(PM+2,2)}, {vr(LA,4)}'); zf(2)
    a(f'v_mfma_f32_16x16x32_bf16 {vr(T0+4,4)}, {vr(VX1,4)}, {vr(PX,4)}, 0'); zf(2)
    while any(x in ex for x in cv): a(ex.pop(0))
    a(f'v_mfma_f32_16x16x16_bf16 {vr(T0,4)}, {vr(VM,2)}, {vr(PM,2)}, {vr(T0,4)}'); zf(2)
    a(f'v_mfma_f32_16x16x16_bf16 {vr(T0+4,4)}, {vr(VM+2,2)}, {vr(PM,2)}, {vr(T0+4,4)}')
    RL=T20
    a(f'v_rcp_f32 v{RL}, v{LA}')
    zf(16)
    a(f'v_mov_b64 {vr(KM,2)}, -1\nv_mov_b64 {vr(KM+2,2)}, -1' if P.get('rst','S')!='S' else f'v_mov_b32 v{KM}, -1')
    for i in range(4): a(f'v_pk_mul_f32 {vr(T0+2*i,2)}, {vr(T0+2*i,2)}, {vr(RL,2)} op_sel_hi:[1,0]')
    OP=T1+4
    for x in cvt4(OP,T0): a(x)
    a(f'ds_write_b128 v{VOW}, {vr(OP,4)}')
    stamp(3)
    for x in wo_read(6,QA)+wo_read(7,VX0): a(x)
    if P.get('rst','S')=='O':
        a(f's_xor_b32 {sT}, {sHA0}, {HA_SLOT}')
        a(f'buffer_store_dwordx4 {vr(KM,4)}, v{VALD}, {S_WS}, {sT} offen{sc}\nbuffer_store_dwordx4 {vr(KM,4)}, v{VALD}, {S_WS}, {sT} offen offset:1024{sc}')
    if P.get('rst','O')!='W':
        a(f's_add_u32 {sT}, {sHB}, {3*HB_STEP}\ns_and_b32 {sT}, {sT}, {WS_HOPB+3*HB_STEP}')
        a(f'buffer_store_dword v{KM}, v{VBST}, {S_WS}, {sT} offen{sc}')
    a(f's_min_u32 {sWarm}, {sWarm}, {WS_KV+63*KV_SEG}\ns_add_u32 {sKV}, {sKV}, {0 if P.get("samekv") else KV_SEG}')
    if P.get('align'):
        La=a.label('AL')
        a(f'''s_add_u32 s83, s83, {P['align']}
        {La}:
        s_memtime s[96:97]
        s_waitcnt lgkmcnt(0)
        s_sub_u32 s96, s96, s83
        s_cmp_lt_i32 s96, 0
        s_cbranch_scc1 {La}''')
    a('s_waitcnt lgkmcnt(4)\ns_barrier')
    stamp(4)
    OA=T0
    a(f'ds_read_b128 {vr(OA,4)}, v{LANE16} offset:{L_O}\nds_read_b128 {vr(OA+4,4)}, v{LANE16} offset:{L_O+1024}')
    for x in wo_read(8,T1): a(x)
    slot={0:M+16,1:M+24,2:KA,3:KX0,4:T2,5:VA,6:QA,7:VX0,8:T1}
    pend=[(6,0),(6,1),(7,0),(7,1),('o',0),('o',1),(8,0),(8,1)]
    nxt=9
    posA=P.get('posA',[99,99,99,99])[w]
    RA=KA if posA<99 else T0; R=T2
    def issueA(b): a(f'buffer_load_dwordx4 {vr(b,4)}, v{VALD}, {S_WS}, {sHA0} offen sc1 ;poll\nbuffer_load_dwordx4 {vr(b+4,4)}, v{VALD}, {S_WS}, {sHA0} offen offset:1024 sc1 ;poll')
    def prefill(b): return [f'v_mov_b64 {vr(b+i,2)}, -1' for i in range(0,8,2)]
    def epilogue(u):
        b0=M+8*u; b1=b0+4
        return [f'v_add_f32 v{b0}, v{b0}, v{b0+2}', f'v_add_f32 v{b0+1}, v{b0+1}, v{b0+3}', f'v_cvt_pk_bf16_f32 v{b0}, v{b0}, v{b0+1}',
                f'v_add_f32 v{b1}, v{b1}, v{b1+2}', f'v_add_f32 v{b1+1}, v{b1+1}, v{b1+3}', f'v_cvt_pk_bf16_f32 v{b0+1}, v{b1}, v{b1+1}',
                f'buffer_store_dwordx2 {vr(b0,2)}, v{VAST}, {S_WS}, {sHA0 if u<2 else sHA1} offen offset:{(u&1)*HA_BLK}{sc}']
    epi=[]; delay=0; nst=0; issuedA=False
    def emit_epi(x):
        nonlocal nst
        a(x)
        if x.startswith('buffer_store'):
            nst+=1
            if nst==1: stamp(5)
    rq=[]
    RPS=P.get('rps',[0,0,2,2,1,1,1,1,1,1,1,1,1,1,0,0])
    X_=P.get('xg','')
    a_=a
    def ag(x):
        if 'r' in X_ and x.startswith('ds_read'): return
        if 'v' in X_ and x.startswith(('v_pk_add','v_mov')): return
        a_(x)
    for i in range(16):
        ks,t=order[i]
        while any(f==i for f,h,x in rq):
            f,h,x=rq.pop(0); ag(x); pend.append((f,h))
        needs=[('o',ks),(i,1),(i,0)]
        idx=max([pend.index(x) for x in needs if x in pend],default=-1)
        if idx>=0:
            if not ('r' in X_ and i>8): a(f's_waitcnt lgkmcnt({len(pend)-1-idx if "r" not in X_ else 0})')
            pend=pend[idx+1:]
        g=slot[i]
        a(f'v_smfmac_f32_16x16x64_bf16 {vr(M+4*t,4)}, {vr(OA+4*ks,4)}, {vr(g,8)}, v{IDX}')
        if nxt<16 and i>=2:
            rq+=[(nxt,h,x) for h,x in enumerate(wo_read(nxt,g))]
            slot[nxt]=g; nxt+=1
        for _ in range(RPS[i]):
            if rq: f,h,x=rq.pop(0); ag(x); pend.append((f,h))
        if i==posA:
            assert i>=11
            issueA(RA); issuedA=True; nst0=nst
        if i<=1 or (not epi) or delay>0:
            lim=2 if i<2 else 1
            for _ in range(lim):
                if z2 and i>=1 and (len(z2)>4 or i>=2): ag(z2.pop(0))
        if delay>0: delay-=1
        else:
            kk=0
            while epi and kk<P.get('epr',3):
                x=epi.pop(0); kk+=1
                if not ('v' in X_ and x.startswith('v_pk')): emit_epi(x)
        if i==7:
            for x in z2: ag(x)
            z2=[]
        if i%4==3:
            epi+=epilogue(i//4); delay=P.get('edel',1)
        if i in P.get('gst',[]): stamp(30+P['gst'].index(i))
    if posA==16:
        issueA(RA); issuedA=True; nst0=nst
    for x in epi: emit_epi(x)
    stamp(6)
    if P.get('ackA'): a('s_waitcnt vmcnt(0)'); stamp(26)
    if P.get('rst')=='G':
        a(f's_xor_b32 {sT}, {sHA0}, {HA_SLOT}')
        a(f'buffer_store_dwordx4 {vr(KM,4)}, v{VALD}, {S_WS}, {sT} offen{sc}\nbuffer_store_dwordx4 {vr(KM,4)}, v{VALD}, {S_WS}, {sT} offen offset:1024{sc}')

    Lp=a.label('PA'); Ld=a.label('PAd')
    zq=[f'v_mov_b64 {vr(QA+i,2)}, 0' for i in range(0,24,2) if not (RA<=QA+i<RA+8)]
    zk=[f'v_mov_b64 {vr(QA+i,2)}, 0' for i in range(0,24,2) if (RA<=QA+i<RA+8)]
    a(f's_mov_b32 {sCnt}, 0')
    pre=P.get('preA',[4,5,7,8])[w]
    NA=P.get('NA',[2,2,2,2])[w]
    mf=f'v_mfma_f32_16x16x32_bf16 {vr(R,4)}, {vr(RA,4)}, {vr(SELR,4)}, 0\nv_mfma_f32_16x16x32_bf16 {vr(R,4)}, {vr(RA+4,4)}, {vr(SELR,4)}, {vr(R,4)}'
    gA=P.get('gapA',[4,4,4,4])[w]
    if not issuedA:
        if pre>=2:
            for x in zq: a(x)
            zq=[]
        for _ in range(max(0,pre-2)): a('s_nop 7')
        issueA(RA)
    wl=P.get('wlA',[0,0,0,0])[w]
    if wl:
        for x in zq: a(x)
        zq=[]
        for _ in range(P.get('wlA0',[2,2,2,2])[w]): a('s_nop 7')
        stamp(23)
        for j in range(wl):
            for x in chk(RA): a(x)
            a(mf)
            a(f's_cbranch_vccz {Ld}')
        a('s_mov_b64 exec, vcc'); issueA(RA); a('s_mov_b64 exec, -1')
    else:
        if zq:
            for x in zq: a(x)
            gA=max(0,gA-1)
        for j in range(NA-1):
            for _ in range(gA if j==0 else P.get('gapA',[4,4,4,4])[w]): a('s_nop 7')
            issueA(RA)
        stamp(23)
    if issuedA and not wl:
        a(f's_waitcnt vmcnt({2*(NA-1)+4-nst0})')
        for x in chk(RA): a(x)
        a(mf)
        a(f's_cbranch_vccz {Ld}')
        a('s_mov_b64 exec, vcc'); issueA(RA); a('s_mov_b64 exec, -1')
    a(f'{Lp}:')
    for j in range(2):
        a(f's_waitcnt vmcnt({2*(NA-1)})')
        for x in chk(RA): a(x)
        a(mf)
        a(f's_cbranch_vccz {Ld}')
        if diag: a('s_add_u32 s77, s77, 1')
        a('s_mov_b64 exec, vcc'); issueA(RA); a('s_mov_b64 exec, -1')
    a(f's_add_u32 {sCnt}, {sCnt}, 1\ns_cmp_lt_u32 {sCnt}, {SPIN}\ns_cbranch_scc1 {Lp}\ns_branch {exit_label}')
    a(f'{Ld}:')
    stamp(7)
    Lfin=a.label('FN')
    a(f's_add_u32 {sHB}, {sHB}, {HB_STEP}\ns_and_b32 {sHB}, {sHB}, {WS_HOPB+3*HB_STEP}\ns_cmp_eq_u32 {sStep}, 62')
    red=[f'v_permlane32_swap_b32 v{R}, v{R+1}', f'v_permlane32_swap_b32 v{R+2}, v{R+3}', f'v_add_f32 v{R}, v{R}, v{R+1}', f'v_add_f32 v{R+2}, v{R+2}, v{R+3}',
         f's_add_u32 {sHB2}, {sHB}, {w*2048}', f'v_permlane16_swap_b32 v{R}, v{R+2}', f'v_add_f32 v{R}, v{R}, v{R+2}',
         f'v_mov_b32_dpp v{R+1}, v{R} row_shl:4 row_mask:0xf bank_mask:0xf', f'v_cvt_pk_bf16_f32 v{R}, v{R}, v{R+1}']
    a(f's_cselect_b32 {sT}, {WS_MPUB+63*8192}, {sHB}')
    for x in red[:4]: a(x)
    a(f's_cbranch_scc1 {Lfin}')
    for x in red[4:]: a(x)
    a(f'buffer_store_dword v{R}, v{VBST}, {S_WS}, {sHB} offen{sc}')
    tail.extend([f'{Lfin}:']+red[4:]+[f'buffer_store_dword v{R}, v{VBST}, {S_WS}, {sT} offen sc1', f's_branch {DONE}'])
    stamp(25)
    if P.get('ackB'): a('s_waitcnt vmcnt(0)'); stamp(27)
    if P.get('rst')=='W':
        a(f'buffer_store_dwordx4 {vr(KM,4)}, v{VALD}, {S_WS}, {sHA0} offen{sc}\nbuffer_store_dwordx4 {vr(KM,4)}, v{VALD}, {S_WS}, {sHA0} offen offset:1024{sc}')
        a(f's_add_u32 {sT}, {sHB}, {3*HB_STEP}\ns_and_b32 {sT}, {sT}, {WS_HOPB+3*HB_STEP}')
        a(f'buffer_store_dword v{KM}, v{VBST}, {S_WS}, {sT} offen{sc}')
    a(f's_xor_b32 {sHA0}, {sHA0}, {HA_SLOT}\ns_add_u32 {sHA1}, {sHA0}, {2*HA_BLK}\ns_add_u32 {sStep}, {sStep}, 1')
    a(f'{ENTRY}:')
    kxl=[f'buffer_load_dwordx4 {vr(KX0+4*i,4)}, v{VKV}, {S_WS}, {sKV} offen offset:{i*1024} sc1' for i in range(4)]
    if P.get('kvW'):
        for x in kxl: a(x)
        kxl=[]
    PB=M+8*w
    Fw=[f'buffer_load_dwordx4 {vr(PB+4*i,4)}, v{LANE16}, {S_WS}, {sHB2} offen offset:{i*1024} sc1 ;poll' for i in range(2)]
    Ww=[f'ds_write_b128 v{LANE16}, {vr(PB+4*i,4)} offset:{L_MEM+w*2048+i*1024}' for i in range(2)]
    late=P.get('lateB',[None,None,None,None])[w]
    if late is None:
        for _ in range(P.get('preB',[6,6,6,5])[w]): a('s_nop 7')
        for x in Fw: a(x)
    gB=P.get('gapB',4)
    if zk:
        a('s_waitcnt vmcnt(2)')
        for x in zk: a(x)
        gB-=1
    NB=P.get('NB',[2,2,2,2])[w]
    if late is None:
        for j in range(NB-1):
            for _ in range(gB if j==0 else P.get('gapB',4)): a('s_nop 7')
            for x in Fw: a(x)
    elif late[0]<0:
        for _ in range(P.get('preB',[6,6,6,5])[w]): a('s_nop 7')
        for x in Fw: a(x)
    stamp(8)
    def loop(Lok):
        Ll=a.label('RL'); t=[f's_mov_b32 {sCnt}, 0', f'{Ll}:']
        for j in range(2):
            t+=[f's_waitcnt vmcnt({2*(NB-1)})']+chk(PB)+Ww+[f's_cbranch_vccz {Lok}','s_mov_b64 exec, vcc']+Fw+['s_mov_b64 exec, -1']+(['s_add_u32 s76, s76, 1'] if diag else [])
        t+=[f's_add_u32 {sCnt}, {sCnt}, 1', f's_cmp_lt_u32 {sCnt}, {SPIN}', f's_cbranch_scc1 {Ll}', f's_branch {exit_label}']
        return t
    def own_check(fill,inter=False):
        Lr=a.label('RT'); Lb=a.label('RB'); Lw=a.label('RW')
        if not inter:
            stamp(20)
            for x in loop(Lb): a(x)
            a(f'{Lb}:')
            return
        tail.extend([f'{Lr}:','s_mov_b64 exec, vcc']+Fw+['s_mov_b64 exec, -1']+loop(Lb))
        a(f's_waitcnt vmcnt({P.get("wB",[0,0,0,2])[w]})')
        c=chk(PB)+Ww; fill=list(fill)
        while c or fill:
            if c: a(c.pop(0))
            if fill: a(fill.pop(0))
        a(f's_cbranch_vccnz {Lr}\n{Lb}:')
    def MM(p): return [Q(p)[0],Q(p)[1],K(p)[0],K(p)[1],Q(p)[2],Q(p)[3],K(p)[2],K(p)[3]]
    def rds(p): return [f'ds_read_b128 {vr(M+8*p+4*i,4)}, v{LANE16} offset:{L_MEM+p*2048+i*1024}' for i in range(2)]
    early=(w<2 or (w==2 and P.get('e2',0)))
    if early:
        own_check([]); stamp(21); a('s_waitcnt lgkmcnt(0)'); stamp(22)
    else:
        stamp(20); stamp(21); stamp(22)
    a('s_barrier')
    stamp(9)
    if w<2:
        o=1-w
        for x in rds(o): a(x)
        for x in MM(w): a(x)
        a('s_waitcnt lgkmcnt(0)')
        for x in MM(o): a(x)
        for x in V[:nv0]: a(x)
    elif early:
        for x in rds(0)+rds(1): a(x)
        mm=MM(0)+MM(1)
        for i,x in enumerate(mm):
            if i%4==0: a(f's_waitcnt lgkmcnt({3-i//4})')
            a(x)
    else:
        for x in rds(0)+rds(1): a(x)
        mm=MM(0)+MM(1)
        if late is not None:
            for p_ in late:
                if p_==0:
                    for x in Fw: a(x)
                elif p_>0: mm[p_-1]=mm[p_-1]+'\n'+'\n'.join(Fw)
        a('s_waitcnt lgkmcnt(3)')
        for x in mm[:4]: a(x)
        a('s_waitcnt lgkmcnt(2)')
        cp=P.get('cpos',[0,0,4,4])[w]
        for i in range(4,cp):
            if i==8: a('s_waitcnt lgkmcnt(0)')
            a(mm[i])
        if cp<=8: a('s_waitcnt lgkmcnt(0)')
        own_check(mm[cp:cp+6],True)
        for x in mm[cp+6:]: a(x)
        a('s_waitcnt lgkmcnt(0)')
    a('s_barrier')
    stamp(10)
    if w<2:
        for x in rds(2)+rds(3): a(x)
        for x in V[nv0:nv3]: a(x)
        a('s_waitcnt lgkmcnt(2)')
        first,second=2,3
    else:
        first,second=w,5-w
        for x in rds(second): a(x)
    if P.get('rst')=='Y':
        a(f'v_mov_b64 {vr(T1,2)}, -1\nv_mov_b64 {vr(T1+2,2)}, -1\ns_xor_b32 {sT}, {sHA0}, {HA_SLOT}')
    for i,x in enumerate(Q(first)+K(first)):
        a(x)
        if i in (0,2,4,6) and kxl: a(kxl.pop(0))
        if i==7: a(f'v_mov_b32 v{NM}, v{T2}')
        if P.get('rst')=='Y' and i in (1,3): a(f'buffer_store_dwordx4 {vr(T1,4)}, v{VALD}, {S_WS}, {sT} offen offset:{512*(i-1)}{sc}{P.get("rmod","")}')
        if P.get('warm')=='Y' and i==5: a(f'v_lshl_add_u32 v{T21}, v{LANE16}, 2, {sWB}\ns_mov_b32 m0, {L_DUMP}')
        if P.get('warm')=='Y' and i==7: a(warm)
    a('s_waitcnt lgkmcnt(0)')
    for x in Q(second): a(x)
    stamp(11)
    stamp_acc(a,diag)
    a(f's_branch {LOOP}')

def sel_consts(a,IDXr,SELTr):
    a(f'''v_mov_b32 v{IDXr}, 0x4444
    v_mov_b32 v63, 0xeeee
    v_and_b32 v64, 2, v61
    v_cmp_ne_u32 vcc, 0, v64
    v_cndmask_b32 v{IDXr}, v{IDXr}, v63, vcc
    v_lshrrev_b32 v63, 2, v61
    v_cmp_eq_u32 vcc, v63, v62           ; (c>>2)==g
    v_and_b32 v64, 1, v61
    v_lshlrev_b32 v64, 4, v64
    v_mov_b32 v65, 0x3f80
    v_lshlrev_b32 v64, v64, v65
    v_cndmask_b32 v{SELTr}, 0, v64, vcc
    v_mov_b32 v{SELTr+1}, v{SELTr}''')

def team_setup(a):
    a(f'''
    v_and_b32 v61, 15, v60               ; c
    v_lshrrev_b32 v62, 4, v60            ; g
    ''')
    sel_consts(a,IDX,SELT)
    a(f'''
    v_lshlrev_b32 v{LANE16}, 4, v60
    s_lshl_b32 s40, {sWv}, 11
    s_add_u32 s40, s40, {L_WO}
    v_add_u32 v{VWO}, s40, v{LANE16}
    v_add_u32 v{VWO2}, 0x10000, v{VWO}
    v_lshrrev_b32 v63, 3, v60
    v_lshlrev_b32 v66, 8, v63
    s_lshl_b32 s41, {sH}, 6
    s_and_b32 s40, {sWv}, 1
    s_lshl_b32 s40, s40, 7
    s_xor_b32 s41, s41, s40
    v_xor_b32 v66, s41, v66
    v_mul_u32_u24 v63, {4*HA_BLK}, v63
    v_and_b32 v64, 7, v60
    v_lshlrev_b32 v64, 3, v64
    s_mul_i32 s40, {sWv}, {32*HA_BLK}
    v_add3_u32 v63, v63, v64, v66
    v_add_u32 v{VAST}, s40, v63
    s_lshl_b32 s40, {sH}, 2
    s_add_u32 s40, s40, {sWv}
    s_mul_i32 s40, s40, {HA_BLK}
    v_add_u32 v{VALD}, s40, v{LANE16}
    v_and_b32 v63, 1, v61
    v_bfe_u32 v64, v61, 1, 1
    v_lshrrev_b32 v65, 1, v62
    v_and_b32 v66, 1, v62
    v_lshlrev_b32 v67, 4, v63
    v_lshlrev_b32 v68, 5, v64
    v_lshlrev_b32 v69, 2, v65
    v_add3_u32 v67, v67, v68, v69
    v_lshlrev_b32 v68, 3, v66
    s_lshl_b32 s40, {sWv}, 11
    s_lshr_b32 s41, {sH}, 3
    s_lshl_b32 s41, s41, 9
    s_add_u32 s40, s40, s41
    s_and_b32 s41, {sH}, 6
    s_lshl_b32 s41, s41, 5
    s_add_u32 s40, s40, s41
    s_and_b32 s41, {sH}, 1
    s_lshl_b32 s41, s41, 8
    s_add_u32 s40, s40, s41
    v_add3_u32 v{VBST}, v67, v68, s40
    v_and_b32 v67, 4, v61
    v_cmp_ne_u32 vcc, 0, v67
    v_mov_b32 v67, 0x7ff00000
    v_cndmask_b32 v{VBST}, v{VBST}, v67, vcc
    v_lshlrev_b32 v67, 10, v63
    v_lshlrev_b32 v68, 2, v64
    v_lshlrev_b32 v69, 3, v65
    v_add3_u32 v59, v67, v68, v69
    v_lshlrev_b32 v68, 4, v66
    s_lshr_b32 s40, {sH}, 3
    s_lshl_b32 s40, s40, 8
    s_lshl_b32 s41, {sWv}, 6
    s_add_u32 s40, s40, s41
    s_and_b32 s41, {sH}, 1
    s_lshl_b32 s41, s41, 5
    s_add_u32 s40, s40, s41
    s_and_b32 s41, {sH}, 6
    s_lshl_b32 s41, s41, 10
    s_add_u32 s40, s40, s41
    v_add3_u32 v59, v59, v68, s40
    s_mul_i32 s40, {sWv}, {KV_W}
    s_mul_i32 s41, {sH}, {KV_H}
    s_add_u32 {sWB}, s41, s40
    v_add_u32 v{VKV}, {sWB}, v{LANE16}
    v_bfe_u32 v65, v61, 1, 1
    s_lshr_b32 s40, {sWv}, 1
    s_lshl_b32 s40, s40, 10
    s_and_b32 s41, {sWv}, 1
    s_lshl_b32 s41, s41, 5
    s_add_u32 s40, s40, s41
    s_add_u32 s40, s40, {L_O}
    v_add_u32 v{VOW}, s40, v{LANE16}
    v_add_u32 v67, {L_DUMP}, v{LANE16}
    v_cmp_ne_u32 vcc, 0, v65
    v_cndmask_b32 v{VOW}, v{VOW}, v67, vcc
    v_and_b32 v63, 7, v61
    v_mov_b32 v65, 0x3f80
    v_mov_b32 v66, 0x3f800000
    ''')
    for rg in range(4):
        a(f'''v_cmp_eq_u32 vcc, {2*rg}, v63
        v_cndmask_b32 v{SELR+rg}, 0, v65, vcc
        v_cmp_eq_u32 vcc, {2*rg+1}, v63
        v_cndmask_b32 v{SELR+rg}, v{SELR+rg}, v66, vcc
        v_mov_b32 v{ONES+rg}, 0x3f803f80''')

def team_main(a,name,P,EXIT,tail,diag=False):
    assert NRING==2 and NREP==1
    fused=P.get('fused')
    a("""s_load_dwordx4 s[84:87], s[0:1], 8
    s_load_dwordx4 s[88:91], s[0:1], 24
    s_load_dwordx2 s[92:93], s[0:1], 40
    s_waitcnt lgkmcnt(0)""")
    srd(a,S_W,'s84','s85',8192)
    if diag: a('s_memrealtime s[78:79]')
    team_setup(a)
    def extra():
        a('v_mov_b64 v[56:57], -1\nv_mov_b64 v[54:55], -1')
        for i in range(4):
            a(f's_mov_b32 s40, {WS_HOPB+i*HB_STEP}')
            a(f'buffer_store_dword v54, v{VBST}, {S_WS}, s40 offen sc1')
        for r in range(NRING):
            a(f's_mov_b32 s40, {WS_HOPA+r*HA_SLOT}')
            for i in range(2): a(f'buffer_store_dwordx4 v[54:57], v{VALD}, {S_WS}, s40 offen offset:{i*1024} sc1')
        a(f'buffer_load_dword v58, v59, {S_W}, 0 offen')
        return 4+2*NRING+1
    import roles
    TG=roles.TEAMGATE
    def arrive(cnt,reg,val):
        def f():
            L=a.label('TA')
            a(f"""s_cmp_lg_u32 {sWv}, 0
            s_cbranch_scc1 {L}
            v_mov_b32 v{reg}, {val}
            s_mov_b64 exec, 1
            buffer_atomic_add v{reg}, off, {S_DBG}, 0 offset:{cnt} sc0
            s_mov_b64 exec, -1
            {L}:""")
        return f
    def raise_(cnt,reg,val,target):
        def f():
            L=a.label('TR')
            a(f"""s_cmp_lg_u32 {sWv}, 0
            s_cbranch_scc1 {L}
            v_readfirstlane_b32 s41, v{reg}
            s_add_u32 s41, s41, {val}
            s_and_b32 s40, s41, 0xffff
            v_mov_b32 v{reg}, s41
            s_cmp_lg_u32 s40, {target}
            s_cbranch_scc1 {L}
            buffer_store_dword v{reg}, off, {S_DBG}, 0 offset:{D_FLAG+cnt} sc1
            {L}:""")
        return f
    a(f's_cmp_eq_u32 s3, 0\ns_cselect_b32 s38, 1, 0x10001\ns_lshl_b32 {sFrow}, {sH}, 8\nv_lshrrev_b32 v53, 2, v{LANE16}')
    def peek():
        a(f'buffer_load_dword v50, v53, {S_DBG}, 0 offen offset:{D_FLAG} sc1\nbuffer_load_dword v51, v53, {S_WS}, {sFrow} offen sc1')
        return 2
    GU=P.get('gu',20)
    loader.load_coop(a,[86,88,90,92],3,True,VWO,extra,
        hooks={16:arrive(D_TEAM,56,'s38'),GU:arrive(D_TEAM+4,57,1),32:raise_(D_TEAM,56,'s38',32),GU+16:raise_(D_TEAM+4,57,1,TG),'end':peek,24:lambda: a(f'buffer_load_dword v52, v53, {S_DBG}, 0 offen offset:{D_FLAG} sc1')})
    if P.get('tl'): P['tl'](1)
    L2=a.label('TB'); L3=a.label('TC')
    a(f"""
    v_readlane_b32 s40, v52, {D_MOD//4}
    s_mov_b32 {sCnt}, 0
    s_cmp_lg_u32 s40, 0
    s_cbranch_scc1 {L3}
    {L2}:
    s_add_u32 {sCnt}, {sCnt}, 1
    s_cmp_ge_u32 {sCnt}, {SPIN}
    s_cbranch_scc1 {EXIT}
    buffer_load_dword v50, v53, {S_DBG}, 0 offen offset:{D_FLAG} sc1
    s_waitcnt vmcnt(0)
    buffer_load_dword v51, v53, {S_WS}, {sFrow} offen sc1
    {L3}:
    s_waitcnt vmcnt(0)
    v_readlane_b32 s41, v50, {D_TEAM//4}
    v_readlane_b32 s40, v50, {D_INIT//4}
    v_readlane_b32 s42, v51, 0
    s_cmp_eq_u32 s41, 0
    s_cbranch_scc1 {L2}
    s_lshr_b32 s7, s41, 16
    s_mov_b32 {sAll}, {0 if fused else 1}
    """)
    if fused:
        a(f"""s_cmp_eq_u32 s40, 0
        s_cbranch_scc1 {L2}
        s_cmp_eq_u32 s42, 0
        s_cbranch_scc1 {L2}
        s_lshl_b32 s40, {sWv}, 8
        v_add_u32 v53, s40, v53
        ds_write_b32 v53, v51 offset:{L_FLG}
        s_waitcnt lgkmcnt(0)""")
    a(f"""
    s_mov_b32 {sHB}, {WS_HOPB}
    s_lshl_b32 {sHB2}, {sWv}, 11
    s_add_u32 {sHB2}, {sHB2}, {WS_HOPB}
    s_mov_b32 {sHA0}, {WS_HOPA}
    s_mov_b32 {sHA1}, {WS_HOPA+2*HA_BLK}
    s_mov_b32 {sKV}, {WS_KV}
    s_mov_b32 {sWarm}, {WS_KV+P.get('wah',1)*KV_SEG}
    s_mov_b32 {sCnst}, {f2u(SCALE_LOG2E):#x}
    s_mov_b32 {sStep}, 0
    s_lshl_b32 s40, {sH}, 1
    s_lshl_b64 {sPm}, 3, s40
    s_mov_b32 s38, 0xcccccccc
    s_mov_b32 s39, 0xcccccccc
    buffer_store_dword v58, v{VBST}, {S_WS}, {sHB} offen sc1
    v_mov_b32 v{T2}, v58
    v_lshl_add_u32 v{T21}, v{LANE16}, 2, {sWB}
    s_add_u32 {sWarm}, {sWarm}, {KV_SEG}
    """)
    for i in range(0,24,2): a(f'v_mov_b64 {vr(QA+i,2)}, 0')
    if P.get('tl'): P['tl'](2)
    if diag:
        for k in range(14): a(f's_mov_b32 s{64+k}, 0')
        a("""s_memrealtime s[40:41]
        s_waitcnt lgkmcnt(0)
        CAL:
        s_memrealtime s[42:43]
        s_memtime s[100:101]
        s_waitcnt lgkmcnt(0)
        s_cmp_eq_u32 s42, s40
        s_cbranch_scc1 CAL
        s_mov_b32 s101, s42""")
        a('''s_and_b32 s82, s101, 1023
        s_mul_i32 s82, s82, 22
        s_sub_u32 s83, s100, s82
        s_add_u32 s83, s83, 30000''')
        a('s_memrealtime s[80:81]\ns_mem'+team2.RT+'time s[94:95]\ns_waitcnt lgkmcnt(0)')
        for k in range(NST): a(f's_mov_b32 s{40+2*k}, s94')
        a('s_mov_b32 s99, s94')
    modes=[False,True] if fused else [False]
    if fused: a(f's_cmp_lg_u32 s7, 0\ns_cbranch_scc1 {name}_xsel')
    DONE=name+'_done'
    for cross in modes:
        nm=name+('x' if cross else '')
        if cross: a(f'{name}_xsel:')
        for w in range(3): a(f's_cmp_eq_u32 {sWv}, {w}\ns_cbranch_scc1 {nm}_ent{w}')
        a(f's_branch {nm}_ent3')
    for cross in modes:
        nm=name+('x' if cross else '')
        for w in range(4):
            a('.p2align 5')
            n0=len(a.items)
            body(a,w,cross,EXIT,tail,P,diag,f'{nm}_loop{w}',f'{nm}_ent{w}',DONE)
            it=a.items[n0:]
            e=it.index(f'{nm}_ent{w}:')
            check_waits(it[e:]+it+it,f'{nm}{w}')
    a(f'{DONE}:')
    if diag:
        a(f"""s_memrealtime s[82:83]
        s_waitcnt lgkmcnt(0)
        s_sub_u32 s78, s80, s78
        s_sub_u32 s79, s82, s80
        s_lshl_b32 s40, {sH}, 2
        s_add_u32 s40, s40, {sWv}
        s_lshl_b32 s40, s40, 6
        s_add_u32 s40, s40, {WS_STAMP}""")
        for k in range(16): a(f'v_mov_b32 v61, s{64+k}\nbuffer_store_dword v61, off, {S_WS}, s40 offset:{4*k}')
        a(f"""s_add_u32 s40, s40, 8192
        v_mov_b32 v61, s100
        buffer_store_dword v61, off, {S_WS}, s40
        v_mov_b32 v61, s101
        buffer_store_dword v61, off, {S_WS}, s40 offset:4
        s_barrier
        s_lshl_b32 s40, {sWv}, 10
        v_add_u32 v62, s40, v{LANE16}
        ds_read_b128 v[64:67], v62 offset:28672
        s_lshl_b32 s41, {sH}, 12
        s_add_u32 s41, s41, {WS_LOG}
        s_waitcnt lgkmcnt(0)
        buffer_store_dwordx4 v[64:67], v62, {S_WS}, s41 offen""")
```
